```python
import torch

def _softmax(x, axis=-1):
    return torch.softmax(x, dim=axis)
def _gelu(x):
    return torch.nn.functional.gelu(x, approximate="tanh")
def _silu(x):
    return torch.nn.functional.silu(x)
def _sigmoid(x):
    return torch.sigmoid(x)
def _layernorm(x, axis=-1, eps=1e-5):
    m = x.mean(dim=axis, keepdim=True)
    v = x.var(dim=axis, keepdim=True, unbiased=False)
    return (x - m) / torch.sqrt(v + eps)
def _scatter_add(tgt, idx, src, axis=0):
    return tgt.clone().index_add_(axis, idx, src)
def _segment_sum(src, seg, n):
    out = torch.zeros((n,) + src.shape[1:], dtype=src.dtype)
    return out.index_add_(0, seg, src)
def _pad(x, pw):
    flat = tuple(v for pair in reversed(pw) for v in pair)
    return torch.nn.functional.pad(x, flat)

kernel_name = 'standalone__sliding_block_cached__decode'

def setup_inputs():

    _w = (lambda a: (lambda t: t.to(torch.bfloat16) if t.is_floating_point() else t)(torch.as_tensor(a)))
    B, Sq, D = 1, 1, 448
    Hq, Hkv, Sk, Dh = 16, 8, 65536, 256
    assert Hq % Hkv == 0, (Hq, Hkv)
    return {
        "x": _w((lambda *s: torch.randn(*s, dtype=torch.bfloat16) * 0.8)(B, Sq, D)),
        "k_cache": _w((lambda *s: torch.randn(*s, dtype=torch.bfloat16) * 0.8)(B, Hkv, Sk, Dh)),
        "v_cache": _w((lambda *s: torch.randn(*s, dtype=torch.bfloat16) * 0.05)(B, Hkv, Sk, Dh)),
        "wq": _w((lambda *s: torch.randn(*s, dtype=torch.bfloat16) * 0.8)(D, Hq * Dh) * (D ** -0.5)),
        "wo": _w((lambda *s: torch.randn(*s, dtype=torch.bfloat16) * 0.05)(Hq * Dh, D) * ((Hq * Dh) ** -0.5)),
    }

def reference(x, k_cache, v_cache, wq, wo):
    B, Sq, D = x.shape
    Hq, Dh = 16, 256
    Hkv, Sk = k_cache.shape[1], k_cache.shape[2]
    W = min(4096, max(256, Sk // 4))
    rep = Hq // Hkv
    q = (lambda x, *d: x.permute(*d))((x @ wq).reshape(B, Sq, Hq, Dh), 0, 2, 1, 3)
    k = (lambda x, n, axis: torch.repeat_interleave(x, n, dim=axis))(k_cache[:, :, Sk - W:, :], rep, axis=1)
    v = (lambda x, n, axis: torch.repeat_interleave(x, n, dim=axis))(v_cache[:, :, Sk - W:, :], rep, axis=1)
    scores = torch.einsum("bhqd,bhkd->bhqk", q, k) * (Dh ** -0.5)
    p = _softmax(scores, axis=-1)
    o = torch.einsum("bhqk,bhkd->bhqd", p, v)
    return (lambda x, *d: x.permute(*d))(o, 0, 2, 1, 3).reshape(B, Sq, Hq * Dh) @ wo
```

```python
NAME = "standalone__sliding_block_cached__decode"

HEADER = """; Kernarg layout (64 bytes, ptrs only, base s[0:1]):
"""


class Asm:
    def __init__(self):
        self.lines = []
        self.uid = 0

    def __call__(self, text):
        for ln in text.strip("\n").split("\n"):
            ln = ln.rstrip()
            s = ln.strip()
            if not s:
                continue
            if s.endswith(":") or s.startswith("."):
                self.lines.append(s)
            else:
                self.lines.append("    " + s)

    def label(self, base):
        self.uid += 1
        return f"L_{base}_{self.uid}"

    def text(self):
        return "\n".join(self.lines) + "\n"


def vr(a, n=1):
    return f"v{a}" if n == 1 else f"v[{a}:{a + n - 1}]"


def sr(a, n=1):
    return f"s{a}" if n == 1 else f"s[{a}:{a + n - 1}]"


def kernel_desc(name, vgpr, sgpr, extra=""):
    acc = (vgpr + 3) // 4 * 4
    return f""".amdhsa_kernel {name}
  .amdhsa_next_free_vgpr {vgpr}
  .amdhsa_next_free_sgpr {sgpr}
  .amdhsa_accum_offset {acc}
  .amdhsa_group_segment_fixed_size 0
  .amdhsa_kernarg_size 64
  .amdhsa_user_sgpr_count 2
  .amdhsa_user_sgpr_kernarg_segment_ptr 1
  .amdhsa_system_sgpr_workgroup_id_x 1
  .amdhsa_float_denorm_mode_32 3
{extra}.end_amdhsa_kernel
"""
```

```python
import struct, sys
from asmlib import *

def f2u(x):
    return struct.unpack("<I", struct.pack("<f", x))[0]

L_K, L_V, L_WQ, L_X, L_Q, L_S, L_RED = 0, 65536, 131072, 145408, 146432, 147456, 148480
LDS_BYTES = 149504
W_QS, W_ST, W_OS, W_FS, W_TS = 4096, 32768, 65536, 2 << 20, 4 << 20
WS_BYTES = 8 << 20
TAG_INC = 0x9E3779B1
SPIN = 200000

def gen(stamps=False, nt="nt"):
    a = Asm()
    k = NAME + "_kernel"
    NT = (" " + nt) if nt else ""
    SH, SS, SW, STAG = 20, 21, 22, 23
    SK, SV, SWQ, SX, SWO, SWS, SOUT = 24, 28, 32, 36, 40, 44, 48
    MODD, MHI = 56, 58
    SO = 60
    SSPIN = 76
    STS = 80
    nst = [0]
    def stamp():
        if stamps:
            a(f"s_memrealtime s[{STS + 2 * nst[0]}:{STS + 2 * nst[0] + 1}]")
            nst[0] += 1
    def flush_stamps(n, vtmp):
        if not stamps:
            return
        a(f"""
        s_waitcnt lgkmcnt(0)
        s_mul_i32 s52, s2, 5
        s_add_u32 s52, s52, s{SW}
        s_lshl_b32 s52, s52, 7
        s_add_u32 s52, s52, {W_TS}
        s_mov_b64 exec, 1
        """)
        for i in range(n):
            a(f"v_mov_b32 v{vtmp}, s{STS + 2 * i}")
            a(f"v_mov_b32 v{vtmp + 1}, s{STS + 2 * i + 1}")
            a(f"v_mov_b32 v{vtmp + 2}, {8 * i}")
            a(f"buffer_store_dwordx2 v[{vtmp}:{vtmp + 1}], v{vtmp + 2}, s[{SWS}:{SWS + 3}], s52 offen")
            a("s_nop 1")
        a("s_mov_b64 exec, -1")

    a(f"""
    .amdgcn_target "amdgcn-amd-amdhsa--gfx950"
    .text
    .globl {k}
    .p2align 8
    .type {k},@function
    {k}:
    s_cmp_ge_u32 s2, 256
    s_cbranch_scc1 L_end
    """)
    stamp()
    a(f"""
    s_load_dwordx16 s[4:19], s[0:1], 0
    v_lshrrev_b32 v1, 6, v0
    s_and_b32 s{SH}, s2, 7
    s_lshr_b32 s{SS}, s2, 3
    v_readfirstlane_b32 s{SW}, v1
    v_and_b32 v0, 63, v0
    s_mov_b32 s{MODD}, 0xffff0000
    s_mov_b32 s{MODD + 1}, 0xffff0000
    s_mov_b32 s{MHI}, 0
    s_mov_b32 s{MHI + 1}, -1
    s_lshl_b32 s52, s{SH}, 25
    s_lshl_b32 s53, s{SS}, 16
    s_add_u32 s52, s52, s53
    s_add_u32 s52, s52, 31457280
    s_lshl_b32 s54, s{SH}, 9
    s_lshl_b32 s55, s{SS}, 4
    s_add_u32 s54, s54, s55
    s_mul_i32 s54, s54, 896
    s_waitcnt lgkmcnt(0)
    s_load_dword s{STAG}, s[18:19], 0
    s_add_u32 s{SK}, s6, s52
    s_addc_u32 s{SK + 1}, s7, 0
    s_and_b32 s{SK + 1}, s{SK + 1}, 0xffff
    s_mov_b32 s{SK + 2}, 65536
    s_mov_b32 s{SK + 3}, 0x20000
    s_add_u32 s{SV}, s8, s52
    s_addc_u32 s{SV + 1}, s9, 0
    s_and_b32 s{SV + 1}, s{SV + 1}, 0xffff
    s_mov_b32 s{SV + 2}, 65536
    s_mov_b32 s{SV + 3}, 0x20000
    s_mov_b32 s{SWQ}, s10
    s_and_b32 s{SWQ + 1}, s11, 0xffff
    s_mov_b32 s{SWQ + 2}, 3670016
    s_mov_b32 s{SWQ + 3}, 0x20000
    s_mov_b32 s{SX}, s4
    s_and_b32 s{SX + 1}, s5, 0xffff
    s_mov_b32 s{SX + 2}, 896
    s_mov_b32 s{SX + 3}, 0x20000
    s_add_u32 s{SWO}, s12, s54
    s_addc_u32 s{SWO + 1}, s13, 0
    s_and_b32 s{SWO + 1}, s{SWO + 1}, 0xffff
    s_mov_b32 s{SWO + 2}, 14336
    s_mov_b32 s{SWO + 3}, 0x20000
    s_mov_b32 s{SWS}, s18
    s_and_b32 s{SWS + 1}, s19, 0xffff
    s_mov_b32 s{SWS + 2}, {WS_BYTES}
    s_mov_b32 s{SWS + 3}, 0x20000
    s_mov_b32 s{SOUT}, s14
    s_and_b32 s{SOUT + 1}, s15, 0xffff
    s_mov_b32 s{SOUT + 2}, 896
    s_mov_b32 s{SOUT + 3}, 0x20000
    s_cmp_eq_u32 s{SW}, 4
    s_cbranch_scc1 L_comm
    """)

    VKO = 4
    VVO = 12
    VT4 = 14
    a(f"""
    v_lshrrev_b32 v2, 5, v0
    v_and_b32 v3, 31, v0
    v_xor_b32 v3, v3, v2
    v_lshlrev_b32 v3, 4, v3
    v_lshl_add_u32 v{VKO}, v2, 9, v3
    """)
    for i in range(1, 8):
        a(f"v_xor_b32 v{VKO + i}, {(2 * i) << 4}, v{VKO}")
    a(f"""
    s_lshl_b32 s52, s{SW}, 14
    s_mov_b32 m0, s52
    v_lshrrev_b32 v2, 3, v0
    v_lshrrev_b32 v3, 4, v0
    v_and_b32 v3, 1, v3
    v_lshlrev_b32 v3, 1, v3
    v_and_b32 v1, 7, v0
    v_xor_b32 v3, v3, v1
    v_lshlrev_b32 v3, 4, v3
    v_lshl_add_u32 v3, v2, 9, v3
    s_lshl_b32 s53, s{SW}, 7
    v_add_u32 v{VVO}, s53, v3
    v_xor_b32 v{VVO + 1}, 64, v{VVO}
    """)
    for i in range(16):
        a(f"buffer_load_dwordx4 v{VKO + (i & 7)}, s[{SK}:{SK + 3}], m0 offen{NT} lds")
        a("s_add_u32 m0, m0, 1024")
        a("s_nop 0")
    a(f"""
    s_add_u32 s52, s52, {L_V}
    s_mov_b32 m0, s52
    s_mov_b32 s53, 0
    """)
    for i in range(16):
        a(f"buffer_load_dwordx4 v{VVO + (i & 1)}, s[{SV}:{SV + 3}], s53 offen{NT} lds")
        a("s_add_u32 m0, m0, 1024")
        a("s_add_u32 s53, s53, 4096")
    VWO = 16
    a(f"""
    s_lshl_b32 s52, s{SW}, 8
    v_lshl_add_u32 v{VT4}, v0, 2, s52
    s_mov_b32 s53, 3584
    s_mov_b32 s54, 7168
    s_mov_b32 s55, 10752
    """)
    for i in range(16):
        so = ["0", "s53", "s54", "s55"][i >> 2]
        a(f"buffer_load_dword v{VWO + i}, v{VT4}, s[{SWO}:{SWO + 3}], {so} offen offset:{(i & 3) * 896}{NT}")
    stamp()
    VQA = 15
    VKA = 32
    VN, VG = 36, 37
    a(f"""
    v_and_b32 v{VN}, 15, v0
    v_lshrrev_b32 v{VG}, 4, v0
    v_and_b32 v1, 1, v{VN}
    v_lshlrev_b32 v1, 9, v1
    v_lshl_add_u32 v1, v{VG}, 4, v1
    v_add_u32 v{VQA}, {L_Q}, v1
    v_xor_b32 v1, v{VG}, v{VN}
    v_lshlrev_b32 v1, 4, v1
    v_lshl_add_u32 v1, v{VN}, 9, v1
    s_lshl_b32 s52, s{SW}, 14
    v_add_u32 v{VKA}, s52, v1
    """)
    for t in range(1, 4):
        a(f"v_xor_b32 v{VKA + t}, {t << 6}, v{VKA}")
    a("s_barrier")
    stamp()
    VQ = 40
    VKB = 72
    VC = 136
    for t in range(8):
        a(f"ds_read_b128 v[{VQ + 4 * t}:{VQ + 4 * t + 3}], v{VQA} offset:{t * 64}")
    a("s_waitcnt vmcnt(32) lgkmcnt(0)")
    stamp()
    for blk in range(2):
        for t in range(8):
            r = VKB + blk * 32 + 4 * t
            a(f"ds_read_b128 v[{r}:{r + 3}], v{VKA + (t & 3)} offset:{blk * 8192 + (t >> 2) * 256}")
        if blk == 0:
            a("s_waitcnt lgkmcnt(0)")
    for blk in range(2):
        if blk == 1:
            a("s_waitcnt lgkmcnt(0)")
        c = VC + 4 * blk
        for t in range(8):
            r = VKB + blk * 32 + 4 * t
            cin = "0" if t == 0 else f"v[{c}:{c + 3}]"
            a(f"v_mfma_f32_16x16x32_bf16 v[{c}:{c + 3}], v[{VQ + 4 * t}:{VQ + 4 * t + 3}], v[{r}:{r + 3}], {cin}")
    a(f"""
    v_lshrrev_b32 v1, 5, v0
    v_lshlrev_b32 v1, 9, v1
    v_and_b32 v2, 31, v0
    v_lshl_add_u32 v1, v2, 2, v1
    s_lshl_b32 s52, s{SW}, 7
    s_add_u32 s52, s52, {L_S}
    v_add_u32 v1, s52, v1
    s_nop 7
    v_cndmask_b32 v2, v{VC}, v{VC + 1}, s[{MHI}:{MHI + 1}]
    v_cndmask_b32 v3, v{VC + 4}, v{VC + 5}, s[{MHI}:{MHI + 1}]
    v_cndmask_b32 v2, v2, v3, s[{MODD}:{MODD + 1}]
    ds_write_b32 v1, v2
    """)
    VSA = 38
    VVA = 144
    a(f"""
    v_and_b32 v1, 1, v{VN}
    v_lshlrev_b32 v1, 9, v1
    v_lshl_add_u32 v1, v{VG}, 5, v1
    v_add_u32 v{VSA}, {L_S}, v1
    v_lshrrev_b32 v1, 2, v{VN}
    v_and_b32 v2, 3, v{VN}
    v_lshl_add_u32 v3, v{VG}, 3, v1
    v_lshlrev_b32 v3, 7, v3
    v_lshl_add_u32 v3, v2, 3, v3
    v_lshrrev_b32 v1, 1, v1
    v_and_b32 v2, 1, v{VG}
    v_lshl_add_u32 v1, v2, 1, v1
    v_lshl_add_u32 v3, v1, 5, v3
    s_lshl_b32 s52, s{SW}, 14
    s_add_u32 s52, s52, {L_V}
    v_add_u32 v{VVA}, s52, v3
    """)
    for b in range(1, 4):
        a(f"v_xor_b32 v{VVA + b}, {b << 5}, v{VVA}")
    a("s_waitcnt lgkmcnt(0)")
    a("s_barrier")
    stamp()
    VS = 40
    VP = 72
    for j in range(4):
        for e in range(2):
            r = VS + 8 * j + 4 * e
            a(f"ds_read_b128 v[{r}:{r + 3}], v{VSA} offset:{j * 128 + e * 16}")
    a("s_waitcnt lgkmcnt(0)")
    VM, VL = 88, 89
    a(f"v_max3_f32 v{VM}, v{VS}, v{VS + 1}, v{VS + 2}")
    for i in range(3, 31, 2):
        a(f"v_max3_f32 v{VM}, v{VM}, v{VS + i}, v{VS + i + 1}")
    a(f"v_max_f32 v{VM}, v{VM}, v{VS + 31}")
    def bfly_swap(op, reg, tmp, kinds):
        for kind in kinds:
            a(f"v_mov_b32 v{tmp}, v{reg}")
            a("s_nop 1")
            a(f"v_permlane{kind}_swap_b32 v{reg}, v{tmp}")
            a("s_nop 0")
            a(f"{op} v{reg}, v{reg}, v{tmp}")
    bfly_swap("v_max_f32", VM, 1, (16, 32))
    C = 1.4426950408889634 / 16.0
    a(f"s_mov_b32 s52, {f2u(C):#x}")
    a(f"v_mul_f32 v{VM}, s52, v{VM}")
    for i in range(32):
        a(f"v_fma_f32 v{VS + i}, v{VS + i}, s52, -v{VM}")
    for i in range(32):
        a(f"v_exp_f32 v{VS + i}, v{VS + i}")
    a("s_nop 0")
    for i in range(16):
        a(f"v_cvt_pk_bf16_f32 v{VP + i}, v{VS + 2 * i}, v{VS + 2 * i + 1}")
    for i in range(16):
        a(f"v_add_f32 v{VS + i}, v{VS + i}, v{VS + 16 + i}")
    for n in (8, 4, 2, 1):
        for i in range(n):
            a(f"v_add_f32 v{VS + i}, v{VS + i}, v{VS + n + i}")
    a(f"v_mov_b32 v{VL}, v{VS}")
    bfly_swap("v_add_f32", VL, 1, (16, 32))
    stamp()
    VVB = 96
    VO = 112
    for j in range(4):
        a(f"s_waitcnt vmcnt({16 + 12 - 4 * j})")
        for b in range(4):
            for u in range(2):
                r = VVB + 4 * b + 2 * u
                a(f"ds_read_b64_tr_b16 v[{r}:{r + 1}], v{VVA + b} offset:{j * 4096 + u * 512}")
        for b in range(4):
            a(f"s_waitcnt lgkmcnt({6 - 2 * b})")
            c = VO + 4 * b
            cin = "0" if j == 0 else f"v[{c}:{c + 3}]"
            a(f"v_mfma_f32_16x16x32_bf16 v[{c}:{c + 3}], v[{VP + 4 * j}:{VP + 4 * j + 3}], v[{VVB + 4 * b}:{VVB + 4 * b + 3}], {cin}")
    stamp()
    VA = 128
    a(f"""
    s_lshl_b32 s52, s{SH}, 17
    s_lshl_b32 s53, s{SS}, 7
    s_add_u32 s52, s52, s53
    s_add_u32 s52, s52, {W_OS}
    s_lshl_b32 s53, s{SW}, 14
    s_add_u32 s52, s52, s53
    s_add_u32 s53, s52, 65536
    v_lshlrev_b32 v1, 12, v{VG}
    v_lshl_add_u32 v{VA}, v{VN}, 3, v1
    s_add_u32 s{STAG}, s{STAG}, {TAG_INC:#x}
    """)
    a("s_nop 3")
    for hd in range(2):
        a(f"v_cndmask_b32 v1, v{VO + hd}, v{VO + 4 + hd}, s[{MODD}:{MODD + 1}]")
        a(f"v_cndmask_b32 v2, v{VO + 8 + hd}, v{VO + 12 + hd}, s[{MODD}:{MODD + 1}]")
        a(f"v_cndmask_b32 v{130 + 2 * hd}, v1, v2, s[{MHI}:{MHI + 1}]")
        a(f"v_mov_b32 v{131 + 2 * hd}, s{STAG}")
    a(f"buffer_store_dwordx2 v[130:131], v{VA}, s[{SWS}:{SWS + 3}], s52 offen sc1")
    a(f"buffer_store_dwordx2 v[132:133], v{VA}, s[{SWS}:{SWS + 3}], s53 offen sc1")
    a(f"""
    s_cmp_lg_u32 s{SW}, 0
    s_cbranch_scc1 L_nostat
    s_lshl_b32 s52, s{SH}, 10
    s_lshl_b32 s53, s{SS}, 4
    s_add_u32 s52, s52, s53
    s_add_u32 s52, s52, {W_ST}
    v_lshlrev_b32 v1, 9, v0
    v_mov_b32 v136, v{VM}
    v_mov_b32 v137, s{STAG}
    v_mov_b32 v138, v{VL}
    v_mov_b32 v139, s{STAG}
    s_mov_b64 exec, 3
    buffer_store_dwordx4 v[136:139], v1, s[{SWS}:{SWS + 3}], s52 offen sc1
    s_mov_b64 exec, -1
    L_nostat:
    """)
    stamp()
    a(f"""
    s_lshl_b32 s52, s{SH}, 17
    s_lshl_b32 s53, s{SS}, 12
    s_add_u32 s52, s52, s53
    s_add_u32 s52, s52, {W_OS}
    s_lshl_b32 s53, s{SW}, 10
    s_add_u32 s52, s52, s53
    v_lshlrev_b32 v1, 4, v0
    s_lshl_b32 s53, s{SH}, 10
    s_lshr_b32 s54, s{SS}, 4
    s_lshl_b32 s54, s54, 9
    s_add_u32 s53, s53, s54
    s_add_u32 s53, s53, {W_ST}
    v_and_b32 v2, 31, v0
    v_lshlrev_b32 v2, 4, v2
    v_lshrrev_b32 v3, 3, v0
    s_lshl_b32 s54, s{SW}, 3
    v_add_u32 v3, s54, v3
    v_lshlrev_b32 v3, 4, v3
    s_mov_b32 s{SSPIN}, {SPIN}
    L_poll1:
    buffer_load_dwordx4 v[40:43], v1, s[{SWS}:{SWS + 3}], s52 offen sc1
    buffer_load_dwordx4 v[44:47], v2, s[{SWS}:{SWS + 3}], s53 offen sc1
    buffer_load_dwordx4 v[48:51], v3, s[{SWS}:{SWS + 3}], s53 offen sc1
    s_sub_u32 s{SSPIN}, s{SSPIN}, 1
    s_cbranch_scc1 L_poll1_done
    s_waitcnt vmcnt(0)
    v_cmp_eq_u32 s[54:55], s{STAG}, v41
    v_cmp_eq_u32 vcc, s{STAG}, v43
    s_and_b64 s[54:55], s[54:55], vcc
    v_cmp_eq_u32 vcc, s{STAG}, v45
    s_and_b64 s[54:55], s[54:55], vcc
    v_cmp_eq_u32 vcc, s{STAG}, v47
    s_and_b64 s[54:55], s[54:55], vcc
    v_cmp_eq_u32 vcc, s{STAG}, v49
    s_and_b64 s[54:55], s[54:55], vcc
    s_cmp_eq_u64 s[54:55], -1
    s_cbranch_scc0 L_poll1
    L_poll1_done:
    s_waitcnt vmcnt(0)
    """)
    stamp()
    def bfly_dpp16(op, reg, tmp):
        for ctl in ("quad_perm:[1,0,3,2]", "quad_perm:[2,3,0,1]", "row_half_mirror", "row_mirror"):
            a("s_nop 1")
            a(f"{op}_dpp v{reg}, v{reg}, v{reg} {ctl} row_mask:0xf bank_mask:0xf")
        bfly_swap(op, reg, tmp, (16,))
    a("v_mov_b32 v52, v44")
    bfly_dpp16("v_max_f32", 52, 1)
    a("""
    v_sub_f32 v53, v44, v52
    v_sub_f32 v54, v48, v52
    v_exp_f32 v53, v53
    v_exp_f32 v54, v54
    s_nop 0
    v_mul_f32 v53, v53, v46
    v_mul_f32 v40, v40, v54
    v_mul_f32 v42, v42, v54
    """)
    bfly_dpp16("v_add_f32", 53, 1)
    for reg in (40, 42):
        a("s_nop 1")
        a(f"v_add_f32_dpp v{reg}, v{reg}, v{reg} row_ror:8 row_mask:0xf bank_mask:0xf")
        bfly_swap("v_add_f32", reg, 1, (16, 32))
    a(f"""
    v_mov_b32 v41, v42
    s_lshl_b32 s52, s{SW}, 6
    s_add_u32 s52, s52, {L_RED}
    v_lshl_add_u32 v1, v0, 3, s52
    s_mov_b64 exec, 0xff
    ds_write_b64 v1, v[40:41]
    s_mov_b64 exec, -1
    v_rcp_f32 v53, v53
    v_and_b32 v1, 15, v0
    v_lshlrev_b32 v1, 2, v1
    v_add_u32 v1, {L_RED}, v1
    """)
    for i in range(16):
        a(f"v_lshlrev_b32 v{72 + 2 * i}, 16, v{VWO + i}")
        a(f"v_and_b32 v{73 + 2 * i}, 0xffff0000, v{VWO + i}")
    a(f"""
    s_waitcnt lgkmcnt(0)
    s_barrier
    ds_read_b32 v44, v1
    ds_read_b32 v45, v1 offset:64
    ds_read_b32 v46, v1 offset:128
    ds_read_b32 v47, v1 offset:192
    s_waitcnt lgkmcnt(0)
    v_add_f32 v44, v44, v45
    v_add_f32 v46, v46, v47
    v_add_f32 v44, v44, v46
    v_mul_f32 v44, v44, v53
    s_nop 0
    """)
    for i in range(16):
        a(f"v_readlane_b32 s{SO + i}, v44, {i}")
    a("s_nop 1")
    for i in range(16):
        for hf in range(2):
            acc = 48 + 2 * (i & 1) + hf
            src = 72 + 2 * i + hf
            if i < 2:
                a(f"v_mul_f32 v{acc}, s{SO + i}, v{src}")
            else:
                a(f"v_fmac_f32 v{acc}, s{SO + i}, v{src}")
    a(f"""
    v_add_f32 v56, v48, v50
    v_mov_b32 v57, s{STAG}
    v_add_f32 v58, v49, v51
    v_mov_b32 v59, s{STAG}
    s_lshl_b32 s52, s{SW}, 6
    v_add_u32 v1, s52, v0
    v_lshrrev_b32 v2, 3, v1
    v_lshlrev_b32 v2, 15, v2
    v_and_b32 v3, 7, v1
    v_lshl_add_u32 v2, v3, 4, v2
    s_lshl_b32 s52, s2, 7
    s_add_u32 s52, s52, {W_FS}
    v_cmp_gt_u32 vcc, 224, v1
    s_and_saveexec_b64 s[54:55], vcc
    buffer_store_dwordx4 v[56:59], v2, s[{SWS}:{SWS + 3}], s52 offen sc1
    s_mov_b64 exec, s[54:55]
    """)
    stamp()
    a(f"""
    s_cmp_ge_u32 s2, 28
    s_cbranch_scc1 L_fin
    s_lshl_b32 s52, s2, 15
    s_lshl_b32 s53, s{SW}, 13
    s_add_u32 s52, s52, s53
    s_add_u32 s52, s52, {W_FS}
    s_add_u32 s53, s52, 4096
    v_lshlrev_b32 v1, 4, v0
    s_mov_b32 s{SSPIN}, {SPIN}
    L_poll2:
    """)
    for kk in range(8):
        so = "s52" if kk < 4 else "s53"
        a(f"buffer_load_dwordx4 v[{64 + 4 * kk}:{67 + 4 * kk}], v1, s[{SWS}:{SWS + 3}], {so} offen offset:{(kk & 3) * 1024} sc1")
    a(f"""
    s_sub_u32 s{SSPIN}, s{SSPIN}, 1
    s_cbranch_scc1 L_poll2_done
    s_waitcnt vmcnt(0)
    s_mov_b64 s[54:55], -1
    """)
    for kk in range(8):
        for e in (1, 3):
            a(f"v_cmp_eq_u32 vcc, s{STAG}, v{64 + 4 * kk + e}")
            a("s_and_b64 s[54:55], s[54:55], vcc")
    a(f"""
    s_cmp_eq_u64 s[54:55], -1
    s_cbranch_scc0 L_poll2
    L_poll2_done:
    s_waitcnt vmcnt(0)
    """)
    stamp()
    for e, dst in ((0, 40), (2, 41)):
        a(f"v_add_f32 v{dst}, v{64 + e}, v{68 + e}")
        for kk in range(2, 8):
            a(f"v_add_f32 v{dst}, v{dst}, v{64 + 4 * kk + e}")
    for reg in (40, 41):
        a("s_nop 1")
        a(f"v_add_f32_dpp v{reg}, v{reg}, v{reg} row_ror:8 row_mask:0xf bank_mask:0xf")
        bfly_swap("v_add_f32", reg, 1, (16, 32))
    a(f"""
    s_lshl_b32 s52, s{SW}, 6
    s_add_u32 s52, s52, {L_RED + 256}
    v_lshl_add_u32 v1, v0, 3, s52
    s_mov_b64 exec, 0xff
    ds_write_b64 v1, v[40:41]
    s_mov_b64 exec, -1
    s_waitcnt lgkmcnt(0)
    s_barrier
    s_cmp_lg_u32 s{SW}, 0
    s_cbranch_scc1 L_fin
    v_and_b32 v1, 7, v0
    v_lshlrev_b32 v1, 3, v1
    v_add_u32 v1, {L_RED + 256}, v1
    ds_read_b64 v[40:41], v1
    ds_read_b64 v[42:43], v1 offset:64
    ds_read_b64 v[44:45], v1 offset:128
    ds_read_b64 v[46:47], v1 offset:192
    s_waitcnt lgkmcnt(0)
    v_add_f32 v40, v40, v42
    v_add_f32 v41, v41, v43
    v_add_f32 v44, v44, v46
    v_add_f32 v45, v45, v47
    v_add_f32 v40, v40, v44
    v_add_f32 v41, v41, v45
    v_cvt_pk_bf16_f32 v40, v40, v41
    s_lshl_b32 s52, s2, 5
    v_lshlrev_b32 v1, 2, v0
    s_mov_b64 exec, 0xff
    buffer_store_dword v40, v1, s[{SOUT}:{SOUT + 3}], s52 offen
    s_cmp_lg_u32 s2, 0
    s_cbranch_scc1 L_fin
    s_mov_b64 exec, 1
    v_mov_b32 v2, 0
    v_mov_b32 v3, s{STAG}
    buffer_store_dword v3, v2, s[{SWS}:{SWS + 3}], 0 offen sc1
    L_fin:
    s_mov_b64 exec, -1
    """)
    stamp()
    flush_stamps(nst[0], 200)
    a("s_endpgm")

    nst[0] = 1
    a(f"""
    L_comm:
    v_lshlrev_b32 v1, 4, v0
    s_mov_b32 m0, {L_X}
    s_lshl_b32 s52, s{SH}, 10
    s_lshl_b32 s53, s{SS}, 5
    s_add_u32 s52, s52, s53
    buffer_load_dwordx4 v1, s[{SX}:{SX + 3}], 0 offen lds
    v_lshrrev_b32 v2, 1, v0
    v_lshlrev_b32 v2, 13, v2
    v_and_b32 v3, 1, v0
    v_lshl_add_u32 v2, v3, 4, v2
    v_add_u32 v2, s52, v2
    s_mov_b32 m0, {L_WQ}
    s_mov_b32 s53, 0
    """)
    for i in range(14):
        a(f"buffer_load_dwordx4 v2, s[{SWQ}:{SWQ + 3}], s53 offen lds")
        a("s_add_u32 m0, m0, 1024")
        a("s_add_u32 s53, s53, 262144")
    stamp()
    a(f"""
    v_and_b32 v4, 15, v0
    v_lshrrev_b32 v5, 4, v0
    v_lshlrev_b32 v6, 4, v5
    v_add_u32 v6, {L_X}, v6
    v_lshrrev_b32 v7, 2, v4
    v_lshl_add_u32 v7, v5, 3, v7
    v_lshlrev_b32 v7, 5, v7
    v_and_b32 v8, 3, v4
    v_lshl_add_u32 v7, v8, 3, v7
    v_add_u32 v7, {L_WQ}, v7
    s_waitcnt vmcnt(0) lgkmcnt(0)
    """)
    stamp()
    XA, WB, QC = 16, 72, 128
    def rd(t):
        a(f"ds_read_b128 v[{XA + 4 * t}:{XA + 4 * t + 3}], v6 offset:{t * 64}")
        for u in range(2):
            r = WB + 4 * t + 2 * u
            a(f"ds_read_b64_tr_b16 v[{r}:{r + 1}], v7 offset:{t * 1024 + u * 128}")
    for t in range(4):
        rd(t)
    for t in range(14):
        rem = min(3, 13 - t)
        a(f"s_waitcnt lgkmcnt({3 * rem})")
        cin = "0" if t == 0 else f"v[{QC}:{QC + 3}]"
        a(f"v_mfma_f32_16x16x32_bf16 v[{QC}:{QC + 3}], v[{XA + 4 * t}:{XA + 4 * t + 3}], v[{WB + 4 * t}:{WB + 4 * t + 3}], {cin}")
        if t + 4 < 14:
            rd(t + 4)
    a(f"""
    s_waitcnt lgkmcnt(0)
    s_add_u32 s{STAG}, s{STAG}, {TAG_INC:#x}
    s_lshl_b32 s52, s{SH}, 11
    s_lshl_b32 s53, s{SS}, 6
    s_add_u32 s53, s53, s52
    s_add_u32 s53, s53, {W_QS}
    s_add_u32 s52, s52, {W_QS}
    v_lshlrev_b32 v1, 2, v0
    s_nop 4
    v_mov_b32_dpp v9, v{QC} quad_perm:[1,1,3,3] row_mask:0xf bank_mask:0xf
    v_mov_b32 v11, s{STAG}
    v_cvt_pk_bf16_f32 v10, v{QC}, v9
    s_mov_b64 exec, 0x5555
    buffer_store_dwordx2 v[10:11], v1, s[{SWS}:{SWS + 3}], s53 offen sc1
    s_mov_b64 exec, -1
    """)
    stamp()
    a(f"""
    v_lshlrev_b32 v1, 5, v0
    s_mov_b32 s{SSPIN}, {SPIN}
    L_pollq:
    buffer_load_dwordx4 v[12:15], v1, s[{SWS}:{SWS + 3}], s52 offen sc1
    buffer_load_dwordx4 v[16:19], v1, s[{SWS}:{SWS + 3}], s52 offen offset:16 sc1
    s_sub_u32 s{SSPIN}, s{SSPIN}, 1
    s_cbranch_scc1 L_pollq_done
    s_waitcnt vmcnt(0)
    v_cmp_eq_u32 s[54:55], s{STAG}, v13
    v_cmp_eq_u32 vcc, s{STAG}, v15
    s_and_b64 s[54:55], s[54:55], vcc
    v_cmp_eq_u32 vcc, s{STAG}, v17
    s_and_b64 s[54:55], s[54:55], vcc
    v_cmp_eq_u32 vcc, s{STAG}, v19
    s_and_b64 s[54:55], s[54:55], vcc
    s_cmp_eq_u64 s[54:55], -1
    s_cbranch_scc0 L_pollq
    L_pollq_done:
    s_waitcnt vmcnt(0)
    v_mov_b32 v13, v14
    v_mov_b32 v14, v16
    v_mov_b32 v15, v18
    v_lshlrev_b32 v1, 4, v0
    v_add_u32 v1, {L_Q}, v1
    ds_write_b128 v1, v[12:15]
    s_waitcnt lgkmcnt(0)
    """)
    stamp()
    a("s_barrier")
    flush_stamps(nst[0], 200)
    a("s_endpgm")
    a("L_end:")
    a("s_endpgm")
    a('.section .rodata,"a"')
    a(".p2align 6")
    out = HEADER + f"; @launch grid=(256,1,1) block=(320,1,1) lds={LDS_BYTES}\n" + a.text() + kernel_desc(k, 208, 102)
    return out

if __name__ == "__main__":
    stamps = "--stamps" in sys.argv
    path = [x for x in sys.argv[1:] if not x.startswith("--")][0]
    open(path, "w").write(gen(stamps=stamps))
```

```python
import struct, sys
from asmlib import *

def f2u(x):
    return struct.unpack("<I", struct.pack("<f", x))[0]

L_K, L_V, L_WQ, L_X, L_Q, L_S, L_RED = 0, 65536, 131072, 145408, 146432, 147456, 148480
LDS_BYTES = 149504
W_QS, W_ST, W_OS, W_FS, W_TS = 4096, 32768, 65536, 2 << 20, 4 << 20
WS_BYTES = 8 << 20
TAG_INC = 0x9E3779B1
SPIN = 200000

def gen(stamps=False, nt="nt"):
    a = Asm()
    k = NAME + "_kernel"
    NT = (" " + nt) if nt else ""
    SH, SS, SW, STAG = 20, 21, 22, 23
    SK, SV, SWQ, SX, SWO, SWS, SOUT = 24, 28, 32, 36, 40, 44, 48
    MODD, MHI = 56, 58
    SO = 60
    SSPIN = 76
    STS = 78
    nst = [0]
    def stamp():
        if stamps:
            a(f"s_memrealtime s[{STS + 2 * nst[0]}:{STS + 2 * nst[0] + 1}]")
            nst[0] += 1
    def flush_stamps(n, vtmp):
        if not stamps:
            return
        a(f"""
        s_waitcnt lgkmcnt(0)
        s_mul_i32 s52, s2, 5
        s_add_u32 s52, s52, s{SW}
        s_lshl_b32 s52, s52, 7
        s_add_u32 s52, s52, {W_TS}
        s_mov_b64 exec, 1
        """)
        for i in range(n):
            a(f"v_mov_b32 v{vtmp}, s{STS + 2 * i}")
            a(f"v_mov_b32 v{vtmp + 1}, s{STS + 2 * i + 1}")
            a(f"v_mov_b32 v{vtmp + 2}, {8 * i}")
            a(f"buffer_store_dwordx2 v[{vtmp}:{vtmp + 1}], v{vtmp + 2}, s[{SWS}:{SWS + 3}], s52 offen")
            a("s_nop 1")
        a("s_mov_b64 exec, -1")

    a(f"""
    .amdgcn_target "amdgcn-amd-amdhsa--gfx950"
    .text
    .globl {k}
    .p2align 8
    .type {k},@function
    {k}:
    s_cmp_ge_u32 s2, 256
    s_cbranch_scc1 L_end
    """)
    if stamps:
        for i in range(78, 102):
            a(f"s_mov_b32 s{i}, 0")
    stamp()
    a(f"""
    s_load_dwordx16 s[4:19], s[0:1], 0
    v_lshrrev_b32 v1, 6, v0
    s_and_b32 s{SH}, s2, 7
    s_lshr_b32 s{SS}, s2, 3
    v_readfirstlane_b32 s{SW}, v1
    v_and_b32 v0, 63, v0
    s_mov_b32 s{MODD}, 0xffff0000
    s_mov_b32 s{MODD + 1}, 0xffff0000
    s_mov_b32 s{MHI}, 0
    s_mov_b32 s{MHI + 1}, -1
    s_lshl_b32 s52, s{SH}, 25
    s_lshl_b32 s53, s{SS}, 16
    s_add_u32 s52, s52, s53
    s_add_u32 s52, s52, 31457280
    s_lshl_b32 s54, s{SH}, 9
    s_lshl_b32 s55, s{SS}, 4
    s_add_u32 s54, s54, s55
    s_mul_i32 s54, s54, 896
    s_waitcnt lgkmcnt(0)
    s_load_dword s{STAG}, s[18:19], 0
    s_add_u32 s{SK}, s6, s52
    s_addc_u32 s{SK + 1}, s7, 0
    s_and_b32 s{SK + 1}, s{SK + 1}, 0xffff
    s_mov_b32 s{SK + 2}, 65536
    s_mov_b32 s{SK + 3}, 0x20000
    s_add_u32 s{SV}, s8, s52
    s_addc_u32 s{SV + 1}, s9, 0
    s_and_b32 s{SV + 1}, s{SV + 1}, 0xffff
    s_mov_b32 s{SV + 2}, 65536
    s_mov_b32 s{SV + 3}, 0x20000
    s_mov_b32 s{SWQ}, s10
    s_and_b32 s{SWQ + 1}, s11, 0xffff
    s_mov_b32 s{SWQ + 2}, 3670016
    s_mov_b32 s{SWQ + 3}, 0x20000
    s_mov_b32 s{SX}, s4
    s_and_b32 s{SX + 1}, s5, 0xffff
    s_mov_b32 s{SX + 2}, 896
    s_mov_b32 s{SX + 3}, 0x20000
    s_add_u32 s{SWO}, s12, s54
    s_addc_u32 s{SWO + 1}, s13, 0
    s_and_b32 s{SWO + 1}, s{SWO + 1}, 0xffff
    s_mov_b32 s{SWO + 2}, 14336
    s_mov_b32 s{SWO + 3}, 0x20000
    s_mov_b32 s{SWS}, s18
    s_and_b32 s{SWS + 1}, s19, 0xffff
    s_mov_b32 s{SWS + 2}, {WS_BYTES}
    s_mov_b32 s{SWS + 3}, 0x20000
    s_mov_b32 s{SOUT}, s14
    s_and_b32 s{SOUT + 1}, s15, 0xffff
    s_mov_b32 s{SOUT + 2}, 896
    s_mov_b32 s{SOUT + 3}, 0x20000
    s_cmp_eq_u32 s{SW}, 4
    s_cbranch_scc1 L_comm
    """)

    VKO = 4
    VVO = 12
    VT4 = 14
    a(f"""
    v_lshrrev_b32 v2, 5, v0
    v_and_b32 v3, 31, v0
    v_xor_b32 v3, v3, v2
    v_lshlrev_b32 v3, 4, v3
    v_lshl_add_u32 v{VKO}, v2, 9, v3
    """)
    for i in range(1, 8):
        a(f"v_xor_b32 v{VKO + i}, {(2 * i) << 4}, v{VKO}")
    a(f"""
    s_lshl_b32 s52, s{SW}, 14
    s_mov_b32 m0, s52
    v_lshrrev_b32 v2, 3, v0
    v_lshrrev_b32 v3, 4, v0
    v_and_b32 v3, 1, v3
    v_lshlrev_b32 v3, 1, v3
    v_and_b32 v1, 7, v0
    v_xor_b32 v3, v3, v1
    v_lshlrev_b32 v3, 4, v3
    v_lshl_add_u32 v3, v2, 9, v3
    s_lshl_b32 s53, s{SW}, 7
    v_add_u32 v{VVO}, s53, v3
    v_xor_b32 v{VVO + 1}, 64, v{VVO}
    """)
    for i in range(16):
        a(f"buffer_load_dwordx4 v{VKO + (i & 7)}, s[{SK}:{SK + 3}], m0 offen{NT} lds")
        a("s_add_u32 m0, m0, 1024")
        a("s_nop 0")
    a(f"""
    s_add_u32 s52, s52, {L_V}
    s_mov_b32 m0, s52
    s_mov_b32 s53, 0
    """)
    for i in range(16):
        a(f"buffer_load_dwordx4 v{VVO + (i & 1)}, s[{SV}:{SV + 3}], s53 offen{NT} lds")
        a("s_add_u32 m0, m0, 1024")
        a("s_add_u32 s53, s53, 4096")
    VWO = 16
    a(f"""
    s_lshl_b32 s52, s{SW}, 8
    v_lshl_add_u32 v{VT4}, v0, 2, s52
    s_mov_b32 s53, 3584
    s_mov_b32 s54, 7168
    s_mov_b32 s55, 10752
    """)
    for i in range(16):
        so = ["0", "s53", "s54", "s55"][i >> 2]
        a(f"buffer_load_dword v{VWO + i}, v{VT4}, s[{SWO}:{SWO + 3}], {so} offen offset:{(i & 3) * 896}{NT}")
    stamp()
    VQA = 15
    VKA = 32
    VN, VG = 36, 37
    a(f"""
    v_and_b32 v{VN}, 15, v0
    v_lshrrev_b32 v{VG}, 4, v0
    v_and_b32 v1, 1, v{VN}
    v_lshlrev_b32 v1, 9, v1
    v_lshl_add_u32 v1, v{VG}, 4, v1
    v_add_u32 v{VQA}, {L_Q}, v1
    v_xor_b32 v1, v{VG}, v{VN}
    v_lshlrev_b32 v1, 4, v1
    v_lshl_add_u32 v1, v{VN}, 9, v1
    s_lshl_b32 s52, s{SW}, 14
    v_add_u32 v{VKA}, s52, v1
    """)
    for t in range(1, 4):
        a(f"v_xor_b32 v{VKA + t}, {t << 6}, v{VKA}")
    a("s_barrier")
    stamp()
    VQ = 40
    VKB = 72
    VC = 136
    for t in range(8):
        a(f"ds_read_b128 v[{VQ + 4 * t}:{VQ + 4 * t + 3}], v{VQA} offset:{t * 64}")
    a("s_waitcnt vmcnt(32) lgkmcnt(0)")
    stamp()
    for blk in range(2):
        for t in range(8):
            r = VKB + blk * 32 + 4 * t
            a(f"ds_read_b128 v[{r}:{r + 3}], v{VKA + (t & 3)} offset:{blk * 8192 + (t >> 2) * 256}")
        if blk == 0:
            a("s_waitcnt lgkmcnt(0)")
    for blk in range(2):
        if blk == 1:
            a("s_waitcnt lgkmcnt(0)")
        c = VC + 4 * blk
        for t in range(8):
            r = VKB + blk * 32 + 4 * t
            cin = "0" if t == 0 else f"v[{c}:{c + 3}]"
            a(f"v_mfma_f32_16x16x32_bf16 v[{c}:{c + 3}], v[{VQ + 4 * t}:{VQ + 4 * t + 3}], v[{r}:{r + 3}], {cin}")
    a(f"""
    v_lshrrev_b32 v1, 5, v0
    v_lshlrev_b32 v1, 9, v1
    v_and_b32 v2, 31, v0
    v_lshl_add_u32 v1, v2, 2, v1
    s_lshl_b32 s52, s{SW}, 7
    s_add_u32 s52, s52, {L_S}
    v_add_u32 v1, s52, v1
    s_nop 7
    v_cndmask_b32 v2, v{VC}, v{VC + 1}, s[{MHI}:{MHI + 1}]
    v_cndmask_b32 v3, v{VC + 4}, v{VC + 5}, s[{MHI}:{MHI + 1}]
    v_cndmask_b32 v2, v2, v3, s[{MODD}:{MODD + 1}]
    ds_write_b32 v1, v2
    """)
    VSA = 38
    VVA = 144
    a(f"""
    v_and_b32 v1, 1, v{VN}
    v_lshlrev_b32 v1, 9, v1
    v_lshl_add_u32 v1, v{VG}, 5, v1
    v_add_u32 v{VSA}, {L_S}, v1
    v_lshrrev_b32 v1, 2, v{VN}
    v_and_b32 v2, 3, v{VN}
    v_lshl_add_u32 v3, v{VG}, 3, v1
    v_lshlrev_b32 v3, 7, v3
    v_lshl_add_u32 v3, v2, 3, v3
    v_lshrrev_b32 v1, 1, v1
    v_and_b32 v2, 1, v{VG}
    v_lshl_add_u32 v1, v2, 1, v1
    v_lshl_add_u32 v3, v1, 5, v3
    s_lshl_b32 s52, s{SW}, 14
    s_add_u32 s52, s52, {L_V}
    v_add_u32 v{VVA}, s52, v3
    """)
    for b in range(1, 4):
        a(f"v_xor_b32 v{VVA + b}, {b << 5}, v{VVA}")
    a("s_waitcnt lgkmcnt(0)")
    a("s_barrier")
    stamp()
    VS = 40
    VP = 72
    for j in range(4):
        for e in range(2):
            r = VS + 8 * j + 4 * e
            a(f"ds_read_b128 v[{r}:{r + 3}], v{VSA} offset:{j * 128 + e * 16}")
    a("s_waitcnt lgkmcnt(0)")
    VM, VL = 88, 89
    a(f"v_max3_f32 v{VM}, v{VS}, v{VS + 1}, v{VS + 2}")
    for i in range(3, 31, 2):
        a(f"v_max3_f32 v{VM}, v{VM}, v{VS + i}, v{VS + i + 1}")
    a(f"v_max_f32 v{VM}, v{VM}, v{VS + 31}")
    def bfly_swap(op, reg, tmp, kinds):
        for kind in kinds:
            a(f"v_mov_b32 v{tmp}, v{reg}")
            a("s_nop 1")
            a(f"v_permlane{kind}_swap_b32 v{reg}, v{tmp}")
            a("s_nop 0")
            a(f"{op} v{reg}, v{reg}, v{tmp}")
    bfly_swap("v_max_f32", VM, 1, (16, 32))
    C = 1.4426950408889634 / 16.0
    a(f"s_mov_b32 s52, {f2u(C):#x}")
    a(f"v_mul_f32 v{VM}, s52, v{VM}")
    for i in range(32):
        a(f"v_fma_f32 v{VS + i}, v{VS + i}, s52, -v{VM}")
    for i in range(32):
        a(f"v_exp_f32 v{VS + i}, v{VS + i}")
    a("s_nop 0")
    for i in range(16):
        a(f"v_cvt_pk_bf16_f32 v{VP + i}, v{VS + 2 * i}, v{VS + 2 * i + 1}")
    for i in range(16):
        a(f"v_add_f32 v{VS + i}, v{VS + i}, v{VS + 16 + i}")
    for n in (8, 4, 2, 1):
        for i in range(n):
            a(f"v_add_f32 v{VS + i}, v{VS + i}, v{VS + n + i}")
    a(f"v_mov_b32 v{VL}, v{VS}")
    bfly_swap("v_add_f32", VL, 1, (16, 32))
    stamp()
    VVB = 96
    VO = 112
    for j in range(4):
        a(f"s_waitcnt vmcnt({16 + 12 - 4 * j})")
        for b in range(4):
            for u in range(2):
                r = VVB + 4 * b + 2 * u
                a(f"ds_read_b64_tr_b16 v[{r}:{r + 1}], v{VVA + b} offset:{j * 4096 + u * 512}")
        for b in range(4):
            a(f"s_waitcnt lgkmcnt({6 - 2 * b})")
            c = VO + 4 * b
            cin = "0" if j == 0 else f"v[{c}:{c + 3}]"
            a(f"v_mfma_f32_16x16x32_bf16 v[{c}:{c + 3}], v[{VP + 4 * j}:{VP + 4 * j + 3}], v[{VVB + 4 * b}:{VVB + 4 * b + 3}], {cin}")
    stamp()
    VA = 128
    a(f"""
    s_lshl_b32 s52, s{SH}, 17
    s_lshl_b32 s53, s{SS}, 7
    s_add_u32 s52, s52, s53
    s_add_u32 s52, s52, {W_OS}
    s_lshl_b32 s53, s{SW}, 14
    s_add_u32 s52, s52, s53
    s_add_u32 s53, s52, 65536
    v_lshlrev_b32 v1, 12, v{VG}
    v_lshl_add_u32 v{VA}, v{VN}, 3, v1
    s_add_u32 s{STAG}, s{STAG}, {TAG_INC:#x}
    """)
    a("s_nop 3")
    for hd in range(2):
        a(f"v_cndmask_b32 v1, v{VO + hd}, v{VO + 4 + hd}, s[{MODD}:{MODD + 1}]")
        a(f"v_cndmask_b32 v2, v{VO + 8 + hd}, v{VO + 12 + hd}, s[{MODD}:{MODD + 1}]")
        a(f"v_cndmask_b32 v{130 + 2 * hd}, v1, v2, s[{MHI}:{MHI + 1}]")
        a(f"v_mov_b32 v{131 + 2 * hd}, s{STAG}")
    a(f"buffer_store_dwordx2 v[130:131], v{VA}, s[{SWS}:{SWS + 3}], s52 offen sc1")
    a(f"buffer_store_dwordx2 v[132:133], v{VA}, s[{SWS}:{SWS + 3}], s53 offen sc1")
    a(f"""
    s_cmp_lg_u32 s{SW}, 0
    s_cbranch_scc1 L_nostat
    s_lshl_b32 s52, s{SH}, 10
    s_lshl_b32 s53, s{SS}, 4
    s_add_u32 s52, s52, s53
    s_add_u32 s52, s52, {W_ST}
    v_lshlrev_b32 v1, 9, v0
    v_mov_b32 v136, v{VM}
    v_mov_b32 v137, s{STAG}
    v_mov_b32 v138, v{VL}
    v_mov_b32 v139, s{STAG}
    s_mov_b64 exec, 3
    buffer_store_dwordx4 v[136:139], v1, s[{SWS}:{SWS + 3}], s52 offen sc1
    s_mov_b64 exec, -1
    L_nostat:
    """)
    stamp()
    a(f"""
    s_lshl_b32 s52, s{SH}, 17
    s_lshl_b32 s53, s{SS}, 12
    s_add_u32 s52, s52, s53
    s_add_u32 s52, s52, {W_OS}
    s_lshl_b32 s53, s{SW}, 10
    s_add_u32 s52, s52, s53
    v_lshlrev_b32 v1, 4, v0
    s_lshl_b32 s53, s{SH}, 10
    s_lshr_b32 s54, s{SS}, 4
    s_lshl_b32 s54, s54, 9
    s_add_u32 s53, s53, s54
    s_add_u32 s53, s53, {W_ST}
    v_and_b32 v2, 31, v0
    v_lshlrev_b32 v2, 4, v2
    v_lshrrev_b32 v3, 3, v0
    s_lshl_b32 s54, s{SW}, 3
    v_add_u32 v3, s54, v3
    v_lshlrev_b32 v3, 4, v3
    s_mov_b32 s{SSPIN}, {SPIN}
    L_poll1:
    buffer_load_dwordx4 v[40:43], v1, s[{SWS}:{SWS + 3}], s52 offen sc1
    buffer_load_dwordx4 v[44:47], v2, s[{SWS}:{SWS + 3}], s53 offen sc1
    buffer_load_dwordx4 v[48:51], v3, s[{SWS}:{SWS + 3}], s53 offen sc1
    s_sub_u32 s{SSPIN}, s{SSPIN}, 1
    s_cbranch_scc1 L_poll1_done
    s_waitcnt vmcnt(0)
    v_cmp_eq_u32 s[54:55], s{STAG}, v41
    v_cmp_eq_u32 vcc, s{STAG}, v43
    s_and_b64 s[54:55], s[54:55], vcc
    v_cmp_eq_u32 vcc, s{STAG}, v45
    s_and_b64 s[54:55], s[54:55], vcc
    v_cmp_eq_u32 vcc, s{STAG}, v47
    s_and_b64 s[54:55], s[54:55], vcc
    v_cmp_eq_u32 vcc, s{STAG}, v49
    s_and_b64 s[54:55], s[54:55], vcc
    s_cmp_eq_u64 s[54:55], -1
    s_cbranch_scc0 L_poll1
    L_poll1_done:
    s_waitcnt vmcnt(0)
    """)
    stamp()
    def bfly_dpp16(op, reg, tmp):
        for ctl in ("quad_perm:[1,0,3,2]", "quad_perm:[2,3,0,1]", "row_half_mirror", "row_mirror"):
            a("s_nop 1")
            a(f"{op}_dpp v{reg}, v{reg}, v{reg} {ctl} row_mask:0xf bank_mask:0xf")
        bfly_swap(op, reg, tmp, (16,))
    a("v_mov_b32 v52, v44")
    bfly_dpp16("v_max_f32", 52, 1)
    a("""
    v_sub_f32 v53, v44, v52
    v_sub_f32 v54, v48, v52
    v_exp_f32 v53, v53
    v_exp_f32 v54, v54
    s_nop 0
    v_mul_f32 v53, v53, v46
    v_mul_f32 v40, v40, v54
    v_mul_f32 v42, v42, v54
    """)
    bfly_dpp16("v_add_f32", 53, 1)
    for reg in (40, 42):
        a("s_nop 1")
        a(f"v_add_f32_dpp v{reg}, v{reg}, v{reg} row_ror:8 row_mask:0xf bank_mask:0xf")
        bfly_swap("v_add_f32", reg, 1, (16, 32))
    a(f"""
    v_mov_b32 v41, v42
    s_lshl_b32 s52, s{SW}, 6
    s_add_u32 s52, s52, {L_RED}
    v_lshl_add_u32 v1, v0, 3, s52
    s_mov_b64 exec, 0xff
    ds_write_b64 v1, v[40:41]
    s_mov_b64 exec, -1
    v_rcp_f32 v53, v53
    v_and_b32 v1, 15, v0
    v_lshlrev_b32 v1, 2, v1
    v_add_u32 v1, {L_RED}, v1
    """)
    for i in range(16):
        a(f"v_lshlrev_b32 v{72 + 2 * i}, 16, v{VWO + i}")
        a(f"v_and_b32 v{73 + 2 * i}, 0xffff0000, v{VWO + i}")
    a(f"""
    s_waitcnt lgkmcnt(0)
    s_barrier
    ds_read_b32 v44, v1
    ds_read_b32 v45, v1 offset:64
    ds_read_b32 v46, v1 offset:128
    ds_read_b32 v47, v1 offset:192
    s_waitcnt lgkmcnt(0)
    v_add_f32 v44, v44, v45
    v_add_f32 v46, v46, v47
    v_add_f32 v44, v44, v46
    v_mul_f32 v44, v44, v53
    s_nop 0
    """)
    for i in range(16):
        a(f"v_readlane_b32 s{SO + i}, v44, {i}")
    a("s_nop 1")
    for i in range(16):
        for hf in range(2):
            acc = 48 + 2 * (i & 1) + hf
            src = 72 + 2 * i + hf
            if i < 2:
                a(f"v_mul_f32 v{acc}, s{SO + i}, v{src}")
            else:
                a(f"v_fmac_f32 v{acc}, s{SO + i}, v{src}")
    a(f"""
    v_add_f32 v56, v48, v50
    v_mov_b32 v57, s{STAG}
    v_add_f32 v58, v49, v51
    v_mov_b32 v59, s{STAG}
    s_lshl_b32 s52, s{SW}, 6
    v_add_u32 v1, s52, v0
    v_lshrrev_b32 v2, 3, v1
    v_lshlrev_b32 v2, 15, v2
    v_and_b32 v3, 7, v1
    v_lshl_add_u32 v2, v3, 4, v2
    s_lshl_b32 s52, s2, 7
    s_add_u32 s52, s52, {W_FS}
    v_cmp_gt_u32 vcc, 224, v1
    s_and_saveexec_b64 s[54:55], vcc
    buffer_store_dwordx4 v[56:59], v2, s[{SWS}:{SWS + 3}], s52 offen sc1
    s_mov_b64 exec, s[54:55]
    """)
    stamp()
    a(f"""
    s_cmp_ge_u32 s2, 28
    s_cbranch_scc1 L_fin
    s_lshl_b32 s52, s2, 15
    s_lshl_b32 s53, s{SW}, 13
    s_add_u32 s52, s52, s53
    s_add_u32 s52, s52, {W_FS}
    s_add_u32 s53, s52, 4096
    v_lshlrev_b32 v1, 4, v0
    s_mov_b32 s{SSPIN}, {SPIN}
    L_poll2:
    """)
    for kk in range(8):
        so = "s52" if kk < 4 else "s53"
        a(f"buffer_load_dwordx4 v[{64 + 4 * kk}:{67 + 4 * kk}], v1, s[{SWS}:{SWS + 3}], {so} offen offset:{(kk & 3) * 1024} sc1")
    a(f"""
    s_sub_u32 s{SSPIN}, s{SSPIN}, 1
    s_cbranch_scc1 L_poll2_done
    s_waitcnt vmcnt(0)
    s_mov_b64 s[54:55], -1
    """)
    for kk in range(8):
        for e in (1, 3):
            a(f"v_cmp_eq_u32 vcc, s{STAG}, v{64 + 4 * kk + e}")
            a("s_and_b64 s[54:55], s[54:55], vcc")
    a(f"""
    s_cmp_eq_u64 s[54:55], -1
    s_cbranch_scc0 L_poll2
    L_poll2_done:
    s_waitcnt vmcnt(0)
    """)
    stamp()
    for e, dst in ((0, 40), (2, 41)):
        a(f"v_add_f32 v{dst}, v{64 + e}, v{68 + e}")
        for kk in range(2, 8):
            a(f"v_add_f32 v{dst}, v{dst}, v{64 + 4 * kk + e}")
    for reg in (40, 41):
        a("s_nop 1")
        a(f"v_add_f32_dpp v{reg}, v{reg}, v{reg} row_ror:8 row_mask:0xf bank_mask:0xf")
        bfly_swap("v_add_f32", reg, 1, (16, 32))
    a(f"""
    s_lshl_b32 s52, s{SW}, 6
    s_add_u32 s52, s52, {L_RED + 256}
    v_lshl_add_u32 v1, v0, 3, s52
    s_mov_b64 exec, 0xff
    ds_write_b64 v1, v[40:41]
    s_mov_b64 exec, -1
    s_waitcnt lgkmcnt(0)
    s_barrier
    s_cmp_lg_u32 s{SW}, 0
    s_cbranch_scc1 L_fin
    v_and_b32 v1, 7, v0
    v_lshlrev_b32 v1, 3, v1
    v_add_u32 v1, {L_RED + 256}, v1
    ds_read_b64 v[40:41], v1
    ds_read_b64 v[42:43], v1 offset:64
    ds_read_b64 v[44:45], v1 offset:128
    ds_read_b64 v[46:47], v1 offset:192
    s_waitcnt lgkmcnt(0)
    v_add_f32 v40, v40, v42
    v_add_f32 v41, v41, v43
    v_add_f32 v44, v44, v46
    v_add_f32 v45, v45, v47
    v_add_f32 v40, v40, v44
    v_add_f32 v41, v41, v45
    v_cvt_pk_bf16_f32 v40, v40, v41
    s_lshl_b32 s52, s2, 5
    v_lshlrev_b32 v1, 2, v0
    s_mov_b64 exec, 0xff
    buffer_store_dword v40, v1, s[{SOUT}:{SOUT + 3}], s52 offen
    s_cmp_lg_u32 s2, 0
    s_cbranch_scc1 L_fin
    s_mov_b64 exec, 1
    v_mov_b32 v2, 0
    v_mov_b32 v3, s{STAG}
    buffer_store_dword v3, v2, s[{SWS}:{SWS + 3}], 0 offen sc1
    L_fin:
    s_mov_b64 exec, -1
    """)
    stamp()
    flush_stamps(12, 200)
    a("s_endpgm")

    nst[0] = 1
    a(f"""
    L_comm:
    v_lshlrev_b32 v1, 4, v0
    s_mov_b32 m0, {L_X}
    s_lshl_b32 s52, s{SH}, 10
    s_lshl_b32 s53, s{SS}, 5
    s_add_u32 s52, s52, s53
    buffer_load_dwordx4 v1, s[{SX}:{SX + 3}], 0 offen lds
    v_lshrrev_b32 v2, 1, v0
    v_lshlrev_b32 v2, 13, v2
    v_and_b32 v3, 1, v0
    v_lshl_add_u32 v2, v3, 4, v2
    v_add_u32 v2, s52, v2
    s_mov_b32 m0, {L_WQ}
    s_mov_b32 s53, 0
    """)
    for i in range(14):
        a(f"buffer_load_dwordx4 v2, s[{SWQ}:{SWQ + 3}], s53 offen lds")
        a("s_add_u32 m0, m0, 1024")
        a("s_add_u32 s53, s53, 262144")
    stamp()
    a(f"""
    v_and_b32 v4, 15, v0
    v_lshrrev_b32 v5, 4, v0
    v_lshlrev_b32 v6, 4, v5
    v_add_u32 v6, {L_X}, v6
    v_lshrrev_b32 v7, 2, v4
    v_lshl_add_u32 v7, v5, 3, v7
    v_lshlrev_b32 v7, 5, v7
    v_and_b32 v8, 3, v4
    v_lshl_add_u32 v7, v8, 3, v7
    v_add_u32 v7, {L_WQ}, v7
    s_waitcnt vmcnt(0) lgkmcnt(0)
    """)
    stamp()
    XA, WB, QC = 16, 72, 128
    def rd(t):
        a(f"ds_read_b128 v[{XA + 4 * t}:{XA + 4 * t + 3}], v6 offset:{t * 64}")
        for u in range(2):
            r = WB + 4 * t + 2 * u
            a(f"ds_read_b64_tr_b16 v[{r}:{r + 1}], v7 offset:{t * 1024 + u * 128}")
    for t in range(4):
        rd(t)
    for t in range(14):
        rem = min(3, 13 - t)
        a(f"s_waitcnt lgkmcnt({3 * rem})")
        cin = "0" if t == 0 else f"v[{QC}:{QC + 3}]"
        a(f"v_mfma_f32_16x16x32_bf16 v[{QC}:{QC + 3}], v[{XA + 4 * t}:{XA + 4 * t + 3}], v[{WB + 4 * t}:{WB + 4 * t + 3}], {cin}")
        if t + 4 < 14:
            rd(t + 4)
    a(f"""
    s_waitcnt lgkmcnt(0)
    s_add_u32 s{STAG}, s{STAG}, {TAG_INC:#x}
    s_lshl_b32 s52, s{SH}, 11
    s_lshl_b32 s53, s{SS}, 6
    s_add_u32 s53, s53, s52
    s_add_u32 s53, s53, {W_QS}
    s_add_u32 s52, s52, {W_QS}
    v_lshlrev_b32 v1, 2, v0
    s_nop 4
    v_mov_b32_dpp v9, v{QC} quad_perm:[1,1,3,3] row_mask:0xf bank_mask:0xf
    v_mov_b32 v11, s{STAG}
    v_cvt_pk_bf16_f32 v10, v{QC}, v9
    s_mov_b64 exec, 0x5555
    buffer_store_dwordx2 v[10:11], v1, s[{SWS}:{SWS + 3}], s53 offen sc1
    s_mov_b64 exec, -1
    """)
    stamp()
    a(f"""
    v_lshlrev_b32 v1, 5, v0
    s_mov_b32 s{SSPIN}, {SPIN}
    L_pollq:
    buffer_load_dwordx4 v[12:15], v1, s[{SWS}:{SWS + 3}], s52 offen sc1
    buffer_load_dwordx4 v[16:19], v1, s[{SWS}:{SWS + 3}], s52 offen offset:16 sc1
    s_sub_u32 s{SSPIN}, s{SSPIN}, 1
    s_cbranch_scc1 L_pollq_done
    s_waitcnt vmcnt(0)
    v_cmp_eq_u32 s[54:55], s{STAG}, v13
    v_cmp_eq_u32 vcc, s{STAG}, v15
    s_and_b64 s[54:55], s[54:55], vcc
    v_cmp_eq_u32 vcc, s{STAG}, v17
    s_and_b64 s[54:55], s[54:55], vcc
    v_cmp_eq_u32 vcc, s{STAG}, v19
    s_and_b64 s[54:55], s[54:55], vcc
    s_cmp_eq_u64 s[54:55], -1
    s_cbranch_scc0 L_pollq
    L_pollq_done:
    s_waitcnt vmcnt(0)
    v_mov_b32 v13, v14
    v_mov_b32 v14, v16
    v_mov_b32 v15, v18
    v_lshlrev_b32 v1, 4, v0
    v_add_u32 v1, {L_Q}, v1
    ds_write_b128 v1, v[12:15]
    s_waitcnt lgkmcnt(0)
    """)
    stamp()
    a("s_barrier")
    flush_stamps(12, 200)
    a("s_endpgm")
    a("L_end:")
    a("s_endpgm")
    a('.section .rodata,"a"')
    a(".p2align 6")
    out = HEADER + f"; @launch grid=(256,1,1) block=(320,1,1) lds={LDS_BYTES}\n" + a.text() + kernel_desc(k, 208, 102)
    return out

if __name__ == "__main__":
    stamps = "--stamps" in sys.argv
    path = [x for x in sys.argv[1:] if not x.startswith("--")][0]
    open(path, "w").write(gen(stamps=stamps))
```

```python
import struct, sys
from asmlib import *

def f2u(x):
    return struct.unpack("<I", struct.pack("<f", x))[0]

L_K, L_V, L_WQ, L_Q, L_S, L_FL = 0, 65536, 131072, 147456, 148480, 149504
L_WO = L_WQ
L_RED = 0
LDS_BYTES = 149760
F_PROG, F_Q, F_S = L_FL, L_FL + 16, L_FL + 32
W_QP, W_OS, W_FS, W_TS = 65536, 262144, 1310720, 4 << 20
WS_BYTES = 8 << 20
TAG_INC = 0x9E3779B1
SPIN = 200000

def gen(stamps=False, D=8, force_remote=False, warm=True, sleep=1):
    assert 5 <= D <= 20
    a = Asm()
    k = NAME + "_kernel"
    SH, SS, SW, STAG = 20, 21, 22, 23
    SK, SV, SWQ, SX, SWO, SWS, SOUT = 24, 28, 32, 36, 40, 44, 48
    MODD, MHI, MAA = 58, 60, 62
    SXCC, SLOC = 64, 65
    SP = 66
    SSPIN, SRB, SCB = 74, 75, 76
    STS = 78
    nst = [0]
    def stamp():
        if stamps:
            a(f"s_memrealtime s[{STS + 2 * nst[0]}:{STS + 2 * nst[0] + 1}]")
            nst[0] += 1
    def flush_stamps(vtmp):
        if not stamps:
            return
        a(f"""
        s_waitcnt lgkmcnt(0)
        s_lshl_b32 s52, s2, 3
        s_add_u32 s52, s52, s{SW}
        s_lshl_b32 s52, s52, 7
        s_add_u32 s52, s52, {W_TS}
        s_mov_b64 exec, 1
        """)
        for i in range(12):
            a(f"v_mov_b32 v{vtmp}, s{STS + 2 * i}")
            a(f"v_mov_b32 v{vtmp + 1}, s{STS + 2 * i + 1}")
            a(f"v_mov_b32 v{vtmp + 2}, {8 * i}")
            a(f"buffer_store_dwordx2 v[{vtmp}:{vtmp + 1}], v{vtmp + 2}, s[{SWS}:{SWS + 3}], s52 offen")
            a("s_nop 1")
        a("s_mov_b64 exec, -1")
    def lds_wait(addr_v, tmp, cmp, name):
        lb = a.label(name)
        a(f"""
        {lb}:
        ds_read_b32 v{tmp}, v{addr_v}
        s_waitcnt lgkmcnt(0)
        {cmp}
        s_cmp_eq_u64 vcc, -1
        s_cbranch_scc1 {lb}_ok
        """)
        if sleep:
            a(f"s_sleep {sleep}")
        a(f"""
        s_branch {lb}
        {lb}_ok:
        """)
    def swapb(op, reg, tmp, kinds):
        for kind in kinds:
            a(f"v_mov_b32 v{tmp}, v{reg}")
            a("s_nop 1")
            a(f"v_permlane{kind}_swap_b32 v{reg}, v{tmp}")
            a("s_nop 0")
            a(f"{op} v{reg}, v{reg}, v{tmp}")
    def bfly_p8(op, regs, tmps):
        a("s_nop 1")
        for r in regs:
            a(f"{op}_dpp v{r}, v{r}, v{r} row_ror:8 row_mask:0xf bank_mask:0xf")
        for kind in (16, 32):
            for r, t in zip(regs, tmps):
                a(f"v_mov_b32 v{t}, v{r}")
            a("s_nop 1")
            for r, t in zip(regs, tmps):
                a(f"v_permlane{kind}_swap_b32 v{r}, v{t}")
            a("s_nop 0")
            for r, t in zip(regs, tmps):
                a(f"{op} v{r}, v{r}, v{t}")

    a(f"""
    .amdgcn_target "amdgcn-amd-amdhsa--gfx950"
    .text
    .globl {k}
    .p2align 8
    .type {k},@function
    {k}:
    s_cmp_ge_u32 s2, 256
    s_cbranch_scc1 L_end
    """)
    if stamps:
        for i in range(78, 102):
            a(f"s_mov_b32 s{i}, 0")
    stamp()
    a(f"""
    s_load_dwordx16 s[4:19], s[0:1], 0
    v_lshrrev_b32 v1, 6, v0
    s_and_b32 s{SH}, s2, 7
    s_lshr_b32 s{SS}, s2, 3
    v_readfirstlane_b32 s{SW}, v1
    v_and_b32 v0, 63, v0
    s_getreg_b32 s{SXCC}, hwreg(HW_REG_XCC_ID, 0, 4)
    s_lshr_b32 s{SRB}, s{SS}, 2
    s_and_b32 s{SCB}, s{SS}, 3
    s_lshl_b32 s52, s{SH}, 25
    s_lshl_b32 s53, s{SS}, 16
    s_add_u32 s52, s52, s53
    s_add_u32 s52, s52, 31457280
    s_waitcnt lgkmcnt(0)
    s_load_dword s{STAG}, s[18:19], 0
    s_add_u32 s{SK}, s6, s52
    s_addc_u32 s{SK + 1}, s7, 0
    s_and_b32 s{SK + 1}, s{SK + 1}, 0xffff
    s_mov_b32 s{SK + 2}, 65536
    s_mov_b32 s{SK + 3}, 0x20000
    s_add_u32 s{SV}, s8, s52
    s_addc_u32 s{SV + 1}, s9, 0
    s_and_b32 s{SV + 1}, s{SV + 1}, 0xffff
    s_mov_b32 s{SV + 2}, 65536
    s_mov_b32 s{SV + 3}, 0x20000
    s_mov_b32 s{SWQ}, s10
    s_and_b32 s{SWQ + 1}, s11, 0xffff
    s_mov_b32 s{SWQ + 2}, 3670016
    s_mov_b32 s{SWQ + 3}, 0x20000
    s_mov_b32 s{SX}, s4
    s_and_b32 s{SX + 1}, s5, 0xffff
    s_mov_b32 s{SX + 2}, 896
    s_mov_b32 s{SX + 3}, 0x20000
    s_mov_b32 s{SWO}, s12
    s_and_b32 s{SWO + 1}, s13, 0xffff
    s_mov_b32 s{SWO + 2}, 3670016
    s_mov_b32 s{SWO + 3}, 0x20000
    s_mov_b32 s{SWS}, s18
    s_and_b32 s{SWS + 1}, s19, 0xffff
    s_mov_b32 s{SWS + 2}, {WS_BYTES}
    s_mov_b32 s{SWS + 3}, 0x20000
    s_mov_b32 s{SOUT}, s14
    s_and_b32 s{SOUT + 1}, s15, 0xffff
    s_mov_b32 s{SOUT + 2}, 896
    s_mov_b32 s{SOUT + 3}, 0x20000
    s_cmp_ge_u32 s{SW}, 4
    s_cbranch_scc1 L_loader
    """)

    VN, VG = 2, 3
    VPRA, VFQA, VFSA = 4, 5, 6
    XA = 8
    a(f"""
    s_mov_b32 s{MODD}, 0xffff0000
    s_mov_b32 s{MODD + 1}, 0xffff0000
    s_mov_b32 s{MHI}, 0
    s_mov_b32 s{MHI + 1}, -1
    s_mov_b32 s{MAA}, 0xaaaaaaaa
    s_mov_b32 s{MAA + 1}, 0xaaaaaaaa
    v_and_b32 v{VN}, 15, v0
    v_lshrrev_b32 v{VG}, 4, v0
    s_lshr_b32 s52, s{SS}, 3
    s_mul_i32 s52, s52, 224
    v_lshl_add_u32 v1, v{VG}, 4, s52
    buffer_load_dwordx4 v[{XA}:{XA + 3}], v1, s[{SX}:{SX + 3}], 0 offen
    buffer_load_dwordx4 v[{XA + 4}:{XA + 7}], v1, s[{SX}:{SX + 3}], 0 offen offset:64
    buffer_load_dwordx4 v[{XA + 8}:{XA + 11}], v1, s[{SX}:{SX + 3}], 0 offen offset:128
    v_lshl_add_u32 v7, v{VG}, 3, s52
    buffer_load_dwordx2 v[{XA + 12}:{XA + 13}], v7, s[{SX}:{SX + 3}], 0 offen offset:192
    v_mov_b32 v22, 0
    buffer_load_dword v42, v22, s[{SOUT}:{SOUT + 3}], 0 offen
    v_and_b32 v1, 3, v0
    v_lshlrev_b32 v1, 2, v1
    v_add_u32 v{VPRA}, {F_PROG}, v1
    v_add_u32 v{VFQA}, {F_Q}, v1
    v_add_u32 v{VFSA}, {F_S}, v1
    s_cmp_lg_u32 s{SW}, 0
    s_cbranch_scc1 L_noinit
    v_lshlrev_b32 v1, 2, v0
    v_add_u32 v1, {L_FL}, v1
    s_mov_b64 exec, 0xffff
    ds_write_b32 v1, v22
    s_mov_b64 exec, -1
    s_waitcnt lgkmcnt(0)
    L_noinit:
    s_barrier
    """)
    VWA, VWA2 = 24, 25
    a(f"""
    v_lshrrev_b32 v1, 2, v{VN}
    v_and_b32 v7, 3, v{VN}
    v_lshl_add_u32 v22, v{VG}, 3, v1
    v_lshlrev_b32 v22, 7, v22
    v_lshl_add_u32 v22, v7, 3, v22
    v_lshrrev_b32 v23, 1, v1
    v_and_b32 v26, 1, v{VG}
    v_lshl_add_u32 v26, v26, 1, v23
    v_xor_b32 v26, s{SW}, v26
    v_lshl_add_u32 v22, v26, 5, v22
    v_add_u32 v{VWA}, {L_WQ}, v22
    v_lshl_add_u32 v22, v{VG}, 2, v1
    v_lshlrev_b32 v22, 7, v22
    v_lshl_add_u32 v22, v7, 3, v22
    v_lshrrev_b32 v26, 1, v{VG}
    v_lshl_add_u32 v26, v26, 1, v23
    v_xor_b32 v26, s{SW}, v26
    v_lshl_add_u32 v22, v26, 5, v22
    v_add_u32 v{VWA2}, {L_WQ + 96 * 128}, v22
    """)
    lds_wait(VPRA, 1, "v_cmp_le_u32 vcc, 4, v1", "wq")
    stamp()
    WB = 28
    for t in range(3):
        for u in range(2):
            r = WB + 4 * t + 2 * u
            a(f"ds_read_b64_tr_b16 v[{r}:{r + 1}], v{VWA} offset:{t * 4096 + u * 512}")
    a(f"ds_read_b64_tr_b16 v[{WB + 12}:{WB + 13}], v{VWA2}")
    QC, QC2 = 44, 48
    a("s_waitcnt vmcnt(0) lgkmcnt(0)")
    a(f"v_mfma_f32_16x16x16_bf16 v[{QC2}:{QC2 + 3}], v[{XA + 12}:{XA + 13}], v[{WB + 12}:{WB + 13}], 0")
    for t in range(3):
        cin = "0" if t == 0 else f"v[{QC}:{QC + 3}]"
        a(f"v_mfma_f32_16x16x32_bf16 v[{QC}:{QC + 3}], v[{XA + 4 * t}:{XA + 4 * t + 3}], v[{WB + 4 * t}:{WB + 4 * t + 3}], {cin}")
    a(f"""
    s_add_u32 s{STAG}, s{STAG}, {TAG_INC:#x}
    s_lshl_b32 s52, s{SH}, 14
    s_add_u32 s52, s52, {W_QP}
    s_lshr_b32 s53, s{SS}, 3
    s_lshl_b32 s53, s53, 12
    s_and_b32 s54, s{SS}, 7
    s_lshl_b32 s54, s54, 9
    s_add_u32 s53, s53, s54
    s_lshl_b32 s54, s{SW}, 7
    s_add_u32 s53, s53, s54
    s_add_u32 s53, s53, s52
    v_lshlrev_b32 v1, 3, v0
    s_lshl_b32 s54, s{SW}, 10
    s_add_u32 s52, s52, s54
    s_add_u32 s55, s52, 4096
    s_add_u32 s56, s52, 8192
    s_add_u32 s57, s52, 12288
    v_add_f32 v50, v{QC}, v{QC2}
    v_and_b32 v50, 0xfffffff0, v50
    v_or_b32 v50, s{SXCC}, v50
    v_mov_b32 v51, s{STAG}
    s_mov_b64 exec, 0xffff
    buffer_store_dwordx2 v[50:51], v1, s[{SWS}:{SWS + 3}], s53 offen sc1
    s_mov_b64 exec, -1
    v_lshlrev_b32 v7, 4, v0
    s_waitcnt vmcnt(0)
    """)
    stamp()
    QG = 52
    a(f"""
    s_mov_b32 s{SSPIN}, {SPIN}
    L_pollq:
    buffer_load_dwordx4 v[{QG}:{QG + 3}], v7, s[{SWS}:{SWS + 3}], s52 offen sc1
    buffer_load_dwordx4 v[{QG + 4}:{QG + 7}], v7, s[{SWS}:{SWS + 3}], s55 offen sc1
    buffer_load_dwordx4 v[{QG + 8}:{QG + 11}], v7, s[{SWS}:{SWS + 3}], s56 offen sc1
    buffer_load_dwordx4 v[{QG + 12}:{QG + 15}], v7, s[{SWS}:{SWS + 3}], s57 offen sc1
    s_sub_u32 s{SSPIN}, s{SSPIN}, 1
    s_cbranch_scc1 L_pollq_done
    s_waitcnt vmcnt(0)
    v_cmp_eq_u32 s[68:69], s{STAG}, v{QG + 1}
    """)
    for i in range(3, 16, 2):
        a(f"v_cmp_eq_u32 vcc, s{STAG}, v{QG + i}")
        a("s_and_b64 s[68:69], s[68:69], vcc")
    a(f"""
    s_cmp_eq_u64 s[68:69], -1
    s_cbranch_scc0 L_pollq
    L_pollq_done:
    s_waitcnt vmcnt(0)
    """)
    a(f"""
    v_xor_b32 v1, v{QG}, v{QG + 2}
    v_xor_b32 v22, v{QG}, v{QG + 4}
    v_or_b32 v1, v1, v22
    """)
    for i in (6, 8, 10, 12, 14):
        a(f"v_xor_b32 v22, v{QG}, v{QG + i}")
        a("v_or_b32 v1, v1, v22")
    a(f"""
    v_xor_b32 v22, s{SXCC}, v{QG}
    v_or_b32 v1, v1, v22
    v_and_b32 v1, 15, v1
    v_cmp_eq_u32 vcc, 0, v1
    v_add_f32 v22, v{QG}, v{QG + 4}
    v_add_f32 v23, v{QG + 2}, v{QG + 6}
    v_add_f32 v26, v{QG + 8}, v{QG + 12}
    v_add_f32 v27, v{QG + 10}, v{QG + 14}
    v_add_f32 v22, v22, v26
    v_add_f32 v23, v23, v27
    v_cvt_pk_bf16_f32 v22, v22, v23
    s_cmp_eq_u64 vcc, -1
    s_cselect_b32 s54, 3, 1
    s_lshl_b32 s55, s{SW}, 8
    s_add_u32 s55, s55, {L_Q}
    v_lshl_add_u32 v1, v0, 2, s55
    ds_write_b32 v1, v22
    v_mov_b32 v23, s54
    s_lshl_b32 s55, s{SW}, 2
    s_add_u32 s55, s55, {F_Q}
    v_mov_b32 v1, s55
    s_waitcnt lgkmcnt(0)
    s_mov_b64 exec, 1
    ds_write_b32 v1, v23
    s_mov_b64 exec, -1
    """)
    VOG = 7
    a(f"""
    s_lshl_b32 s52, s{SH}, 17
    s_lshl_b32 s53, s{SRB}, 14
    s_add_u32 s52, s52, s53
    s_lshl_b32 s53, s{SW}, 12
    s_add_u32 s52, s52, s53
    s_add_u32 s77, s52, {W_OS}
    """)
    if warm:
        for kk in range(4):
            a(f"buffer_load_dwordx4 v[{QG + 4 * kk}:{QG + 4 * kk + 3}], v{VOG}, s[{SWS}:{SWS + 3}], s77 offen offset:{kk * 1024} sc1")
    VQA, VKA = 26, 28
    a(f"""
    v_and_b32 v1, 1, v{VN}
    v_lshlrev_b32 v1, 9, v1
    v_lshl_add_u32 v1, v{VG}, 4, v1
    v_add_u32 v{VQA}, {L_Q}, v1
    v_xor_b32 v1, v{VG}, v{VN}
    v_lshlrev_b32 v1, 4, v1
    v_lshl_add_u32 v1, v{VN}, 9, v1
    s_lshl_b32 s52, s{SW}, 14
    v_add_u32 v{VKA}, s52, v1
    """)
    for t in range(1, 4):
        a(f"v_xor_b32 v{VKA + t}, {t << 6}, v{VKA}")
    lds_wait(VFQA, 1, "v_cmp_ne_u32 vcc, 0, v1", "fq")
    a(f"""
    v_cmp_eq_u32 vcc, 3, v1
    s_cmp_eq_u64 vcc, -1
    s_cselect_b32 s{SLOC}, 1, 0
    """)
    if force_remote:
        a(f"s_mov_b32 s{SLOC}, 0")
    stamp()
    VQ = 72
    VKB = 104
    VC = 168
    for t in range(8):
        a(f"ds_read_b128 v[{VQ + 4 * t}:{VQ + 4 * t + 3}], v{VQA} offset:{t * 64}")
    a(f"s_lshl_b32 s52, s{SW}, 2")
    a(f"s_add_u32 s52, s52, 8")
    lds_wait(VPRA, 1, "v_cmp_le_u32 vcc, s52, v1", "k")
    for blk in range(2):
        for t in range(8):
            r = VKB + blk * 32 + 4 * t
            a(f"ds_read_b128 v[{r}:{r + 3}], v{VKA + (t & 3)} offset:{blk * 8192 + (t >> 2) * 256}")
        if blk == 0:
            a("s_waitcnt lgkmcnt(0)")
    for blk in range(2):
        if blk == 1:
            a("s_waitcnt lgkmcnt(0)")
        c = VC + 4 * blk
        for t in range(8):
            r = VKB + blk * 32 + 4 * t
            cin = "0" if t == 0 else f"v[{c}:{c + 3}]"
            a(f"v_mfma_f32_16x16x32_bf16 v[{c}:{c + 3}], v[{VQ + 4 * t}:{VQ + 4 * t + 3}], v[{r}:{r + 3}], {cin}")
    VSA, VVA = 32, 36
    a(f"""
    v_lshrrev_b32 v1, 5, v0
    v_lshlrev_b32 v1, 9, v1
    v_and_b32 v22, 31, v0
    v_lshl_add_u32 v1, v22, 2, v1
    s_lshl_b32 s52, s{SW}, 7
    s_add_u32 s52, s52, {L_S}
    v_add_u32 v1, s52, v1
    s_nop 3
    v_cndmask_b32 v22, v{VC}, v{VC + 1}, s[{MHI}:{MHI + 1}]
    v_cndmask_b32 v23, v{VC + 4}, v{VC + 5}, s[{MHI}:{MHI + 1}]
    v_cndmask_b32 v22, v22, v23, s[{MODD}:{MODD + 1}]
    ds_write_b32 v1, v22
    v_mov_b32 v23, 1
    s_lshl_b32 s55, s{SW}, 2
    s_add_u32 s55, s55, {F_S}
    v_mov_b32 v1, s55
    s_waitcnt lgkmcnt(0)
    s_mov_b64 exec, 1
    ds_write_b32 v1, v23
    s_mov_b64 exec, -1
    v_and_b32 v1, 1, v{VN}
    v_lshlrev_b32 v1, 9, v1
    v_lshl_add_u32 v1, v{VG}, 5, v1
    v_add_u32 v{VSA}, {L_S}, v1
    v_lshrrev_b32 v1, 2, v{VN}
    v_and_b32 v22, 3, v{VN}
    v_lshl_add_u32 v23, v{VG}, 3, v1
    v_lshlrev_b32 v23, 9, v23
    v_lshl_add_u32 v23, v22, 3, v23
    v_and_b32 v22, 1, v{VG}
    v_lshl_add_u32 v1, v22, 2, v1
    s_lshl_b32 s52, s{SW}, 2
    v_xor_b32 v1, s52, v1
    v_lshl_add_u32 v23, v1, 5, v23
    v_add_u32 v{VVA}, {L_V}, v23
    """)
    for b in range(1, 4):
        a(f"v_xor_b32 v{VVA + b}, {b << 5}, v{VVA}")
    stamp()
    lds_wait(VFSA, 1, "v_cmp_ne_u32 vcc, 0, v1", "fs")
    stamp()
    VS = 72
    VP = 104
    for j in range(4):
        for e in range(2):
            r = VS + 8 * j + 4 * e
            a(f"ds_read_b128 v[{r}:{r + 3}], v{VSA} offset:{j * 128 + e * 16}")
    a("s_waitcnt lgkmcnt(0)")
    VM, VL = 120, 121
    a(f"v_max3_f32 v{VM}, v{VS}, v{VS + 1}, v{VS + 2}")
    for i in range(3, 31, 2):
        a(f"v_max3_f32 v{VM}, v{VM}, v{VS + i}, v{VS + i + 1}")
    a(f"v_max_f32 v{VM}, v{VM}, v{VS + 31}")
    swapb("v_max_f32", VM, 1, (16, 32))
    C = 1.4426950408889634 / 16.0
    a(f"s_mov_b32 s52, {f2u(C):#x}")
    a(f"v_mul_f32 v{VM}, s52, v{VM}")
    for i in range(32):
        a(f"v_fma_f32 v{VS + i}, v{VS + i}, s52, -v{VM}")
    for i in range(32):
        a(f"v_exp_f32 v{VS + i}, v{VS + i}")
    a("s_nop 0")
    for i in range(16):
        a(f"v_cvt_pk_bf16_f32 v{VP + i}, v{VS + 2 * i}, v{VS + 2 * i + 1}")
    for i in range(16):
        a(f"v_add_f32 v{VS + i}, v{VS + i}, v{VS + 16 + i}")
    for n in (8, 4, 2, 1):
        for i in range(n):
            a(f"v_add_f32 v{VS + i}, v{VS + i}, v{VS + n + i}")
    a(f"v_mov_b32 v{VL}, v{VS}")
    swapb("v_add_f32", VL, 1, (16, 32))
    VOUT = 124
    a(f"""
    s_nop 1
    v_mov_b32_dpp v1, v{VM} quad_perm:[0,0,1,1] row_mask:0xf bank_mask:0xf
    v_mov_b32_dpp v22, v{VL} quad_perm:[0,0,1,3] row_mask:0xf bank_mask:0xf
    v_cndmask_b32 v{VOUT + 2}, v1, v22, s[{MAA}:{MAA + 1}]
    v_mov_b32 v{VOUT + 3}, s{STAG}
    v_lshrrev_b32 v1, 3, v0
    v_lshlrev_b32 v1, 12, v1
    v_and_b32 v22, 7, v0
    v_lshl_add_u32 v33, v22, 4, v1
    s_lshl_b32 s52, s{SH}, 17
    s_lshl_b32 s53, s{SW}, 15
    s_add_u32 s52, s52, s53
    s_lshl_b32 s53, s{SS}, 7
    s_add_u32 s52, s52, s53
    s_add_u32 s57, s52, {W_OS}
    """)
    stamp()
    VVB = 128
    VO = 144
    for j in range(4):
        lds_wait(VPRA, 1, f"v_cmp_le_u32 vcc, {24 + 4 * j}, v1", "v")
        for b in range(4):
            for u in range(2):
                r = VVB + 4 * b + 2 * u
                a(f"ds_read_b64_tr_b16 v[{r}:{r + 1}], v{VVA + b} offset:{j * 16384 + u * 2048}")
        for b in range(4):
            a(f"s_waitcnt lgkmcnt({6 - 2 * b})")
            c = VO + 4 * b
            cin = "0" if j == 0 else f"v[{c}:{c + 3}]"
            a(f"v_mfma_f32_16x16x32_bf16 v[{c}:{c + 3}], v[{VP + 4 * j}:{VP + 4 * j + 3}], v[{VVB + 4 * b}:{VVB + 4 * b + 3}], {cin}")
    a("s_nop 7")
    for hd in range(2):
        a(f"v_cndmask_b32 v1, v{VO + hd}, v{VO + 4 + hd}, s[{MODD}:{MODD + 1}]")
        a(f"v_cndmask_b32 v22, v{VO + 8 + hd}, v{VO + 12 + hd}, s[{MODD}:{MODD + 1}]")
        a(f"v_cndmask_b32 v{VOUT + hd}, v1, v22, s[{MHI}:{MHI + 1}]")
    a(f"""
    s_cmp_eq_u32 s{SLOC}, 0
    s_cbranch_scc1 L_pub_remote
    buffer_store_dwordx4 v[{VOUT}:{VOUT + 3}], v33, s[{SWS}:{SWS + 3}], s57 offen
    s_branch L_pub_done
    L_pub_remote:
    buffer_store_dwordx4 v[{VOUT}:{VOUT + 3}], v33, s[{SWS}:{SWS + 3}], s57 offen sc1
    L_pub_done:
    """)
    stamp()
    VW = 72
    a(f"""
    s_lshl_b32 s52, s{SW}, 11
    s_add_u32 s52, s52, {L_WO}
    v_lshl_add_u32 v34, v0, 2, s52
    s_mov_b32 s54, 0x05040100
    s_mov_b32 s55, 0x07060302
    """)
    lds_wait(VPRA, 1, "v_cmp_le_u32 vcc, 40, v1", "wo")
    for hd in range(2):
        for j in range(8):
            a(f"ds_read_b32 v{VW + 8 * hd + j}, v34 offset:{hd * 8192 + j * 256}")
        a("s_waitcnt lgkmcnt(0)")
    for hd in range(2):
        for i in range(4):
            lo, hi = VW + 8 * hd + 2 * i, VW + 8 * hd + 2 * i + 1
            a(f"v_perm_b32 v{88 + 8 * hd + 2 * i}, v{hi}, v{lo}, s54")
            a(f"v_perm_b32 v{89 + 8 * hd + 2 * i}, v{hi}, v{lo}, s55")
    G = 128
    a(f"""
    s_waitcnt vmcnt(0)
    s_mov_b32 s{SSPIN}, {SPIN}
    L_poll1:
    """)
    for kk in range(4):
        a(f"buffer_load_dwordx4 v[{G + 4 * kk}:{G + 4 * kk + 3}], v{VOG}, s[{SWS}:{SWS + 3}], s77 offen offset:{kk * 1024} sc1")
    a(f"""
    s_sub_u32 s{SSPIN}, s{SSPIN}, 1
    s_cbranch_scc1 L_poll1_done
    s_waitcnt vmcnt(0)
    v_cmp_eq_u32 s[52:53], s{STAG}, v{G + 3}
    """)
    for kk in range(1, 4):
        a(f"v_cmp_eq_u32 vcc, s{STAG}, v{G + 4 * kk + 3}")
        a("s_and_b64 s[52:53], s[52:53], vcc")
    a(f"""
    s_cmp_eq_u64 s[52:53], -1
    s_cbranch_scc0 L_poll1
    L_poll1_done:
    s_waitcnt vmcnt(0)
    """)
    stamp()
    MX, O0, O1, LA = 144, 145, 146, 147
    E = 148
    a(f"""
    v_max3_f32 v{MX}, v{G + 2}, v{G + 6}, v{G + 10}
    v_max_f32 v{MX}, v{MX}, v{G + 14}
    """)
    bfly_p8("v_max_f32", [MX], [1])
    for kk in range(4):
        a(f"v_sub_f32 v{E + kk}, v{G + 4 * kk + 2}, v{MX}")
    for kk in range(4):
        a(f"v_exp_f32 v{E + kk}, v{E + kk}")
    a("s_nop 1")
    for kk in range(4):
        op = "v_mul_f32_dpp" if kk == 0 else "v_fmac_f32_dpp"
        a(f"{op} v{O0}, v{E + kk}, v{G + 4 * kk} quad_perm:[0,0,0,0] row_mask:0xf bank_mask:0xf")
        a(f"{op} v{O1}, v{E + kk}, v{G + 4 * kk + 1} quad_perm:[2,2,2,2] row_mask:0xf bank_mask:0xf")
        a(f"{op} v{LA}, v{E + kk}, v{G + 4 * kk + 2} quad_perm:[0,0,2,2] row_mask:0xf bank_mask:0xf")
    bfly_p8("v_add_f32", [O0, O1, LA], [1, 22, 23])
    a(f"""
    v_rcp_f32 v{LA}, v{LA}
    s_nop 1
    v_mul_f32_dpp v{O0}, v{LA}, v{O0} quad_perm:[1,1,1,1] row_mask:0xf bank_mask:0xf
    v_mul_f32_dpp v{O1}, v{LA}, v{O1} quad_perm:[3,3,3,3] row_mask:0xf bank_mask:0xf
    s_nop 1
    v_mov_b32_dpp v1, v{O0} quad_perm:[1,1,3,3] row_mask:0xf bank_mask:0xf
    v_mov_b32_dpp v22, v{O1} quad_perm:[1,1,3,3] row_mask:0xf bank_mask:0xf
    v_cvt_pk_bf16_f32 v{O0}, v{O0}, v1
    v_cvt_pk_bf16_f32 v{O1}, v{O1}, v22
    s_nop 0
    """)
    for i in range(4):
        a(f"v_readlane_b32 s{SP + i}, v{O0}, {2 * i}")
    for i in range(4):
        a(f"v_readlane_b32 s{SP + 4 + i}, v{O1}, {2 * i}")
    a("s_nop 1")
    for hd in range(2):
        for i in range(4):
            for hf in range(2):
                acc = 152 + 2 * hd + hf
                src2 = "0" if i == 0 else f"v{acc}"
                a(f"v_dot2_f32_bf16 v{acc}, s{SP + 4 * hd + i}, v{88 + 8 * hd + 2 * i + hf}, {src2}")
    a(f"""
    s_nop 2
    v_add_f32 v156, v152, v154
    v_add_f32 v157, v153, v155
    s_lshl_b32 s52, s{SW}, 9
    s_add_u32 s52, s52, {L_RED}
    v_lshl_add_u32 v1, v0, 3, s52
    ds_write_b64 v1, v[156:157]
    s_waitcnt lgkmcnt(0)
    s_barrier
    s_cmp_lg_u32 s{SW}, 0
    s_cbranch_scc1 L_pub2_done
    v_lshlrev_b32 v1, 3, v0
    ds_read_b64 v[152:153], v1 offset:{L_RED + 512}
    ds_read_b64 v[154:155], v1 offset:{L_RED + 1024}
    ds_read_b64 v[158:159], v1 offset:{L_RED + 1536}
    v_lshrrev_b32 v1, 3, v0
    v_lshlrev_b32 v1, 13, v1
    v_and_b32 v22, 7, v0
    v_lshl_add_u32 v1, v22, 4, v1
    s_lshl_b32 s52, s{SCB}, 16
    s_lshl_b32 s53, s{SH}, 3
    s_add_u32 s53, s53, s{SRB}
    s_lshl_b32 s53, s53, 7
    s_add_u32 s52, s52, s53
    s_add_u32 s52, s52, {W_FS}
    s_cmp_eq_u32 s{SCB}, 3
    s_cselect_b32 s55, 0, -1
    s_mov_b32 s54, -1
    s_waitcnt lgkmcnt(0)
    v_add_f32 v156, v156, v152
    v_add_f32 v157, v157, v153
    v_add_f32 v154, v154, v158
    v_add_f32 v155, v155, v159
    v_add_f32 v160, v156, v154
    v_mov_b32 v161, s{STAG}
    v_add_f32 v162, v157, v155
    v_mov_b32 v163, s{STAG}
    s_mov_b64 exec, s[54:55]
    buffer_store_dwordx4 v[160:163], v1, s[{SWS}:{SWS + 3}], s52 offen sc1
    s_mov_b64 exec, -1
    s_cmp_ge_u32 s2, 28
    s_cbranch_scc1 L_fin
    s_waitcnt vmcnt(0)
    L_pub2_done:
    """)
    stamp()
    a(f"""
    s_cmp_ge_u32 s2, 28
    s_cbranch_scc1 L_fin
    s_barrier
    s_lshl_b32 s52, s2, 13
    s_lshl_b32 s53, s{SW}, 11
    s_add_u32 s52, s52, s53
    s_add_u32 s52, s52, {W_FS}
    s_mov_b32 s{SSPIN}, {SPIN}
    L_poll2:
    buffer_load_dwordx4 v[128:131], v{VOG}, s[{SWS}:{SWS + 3}], s52 offen sc1
    buffer_load_dwordx4 v[132:135], v{VOG}, s[{SWS}:{SWS + 3}], s52 offen offset:1024 sc1
    s_sub_u32 s{SSPIN}, s{SSPIN}, 1
    s_cbranch_scc1 L_poll2_done
    s_waitcnt vmcnt(0)
    v_cmp_eq_u32 s[54:55], s{STAG}, v129
    v_cmp_eq_u32 vcc, s{STAG}, v131
    s_and_b64 s[54:55], s[54:55], vcc
    v_cmp_eq_u32 vcc, s{STAG}, v133
    s_and_b64 s[54:55], s[54:55], vcc
    v_cmp_eq_u32 vcc, s{STAG}, v135
    s_and_b64 s[54:55], s[54:55], vcc
    s_cmp_eq_u64 s[54:55], -1
    s_cbranch_scc0 L_poll2
    L_poll2_done:
    s_waitcnt vmcnt(0)
    """)
    stamp()
    a("v_add_f32 v140, v128, v132")
    a("v_add_f32 v141, v130, v134")
    bfly_p8("v_add_f32", [140, 141], [1, 22])
    a(f"""
    s_lshl_b32 s52, s{SW}, 6
    s_add_u32 s52, s52, {L_RED + 4096}
    v_lshl_add_u32 v1, v0, 3, s52
    s_mov_b64 exec, 0xff
    ds_write_b64 v1, v[140:141]
    s_mov_b64 exec, -1
    s_waitcnt lgkmcnt(0)
    s_barrier
    s_cmp_lg_u32 s{SW}, 0
    s_cbranch_scc1 L_fin
    v_and_b32 v1, 7, v0
    v_lshlrev_b32 v1, 3, v1
    ds_read_b64 v[142:143], v1 offset:{L_RED + 4096 + 64}
    ds_read_b64 v[144:145], v1 offset:{L_RED + 4096 + 128}
    ds_read_b64 v[146:147], v1 offset:{L_RED + 4096 + 192}
    s_lshl_b32 s52, s2, 5
    v_lshlrev_b32 v22, 2, v0
    s_waitcnt lgkmcnt(0)
    v_add_f32 v140, v140, v142
    v_add_f32 v141, v141, v143
    v_add_f32 v144, v144, v146
    v_add_f32 v145, v145, v147
    v_add_f32 v140, v140, v144
    v_add_f32 v141, v141, v145
    v_cvt_pk_bf16_f32 v140, v140, v141
    s_mov_b64 exec, 0xff
    buffer_store_dword v140, v22, s[{SOUT}:{SOUT + 3}], s52 offen
    s_cmp_lg_u32 s2, 0
    s_cbranch_scc1 L_fin
    s_mov_b64 exec, 1
    v_mov_b32 v2, 0
    v_mov_b32 v3, s{STAG}
    buffer_store_dword v3, v2, s[{SWS}:{SWS + 3}], 0 offen sc1
    L_fin:
    s_mov_b64 exec, -1
    """)
    stamp()
    flush_stamps(200)
    a("s_endpgm")

    nst[0] = 1
    SJ, SOF = 66, 67
    VK0, VK1, VV0, VV1, VWQ, VWO, VPA, VPV, VFQ = 4, 5, 6, 7, 8, 9, 10, 11, 12
    a(f"""
    L_loader:
    s_setprio 2
    s_sub_u32 s{SJ}, s{SW}, 4
    v_lshrrev_b32 v1, 3, v0
    v_lshlrev_b32 v2, 13, v1
    v_and_b32 v3, 7, v0
    v_lshrrev_b32 v13, 4, v0
    v_and_b32 v13, 1, v13
    v_lshlrev_b32 v13, 1, v13
    v_xor_b32 v3, v3, v13
    s_and_b32 s52, s{SJ}, 1
    s_lshl_b32 s52, s52, 2
    v_xor_b32 v3, s52, v3
    v_lshl_add_u32 v{VWQ}, v3, 4, v2
    s_lshr_b32 s53, s{SS}, 3
    s_mul_i32 s53, s53, {112 * 8192}
    s_lshl_b32 s54, s{SH}, 10
    s_add_u32 s53, s53, s54
    s_and_b32 s54, s{SS}, 7
    s_lshl_b32 s54, s54, 7
    s_add_u32 s53, s53, s54
    s_lshl_b32 s54, s{SJ}, 16
    s_add_u32 s{SOF}, s53, s54
    s_lshl_b32 s56, s{SJ}, 10
    s_add_u32 s57, s56, {L_WQ}
    s_mov_b32 m0, s57
    s_nop 0
    """)
    n = [0]
    written = [0]
    NTOT = 40
    def prog(cnt):
        a(f"""
        v_mov_b32 v{VPV}, {cnt}
        s_mov_b64 exec, 1
        ds_write_b32 v{VPA}, v{VPV}
        s_mov_b64 exec, -1
        """)
        written[0] = cnt
    def throttle():
        if n[0] >= D:
            a(f"s_waitcnt vmcnt({D - 1})")
            cnt = n[0] - D + 1
            if cnt % 4 == 0:
                prog(cnt)
    for i in range(4):
        if i == 3:
            a(f"s_cmp_lt_u32 s{SJ}, 2\ns_cselect_b32 s{SOF}, s{SOF}, 0x40000000")
        throttle()
        a(f"buffer_load_dwordx4 v{VWQ}, s[{SWQ}:{SWQ + 3}], s{SOF} offen nt lds")
        n[0] += 1
        if i < 3:
            a(f"s_add_u32 m0, m0, 4096\ns_add_u32 s{SOF}, s{SOF}, 262144")
    a(f"""
    v_lshrrev_b32 v1, 5, v0
    v_and_b32 v2, 31, v0
    v_xor_b32 v3, v2, v1
    s_lshl_b32 s52, s{SJ}, 1
    v_xor_b32 v3, s52, v3
    v_lshlrev_b32 v3, 4, v3
    v_lshl_add_u32 v{VK0}, v1, 9, v3
    v_xor_b32 v{VK1}, 128, v{VK0}
    v_lshlrev_b32 v3, 1, v1
    v_xor_b32 v3, v3, v2
    s_and_b32 s52, s{SJ}, 1
    s_lshl_b32 s52, s52, 2
    v_xor_b32 v3, s52, v3
    v_lshlrev_b32 v3, 4, v3
    v_lshl_add_u32 v{VV0}, v1, 9, v3
    s_mov_b32 m0, s56
    v_xor_b32 v{VV1}, 128, v{VV0}
    """)
    first = True
    for i in range(16):
        throttle()
        a(f"buffer_load_dwordx4 v{VK0 + (i & 1)}, s[{SK}:{SK + 3}], m0 offen nt lds")
        n[0] += 1
        a("s_add_u32 m0, m0, 4096")
        if n[0] == D:
            a(f"""
            v_lshrrev_b32 v1, 4, v0
            v_mul_u32_u24 v1, 896, v1
            v_and_b32 v2, 15, v0
            v_lshl_add_u32 v{VWO}, v2, 4, v1
            v_cmp_le_u32 vcc, 8, v2
            s_cmp_eq_u32 s{SCB}, 3
            s_cselect_b64 s[52:53], vcc, 0
            v_mov_b32 v1, 0x40000000
            v_cndmask_b32 v{VWO}, v{VWO}, v1, s[52:53]
            s_lshl_b32 s52, s{SJ}, 2
            s_add_u32 s52, s52, {F_PROG}
            v_mov_b32 v{VPA}, s52
            v_and_b32 v1, 3, v0
            v_lshlrev_b32 v1, 2, v1
            v_add_u32 v{VFQ}, {F_Q}, v1
            s_barrier
            """)
            stamp()
        else:
            a("s_nop 0")
    a(f"s_add_u32 m0, s56, {L_V}\ns_mov_b32 s{SOF}, s56")
    for i in range(16):
        throttle()
        a(f"buffer_load_dwordx4 v{VV0 + (i & 1)}, s[{SV}:{SV + 3}], s{SOF} offen nt lds")
        n[0] += 1
        a(f"s_add_u32 m0, m0, 4096\ns_add_u32 s{SOF}, s{SOF}, 4096")
    stamp()
    a(f"""
    s_lshl_b32 s52, s{SH}, 9
    s_lshl_b32 s53, s{SRB}, 5
    s_add_u32 s52, s52, s53
    s_lshl_b32 s53, s{SJ}, 2
    s_add_u32 s52, s52, s53
    s_mul_i32 s52, s52, 896
    s_lshl_b32 s53, s{SCB}, 8
    s_add_u32 s{SOF}, s52, s53
    s_add_u32 m0, s56, {L_WO}
    """)
    lds_wait(VFQ, 1, "v_cmp_ne_u32 vcc, 0, v1", "lfq")
    for i in range(4):
        throttle()
        a(f"buffer_load_dwordx4 v{VWO}, s[{SWO}:{SWO + 3}], s{SOF} offen nt lds")
        n[0] += 1
        if i < 3:
            step = 16 * 896 if i != 1 else 256 * 896 - 16 * 896
            a(f"s_add_u32 m0, m0, 4096\ns_add_u32 s{SOF}, s{SOF}, {step}")
    stamp()
    thr = written[0] + 4
    while thr <= NTOT:
        a(f"s_waitcnt vmcnt({NTOT - thr})")
        prog(thr)
        thr += 4
    stamp()
    flush_stamps(20)
    a("s_endpgm")
    a("L_end:")
    a("s_endpgm")
    a('.section .rodata,"a"')
    a(".p2align 6")
    out = HEADER + f"; @launch grid=(256,1,1) block=(512,1,1) lds={LDS_BYTES}\n" + a.text() + kernel_desc(k, 208, 102)
    return out

if __name__ == "__main__":
    kw = {}
    for x in sys.argv[2:]:
        key, val = x.lstrip("-").split("=") if "=" in x else (x.lstrip("-"), "1")
        kw[key] = int(val)
    open(sys.argv[1], "w").write(gen(**kw))
```

```python
import struct, sys
from asmlib import *

def f2u(x):
    return struct.unpack("<I", struct.pack("<f", x))[0]

L_K, L_V, L_WQ, L_Q, L_S, L_FL = 0, 65536, 131072, 147456, 148480, 149504
L_WO = L_WQ
L_RED = 0
LDS_BYTES = 149760
F_PROG, F_Q, F_S = L_FL, L_FL + 16, L_FL + 32
W_QP, W_OS, W_FS, W_TS = 65536, 262144, 1310720, 4 << 20
WS_BYTES = 8 << 20
TAG_INC = 0x9E3779B1
SPIN = 200000

def gen(stamps=False, D=8, force_remote=False, warm=True, sleep=1, dbg=-1):
    assert 5 <= D <= 20
    a = Asm()
    k = NAME + "_kernel"
    SH, SS, SW, STAG = 20, 21, 22, 23
    SK, SV, SWQ, SX, SWO, SWS, SOUT = 24, 28, 32, 36, 40, 44, 48
    MODD, MHI, MAA = 58, 60, 62
    SXCC, SLOC = 64, 65
    SP = 66
    SSPIN, SRB, SCB = 74, 75, 76
    STS = 78
    nst = [0]
    def stamp():
        if stamps:
            a(f"s_memrealtime s[{STS + 2 * nst[0]}:{STS + 2 * nst[0] + 1}]")
            nst[0] += 1
    def flush_stamps(vtmp, base=0, cnt=12, wave=0):
        if not stamps:
            return
        if dbg >= 0:
            lb = a.label("dbg")
            a(f"""
            s_waitcnt lgkmcnt(0)
            s_cmp_lg_u32 s2, {dbg}
            s_cbranch_scc1 {lb}
            s_cmp_lg_u32 s{SW}, {wave}
            s_cbranch_scc1 {lb}
            s_mov_b32 s52, s16
            s_and_b32 s53, s17, 0xffff
            s_mov_b32 s54, 256
            s_mov_b32 s55, 0x20000
            s_mov_b64 exec, 1
            """)
            for i in range(cnt):
                a(f"s_sub_u32 s56, s{STS + 2 * (i + 1)}, s{STS}")
                a(f"v_mov_b32 v{vtmp}, s56")
                a(f"v_mov_b32 v{vtmp + 2}, {4 * (base + i)}")
                a(f"buffer_store_dword v{vtmp}, v{vtmp + 2}, s[52:55], 0 offen")
                a("s_nop 1")
            a(f"{lb}:")
            a("s_mov_b64 exec, -1")
            return
        a(f"""
        s_waitcnt lgkmcnt(0)
        s_lshl_b32 s52, s2, 3
        s_add_u32 s52, s52, s{SW}
        s_lshl_b32 s52, s52, 7
        s_add_u32 s52, s52, {W_TS}
        s_mov_b64 exec, 1
        """)
        for i in range(12):
            a(f"v_mov_b32 v{vtmp}, s{STS + 2 * i}")
            a(f"v_mov_b32 v{vtmp + 1}, s{STS + 2 * i + 1}")
            a(f"v_mov_b32 v{vtmp + 2}, {8 * i}")
            a(f"buffer_store_dwordx2 v[{vtmp}:{vtmp + 1}], v{vtmp + 2}, s[{SWS}:{SWS + 3}], s52 offen")
            a("s_nop 1")
        a("s_mov_b64 exec, -1")
    def lds_wait(addr_v, tmp, cmp, name):
        lb = a.label(name)
        a(f"""
        {lb}:
        ds_read_b32 v{tmp}, v{addr_v}
        s_waitcnt lgkmcnt(0)
        {cmp}
        s_cmp_eq_u64 vcc, -1
        s_cbranch_scc1 {lb}_ok
        """)
        if sleep:
            a(f"s_sleep {sleep}")
        a(f"""
        s_branch {lb}
        {lb}_ok:
        """)
    def swapb(op, reg, tmp, kinds):
        for kind in kinds:
            a(f"v_mov_b32 v{tmp}, v{reg}")
            a("s_nop 1")
            a(f"v_permlane{kind}_swap_b32 v{reg}, v{tmp}")
            a("s_nop 0")
            a(f"{op} v{reg}, v{reg}, v{tmp}")
    def bfly_p8(op, regs, tmps):
        a("s_nop 1")
        for r in regs:
            a(f"{op}_dpp v{r}, v{r}, v{r} row_ror:8 row_mask:0xf bank_mask:0xf")
        for kind in (16, 32):
            for r, t in zip(regs, tmps):
                a(f"v_mov_b32 v{t}, v{r}")
            a("s_nop 1")
            for r, t in zip(regs, tmps):
                a(f"v_permlane{kind}_swap_b32 v{r}, v{t}")
            a("s_nop 0")
            for r, t in zip(regs, tmps):
                a(f"{op} v{r}, v{r}, v{t}")

    a(f"""
    .amdgcn_target "amdgcn-amd-amdhsa--gfx950"
    .text
    .globl {k}
    .p2align 8
    .type {k},@function
    {k}:
    s_cmp_ge_u32 s2, 256
    s_cbranch_scc1 L_end
    """)
    if stamps:
        for i in range(78, 102):
            a(f"s_mov_b32 s{i}, 0")
    stamp()
    a(f"""
    s_load_dwordx16 s[4:19], s[0:1], 0
    v_lshrrev_b32 v1, 6, v0
    s_and_b32 s{SH}, s2, 7
    s_lshr_b32 s{SS}, s2, 3
    v_readfirstlane_b32 s{SW}, v1
    v_and_b32 v0, 63, v0
    s_getreg_b32 s{SXCC}, hwreg(HW_REG_XCC_ID, 0, 4)
    s_lshr_b32 s{SRB}, s{SS}, 2
    s_and_b32 s{SCB}, s{SS}, 3
    s_lshl_b32 s52, s{SH}, 25
    s_lshl_b32 s53, s{SS}, 16
    s_add_u32 s52, s52, s53
    s_add_u32 s52, s52, 31457280
    s_waitcnt lgkmcnt(0)
    s_load_dword s{STAG}, s[18:19], 0
    s_add_u32 s{SK}, s6, s52
    s_addc_u32 s{SK + 1}, s7, 0
    s_and_b32 s{SK + 1}, s{SK + 1}, 0xffff
    s_mov_b32 s{SK + 2}, 65536
    s_mov_b32 s{SK + 3}, 0x20000
    s_add_u32 s{SV}, s8, s52
    s_addc_u32 s{SV + 1}, s9, 0
    s_and_b32 s{SV + 1}, s{SV + 1}, 0xffff
    s_mov_b32 s{SV + 2}, 65536
    s_mov_b32 s{SV + 3}, 0x20000
    s_mov_b32 s{SWQ}, s10
    s_and_b32 s{SWQ + 1}, s11, 0xffff
    s_mov_b32 s{SWQ + 2}, 3670016
    s_mov_b32 s{SWQ + 3}, 0x20000
    s_mov_b32 s{SX}, s4
    s_and_b32 s{SX + 1}, s5, 0xffff
    s_mov_b32 s{SX + 2}, 896
    s_mov_b32 s{SX + 3}, 0x20000
    s_mov_b32 s{SWO}, s12
    s_and_b32 s{SWO + 1}, s13, 0xffff
    s_mov_b32 s{SWO + 2}, 3670016
    s_mov_b32 s{SWO + 3}, 0x20000
    s_mov_b32 s{SWS}, s18
    s_and_b32 s{SWS + 1}, s19, 0xffff
    s_mov_b32 s{SWS + 2}, {WS_BYTES}
    s_mov_b32 s{SWS + 3}, 0x20000
    s_mov_b32 s{SOUT}, s14
    s_and_b32 s{SOUT + 1}, s15, 0xffff
    s_mov_b32 s{SOUT + 2}, 896
    s_mov_b32 s{SOUT + 3}, 0x20000
    s_cmp_ge_u32 s{SW}, 4
    s_cbranch_scc1 L_loader
    """)

    VN, VG = 2, 3
    VPRA, VFQA, VFSA = 4, 5, 6
    XA = 8
    a(f"""
    s_mov_b32 s{MODD}, 0xffff0000
    s_mov_b32 s{MODD + 1}, 0xffff0000
    s_mov_b32 s{MHI}, 0
    s_mov_b32 s{MHI + 1}, -1
    s_mov_b32 s{MAA}, 0xaaaaaaaa
    s_mov_b32 s{MAA + 1}, 0xaaaaaaaa
    v_and_b32 v{VN}, 15, v0
    v_lshrrev_b32 v{VG}, 4, v0
    s_lshr_b32 s52, s{SS}, 3
    s_mul_i32 s52, s52, 224
    v_lshl_add_u32 v1, v{VG}, 4, s52
    buffer_load_dwordx4 v[{XA}:{XA + 3}], v1, s[{SX}:{SX + 3}], 0 offen
    buffer_load_dwordx4 v[{XA + 4}:{XA + 7}], v1, s[{SX}:{SX + 3}], 0 offen offset:64
    buffer_load_dwordx4 v[{XA + 8}:{XA + 11}], v1, s[{SX}:{SX + 3}], 0 offen offset:128
    v_lshl_add_u32 v7, v{VG}, 3, s52
    buffer_load_dwordx2 v[{XA + 12}:{XA + 13}], v7, s[{SX}:{SX + 3}], 0 offen offset:192
    v_mov_b32 v22, 0
    buffer_load_dword v42, v22, s[{SOUT}:{SOUT + 3}], 0 offen
    v_and_b32 v1, 3, v0
    v_lshlrev_b32 v1, 2, v1
    v_add_u32 v{VPRA}, {F_PROG}, v1
    v_add_u32 v{VFQA}, {F_Q}, v1
    v_add_u32 v{VFSA}, {F_S}, v1
    s_cmp_lg_u32 s{SW}, 0
    s_cbranch_scc1 L_noinit
    v_lshlrev_b32 v1, 2, v0
    v_add_u32 v1, {L_FL}, v1
    s_mov_b64 exec, 0xffff
    ds_write_b32 v1, v22
    s_mov_b64 exec, -1
    s_waitcnt lgkmcnt(0)
    L_noinit:
    s_barrier
    """)
    VWA, VWA2 = 24, 25
    a(f"""
    v_lshrrev_b32 v1, 2, v{VN}
    v_and_b32 v7, 3, v{VN}
    v_lshl_add_u32 v22, v{VG}, 3, v1
    v_lshlrev_b32 v22, 7, v22
    v_lshl_add_u32 v22, v7, 3, v22
    v_lshrrev_b32 v23, 1, v1
    v_and_b32 v26, 1, v{VG}
    v_lshl_add_u32 v26, v26, 1, v23
    v_xor_b32 v26, s{SW}, v26
    v_lshl_add_u32 v22, v26, 5, v22
    v_add_u32 v{VWA}, {L_WQ}, v22
    v_lshl_add_u32 v22, v{VG}, 2, v1
    v_lshlrev_b32 v22, 7, v22
    v_lshl_add_u32 v22, v7, 3, v22
    v_lshrrev_b32 v26, 1, v{VG}
    v_lshl_add_u32 v26, v26, 1, v23
    v_xor_b32 v26, s{SW}, v26
    v_lshl_add_u32 v22, v26, 5, v22
    v_add_u32 v{VWA2}, {L_WQ + 96 * 128}, v22
    """)
    lds_wait(VPRA, 1, "v_cmp_le_u32 vcc, 4, v1", "wq")
    stamp()
    WB = 28
    for t in range(3):
        for u in range(2):
            r = WB + 4 * t + 2 * u
            a(f"ds_read_b64_tr_b16 v[{r}:{r + 1}], v{VWA} offset:{t * 4096 + u * 512}")
    a(f"ds_read_b64_tr_b16 v[{WB + 12}:{WB + 13}], v{VWA2}")
    QC, QC2 = 44, 48
    a("s_waitcnt vmcnt(0) lgkmcnt(0)")
    a(f"v_mfma_f32_16x16x16_bf16 v[{QC2}:{QC2 + 3}], v[{XA + 12}:{XA + 13}], v[{WB + 12}:{WB + 13}], 0")
    for t in range(3):
        cin = "0" if t == 0 else f"v[{QC}:{QC + 3}]"
        a(f"v_mfma_f32_16x16x32_bf16 v[{QC}:{QC + 3}], v[{XA + 4 * t}:{XA + 4 * t + 3}], v[{WB + 4 * t}:{WB + 4 * t + 3}], {cin}")
    a(f"""
    s_add_u32 s{STAG}, s{STAG}, {TAG_INC:#x}
    s_lshl_b32 s52, s{SH}, 14
    s_add_u32 s52, s52, {W_QP}
    s_lshr_b32 s53, s{SS}, 3
    s_lshl_b32 s53, s53, 12
    s_and_b32 s54, s{SS}, 7
    s_lshl_b32 s54, s54, 9
    s_add_u32 s53, s53, s54
    s_lshl_b32 s54, s{SW}, 7
    s_add_u32 s53, s53, s54
    s_add_u32 s53, s53, s52
    v_lshlrev_b32 v1, 3, v0
    s_lshl_b32 s54, s{SW}, 10
    s_add_u32 s52, s52, s54
    s_add_u32 s55, s52, 4096
    s_add_u32 s56, s52, 8192
    s_add_u32 s57, s52, 12288
    v_add_f32 v50, v{QC}, v{QC2}
    v_and_b32 v50, 0xfffffff0, v50
    v_or_b32 v50, s{SXCC}, v50
    v_mov_b32 v51, s{STAG}
    s_mov_b64 exec, 0xffff
    buffer_store_dwordx2 v[50:51], v1, s[{SWS}:{SWS + 3}], s53 offen sc1
    s_mov_b64 exec, -1
    v_lshlrev_b32 v7, 4, v0
    s_waitcnt vmcnt(0)
    """)
    stamp()
    QG = 52
    a(f"""
    s_mov_b32 s{SSPIN}, {SPIN}
    L_pollq:
    buffer_load_dwordx4 v[{QG}:{QG + 3}], v7, s[{SWS}:{SWS + 3}], s52 offen sc1
    buffer_load_dwordx4 v[{QG + 4}:{QG + 7}], v7, s[{SWS}:{SWS + 3}], s55 offen sc1
    buffer_load_dwordx4 v[{QG + 8}:{QG + 11}], v7, s[{SWS}:{SWS + 3}], s56 offen sc1
    buffer_load_dwordx4 v[{QG + 12}:{QG + 15}], v7, s[{SWS}:{SWS + 3}], s57 offen sc1
    s_sub_u32 s{SSPIN}, s{SSPIN}, 1
    s_cbranch_scc1 L_pollq_done
    s_waitcnt vmcnt(0)
    v_cmp_eq_u32 s[68:69], s{STAG}, v{QG + 1}
    """)
    for i in range(3, 16, 2):
        a(f"v_cmp_eq_u32 vcc, s{STAG}, v{QG + i}")
        a("s_and_b64 s[68:69], s[68:69], vcc")
    a(f"""
    s_cmp_eq_u64 s[68:69], -1
    s_cbranch_scc0 L_pollq
    L_pollq_done:
    s_waitcnt vmcnt(0)
    """)
    a(f"""
    v_xor_b32 v1, v{QG}, v{QG + 2}
    v_xor_b32 v22, v{QG}, v{QG + 4}
    v_or_b32 v1, v1, v22
    """)
    for i in (6, 8, 10, 12, 14):
        a(f"v_xor_b32 v22, v{QG}, v{QG + i}")
        a("v_or_b32 v1, v1, v22")
    a(f"""
    v_xor_b32 v22, s{SXCC}, v{QG}
    v_or_b32 v1, v1, v22
    v_and_b32 v1, 15, v1
    v_cmp_eq_u32 vcc, 0, v1
    v_add_f32 v22, v{QG}, v{QG + 4}
    v_add_f32 v23, v{QG + 2}, v{QG + 6}
    v_add_f32 v26, v{QG + 8}, v{QG + 12}
    v_add_f32 v27, v{QG + 10}, v{QG + 14}
    v_add_f32 v22, v22, v26
    v_add_f32 v23, v23, v27
    v_cvt_pk_bf16_f32 v22, v22, v23
    s_cmp_eq_u64 vcc, -1
    s_cselect_b32 s54, 3, 1
    s_lshl_b32 s55, s{SW}, 8
    s_add_u32 s55, s55, {L_Q}
    v_lshl_add_u32 v1, v0, 2, s55
    ds_write_b32 v1, v22
    v_mov_b32 v23, s54
    s_lshl_b32 s55, s{SW}, 2
    s_add_u32 s55, s55, {F_Q}
    v_mov_b32 v1, s55
    s_waitcnt lgkmcnt(0)
    s_mov_b64 exec, 1
    ds_write_b32 v1, v23
    s_mov_b64 exec, -1
    """)
    VOG = 7
    a(f"""
    s_lshl_b32 s52, s{SH}, 17
    s_lshl_b32 s53, s{SRB}, 14
    s_add_u32 s52, s52, s53
    s_lshl_b32 s53, s{SW}, 12
    s_add_u32 s52, s52, s53
    s_add_u32 s77, s52, {W_OS}
    """)
    if warm:
        for kk in range(4):
            a(f"buffer_load_dwordx4 v[{QG + 4 * kk}:{QG + 4 * kk + 3}], v{VOG}, s[{SWS}:{SWS + 3}], s77 offen offset:{kk * 1024} sc1")
    VQA, VKA = 26, 28
    a(f"""
    v_and_b32 v1, 1, v{VN}
    v_lshlrev_b32 v1, 9, v1
    v_lshl_add_u32 v1, v{VG}, 4, v1
    v_add_u32 v{VQA}, {L_Q}, v1
    v_xor_b32 v1, v{VG}, v{VN}
    v_lshlrev_b32 v1, 4, v1
    v_lshl_add_u32 v1, v{VN}, 9, v1
    s_lshl_b32 s52, s{SW}, 14
    v_add_u32 v{VKA}, s52, v1
    """)
    for t in range(1, 4):
        a(f"v_xor_b32 v{VKA + t}, {t << 6}, v{VKA}")
    lds_wait(VFQA, 1, "v_cmp_ne_u32 vcc, 0, v1", "fq")
    a(f"""
    v_cmp_eq_u32 vcc, 3, v1
    s_cmp_eq_u64 vcc, -1
    s_cselect_b32 s{SLOC}, 1, 0
    """)
    if force_remote:
        a(f"s_mov_b32 s{SLOC}, 0")
    stamp()
    VQ = 72
    VKB = 104
    VC = 168
    for t in range(8):
        a(f"ds_read_b128 v[{VQ + 4 * t}:{VQ + 4 * t + 3}], v{VQA} offset:{t * 64}")
    a(f"s_lshl_b32 s52, s{SW}, 2")
    a(f"s_add_u32 s52, s52, 8")
    lds_wait(VPRA, 1, "v_cmp_le_u32 vcc, s52, v1", "k")
    for blk in range(2):
        for t in range(8):
            r = VKB + blk * 32 + 4 * t
            a(f"ds_read_b128 v[{r}:{r + 3}], v{VKA + (t & 3)} offset:{blk * 8192 + (t >> 2) * 256}")
        if blk == 0:
            a("s_waitcnt lgkmcnt(0)")
    for blk in range(2):
        if blk == 1:
            a("s_waitcnt lgkmcnt(0)")
        c = VC + 4 * blk
        for t in range(8):
            r = VKB + blk * 32 + 4 * t
            cin = "0" if t == 0 else f"v[{c}:{c + 3}]"
            a(f"v_mfma_f32_16x16x32_bf16 v[{c}:{c + 3}], v[{VQ + 4 * t}:{VQ + 4 * t + 3}], v[{r}:{r + 3}], {cin}")
    VSA, VVA = 32, 36
    a(f"""
    v_lshrrev_b32 v1, 5, v0
    v_lshlrev_b32 v1, 9, v1
    v_and_b32 v22, 31, v0
    v_lshl_add_u32 v1, v22, 2, v1
    s_lshl_b32 s52, s{SW}, 7
    s_add_u32 s52, s52, {L_S}
    v_add_u32 v1, s52, v1
    s_nop 3
    v_cndmask_b32 v22, v{VC}, v{VC + 1}, s[{MHI}:{MHI + 1}]
    v_cndmask_b32 v23, v{VC + 4}, v{VC + 5}, s[{MHI}:{MHI + 1}]
    v_cndmask_b32 v22, v22, v23, s[{MODD}:{MODD + 1}]
    ds_write_b32 v1, v22
    v_mov_b32 v23, 1
    s_lshl_b32 s55, s{SW}, 2
    s_add_u32 s55, s55, {F_S}
    v_mov_b32 v1, s55
    s_waitcnt lgkmcnt(0)
    s_mov_b64 exec, 1
    ds_write_b32 v1, v23
    s_mov_b64 exec, -1
    v_and_b32 v1, 1, v{VN}
    v_lshlrev_b32 v1, 9, v1
    v_lshl_add_u32 v1, v{VG}, 5, v1
    v_add_u32 v{VSA}, {L_S}, v1
    v_lshrrev_b32 v1, 2, v{VN}
    v_and_b32 v22, 3, v{VN}
    v_lshl_add_u32 v23, v{VG}, 3, v1
    v_lshlrev_b32 v23, 9, v23
    v_lshl_add_u32 v23, v22, 3, v23
    v_and_b32 v22, 1, v{VG}
    v_lshl_add_u32 v1, v22, 2, v1
    s_lshl_b32 s52, s{SW}, 2
    v_xor_b32 v1, s52, v1
    v_lshl_add_u32 v23, v1, 5, v23
    v_add_u32 v{VVA}, {L_V}, v23
    """)
    for b in range(1, 4):
        a(f"v_xor_b32 v{VVA + b}, {b << 5}, v{VVA}")
    stamp()
    lds_wait(VFSA, 1, "v_cmp_ne_u32 vcc, 0, v1", "fs")
    stamp()
    VS = 72
    VP = 104
    for j in range(4):
        for e in range(2):
            r = VS + 8 * j + 4 * e
            a(f"ds_read_b128 v[{r}:{r + 3}], v{VSA} offset:{j * 128 + e * 16}")
    a("s_waitcnt lgkmcnt(0)")
    VM, VL = 120, 121
    a(f"v_max3_f32 v{VM}, v{VS}, v{VS + 1}, v{VS + 2}")
    for i in range(3, 31, 2):
        a(f"v_max3_f32 v{VM}, v{VM}, v{VS + i}, v{VS + i + 1}")
    a(f"v_max_f32 v{VM}, v{VM}, v{VS + 31}")
    swapb("v_max_f32", VM, 1, (16, 32))
    C = 1.4426950408889634 / 16.0
    a(f"s_mov_b32 s52, {f2u(C):#x}")
    a(f"v_mul_f32 v{VM}, s52, v{VM}")
    for i in range(32):
        a(f"v_fma_f32 v{VS + i}, v{VS + i}, s52, -v{VM}")
    for i in range(32):
        a(f"v_exp_f32 v{VS + i}, v{VS + i}")
    a("s_nop 0")
    for i in range(16):
        a(f"v_cvt_pk_bf16_f32 v{VP + i}, v{VS + 2 * i}, v{VS + 2 * i + 1}")
    for i in range(16):
        a(f"v_add_f32 v{VS + i}, v{VS + i}, v{VS + 16 + i}")
    for n in (8, 4, 2, 1):
        for i in range(n):
            a(f"v_add_f32 v{VS + i}, v{VS + i}, v{VS + n + i}")
    a(f"v_mov_b32 v{VL}, v{VS}")
    swapb("v_add_f32", VL, 1, (16, 32))
    VOUT = 124
    a(f"""
    s_nop 1
    v_mov_b32_dpp v1, v{VM} quad_perm:[0,0,1,1] row_mask:0xf bank_mask:0xf
    v_mov_b32_dpp v22, v{VL} quad_perm:[0,0,1,3] row_mask:0xf bank_mask:0xf
    v_cndmask_b32 v{VOUT + 2}, v1, v22, s[{MAA}:{MAA + 1}]
    v_mov_b32 v{VOUT + 3}, s{STAG}
    v_lshrrev_b32 v1, 3, v0
    v_lshlrev_b32 v1, 12, v1
    v_and_b32 v22, 7, v0
    v_lshl_add_u32 v33, v22, 4, v1
    s_lshl_b32 s52, s{SH}, 17
    s_lshl_b32 s53, s{SW}, 15
    s_add_u32 s52, s52, s53
    s_lshl_b32 s53, s{SS}, 7
    s_add_u32 s52, s52, s53
    s_add_u32 s57, s52, {W_OS}
    """)
    stamp()
    VVB = 128
    VO = 144
    for j in range(4):
        lds_wait(VPRA, 1, f"v_cmp_le_u32 vcc, {24 + 4 * j}, v1", "v")
        for b in range(4):
            for u in range(2):
                r = VVB + 4 * b + 2 * u
                a(f"ds_read_b64_tr_b16 v[{r}:{r + 1}], v{VVA + b} offset:{j * 16384 + u * 2048}")
        for b in range(4):
            a(f"s_waitcnt lgkmcnt({6 - 2 * b})")
            c = VO + 4 * b
            cin = "0" if j == 0 else f"v[{c}:{c + 3}]"
            a(f"v_mfma_f32_16x16x32_bf16 v[{c}:{c + 3}], v[{VP + 4 * j}:{VP + 4 * j + 3}], v[{VVB + 4 * b}:{VVB + 4 * b + 3}], {cin}")
    a("s_nop 7")
    for hd in range(2):
        a(f"v_cndmask_b32 v1, v{VO + hd}, v{VO + 4 + hd}, s[{MODD}:{MODD + 1}]")
        a(f"v_cndmask_b32 v22, v{VO + 8 + hd}, v{VO + 12 + hd}, s[{MODD}:{MODD + 1}]")
        a(f"v_cndmask_b32 v{VOUT + hd}, v1, v22, s[{MHI}:{MHI + 1}]")
    a(f"""
    s_cmp_eq_u32 s{SLOC}, 0
    s_cbranch_scc1 L_pub_remote
    buffer_store_dwordx4 v[{VOUT}:{VOUT + 3}], v33, s[{SWS}:{SWS + 3}], s57 offen
    s_branch L_pub_done
    L_pub_remote:
    buffer_store_dwordx4 v[{VOUT}:{VOUT + 3}], v33, s[{SWS}:{SWS + 3}], s57 offen sc1
    L_pub_done:
    """)
    stamp()
    VW = 72
    a(f"""
    s_lshl_b32 s52, s{SW}, 11
    s_add_u32 s52, s52, {L_WO}
    v_lshl_add_u32 v34, v0, 2, s52
    s_mov_b32 s54, 0x05040100
    s_mov_b32 s55, 0x07060302
    """)
    lds_wait(VPRA, 1, "v_cmp_le_u32 vcc, 40, v1", "wo")
    for hd in range(2):
        for j in range(8):
            a(f"ds_read_b32 v{VW + 8 * hd + j}, v34 offset:{hd * 8192 + j * 256}")
        a("s_waitcnt lgkmcnt(0)")
    for hd in range(2):
        for i in range(4):
            lo, hi = VW + 8 * hd + 2 * i, VW + 8 * hd + 2 * i + 1
            a(f"v_perm_b32 v{88 + 8 * hd + 2 * i}, v{hi}, v{lo}, s54")
            a(f"v_perm_b32 v{89 + 8 * hd + 2 * i}, v{hi}, v{lo}, s55")
    G = 128
    a(f"""
    s_waitcnt vmcnt(0)
    s_mov_b32 s{SSPIN}, {SPIN}
    L_poll1:
    """)
    for kk in range(4):
        a(f"buffer_load_dwordx4 v[{G + 4 * kk}:{G + 4 * kk + 3}], v{VOG}, s[{SWS}:{SWS + 3}], s77 offen offset:{kk * 1024} sc1")
    a(f"""
    s_sub_u32 s{SSPIN}, s{SSPIN}, 1
    s_cbranch_scc1 L_poll1_done
    s_waitcnt vmcnt(0)
    v_cmp_eq_u32 s[52:53], s{STAG}, v{G + 3}
    """)
    for kk in range(1, 4):
        a(f"v_cmp_eq_u32 vcc, s{STAG}, v{G + 4 * kk + 3}")
        a("s_and_b64 s[52:53], s[52:53], vcc")
    a(f"""
    s_cmp_eq_u64 s[52:53], -1
    s_cbranch_scc0 L_poll1
    L_poll1_done:
    s_waitcnt vmcnt(0)
    """)
    stamp()
    MX, O0, O1, LA = 144, 145, 146, 147
    E = 148
    a(f"""
    v_max3_f32 v{MX}, v{G + 2}, v{G + 6}, v{G + 10}
    v_max_f32 v{MX}, v{MX}, v{G + 14}
    """)
    bfly_p8("v_max_f32", [MX], [1])
    for kk in range(4):
        a(f"v_sub_f32 v{E + kk}, v{G + 4 * kk + 2}, v{MX}")
    for kk in range(4):
        a(f"v_exp_f32 v{E + kk}, v{E + kk}")
    a("s_nop 1")
    for kk in range(4):
        op = "v_mul_f32_dpp" if kk == 0 else "v_fmac_f32_dpp"
        a(f"{op} v{O0}, v{E + kk}, v{G + 4 * kk} quad_perm:[0,0,0,0] row_mask:0xf bank_mask:0xf")
        a(f"{op} v{O1}, v{E + kk}, v{G + 4 * kk + 1} quad_perm:[2,2,2,2] row_mask:0xf bank_mask:0xf")
        a(f"{op} v{LA}, v{E + kk}, v{G + 4 * kk + 2} quad_perm:[0,0,2,2] row_mask:0xf bank_mask:0xf")
    bfly_p8("v_add_f32", [O0, O1, LA], [1, 22, 23])
    a(f"""
    v_rcp_f32 v{LA}, v{LA}
    s_nop 1
    v_mul_f32_dpp v{O0}, v{LA}, v{O0} quad_perm:[1,1,1,1] row_mask:0xf bank_mask:0xf
    v_mul_f32_dpp v{O1}, v{LA}, v{O1} quad_perm:[3,3,3,3] row_mask:0xf bank_mask:0xf
    s_nop 1
    v_mov_b32_dpp v1, v{O0} quad_perm:[1,1,3,3] row_mask:0xf bank_mask:0xf
    v_mov_b32_dpp v22, v{O1} quad_perm:[1,1,3,3] row_mask:0xf bank_mask:0xf
    v_cvt_pk_bf16_f32 v{O0}, v{O0}, v1
    v_cvt_pk_bf16_f32 v{O1}, v{O1}, v22
    s_nop 0
    """)
    for i in range(4):
        a(f"v_readlane_b32 s{SP + i}, v{O0}, {2 * i}")
    for i in range(4):
        a(f"v_readlane_b32 s{SP + 4 + i}, v{O1}, {2 * i}")
    a("s_nop 1")
    for hd in range(2):
        for i in range(4):
            for hf in range(2):
                acc = 152 + 2 * hd + hf
                src2 = "0" if i == 0 else f"v{acc}"
                a(f"v_dot2_f32_bf16 v{acc}, s{SP + 4 * hd + i}, v{88 + 8 * hd + 2 * i + hf}, {src2}")
    a(f"""
    s_nop 2
    v_add_f32 v156, v152, v154
    v_add_f32 v157, v153, v155
    s_lshl_b32 s52, s{SW}, 9
    s_add_u32 s52, s52, {L_RED}
    v_lshl_add_u32 v1, v0, 3, s52
    ds_write_b64 v1, v[156:157]
    s_waitcnt lgkmcnt(0)
    s_barrier
    s_cmp_lg_u32 s{SW}, 0
    s_cbranch_scc1 L_pub2_done
    v_lshlrev_b32 v1, 3, v0
    ds_read_b64 v[152:153], v1 offset:{L_RED + 512}
    ds_read_b64 v[154:155], v1 offset:{L_RED + 1024}
    ds_read_b64 v[158:159], v1 offset:{L_RED + 1536}
    v_lshrrev_b32 v1, 3, v0
    v_lshlrev_b32 v1, 13, v1
    v_and_b32 v22, 7, v0
    v_lshl_add_u32 v1, v22, 4, v1
    s_lshl_b32 s52, s{SCB}, 16
    s_lshl_b32 s53, s{SH}, 3
    s_add_u32 s53, s53, s{SRB}
    s_lshl_b32 s53, s53, 7
    s_add_u32 s52, s52, s53
    s_add_u32 s52, s52, {W_FS}
    s_cmp_eq_u32 s{SCB}, 3
    s_cselect_b32 s55, 0, -1
    s_mov_b32 s54, -1
    s_waitcnt lgkmcnt(0)
    v_add_f32 v156, v156, v152
    v_add_f32 v157, v157, v153
    v_add_f32 v154, v154, v158
    v_add_f32 v155, v155, v159
    v_add_f32 v160, v156, v154
    v_mov_b32 v161, s{STAG}
    v_add_f32 v162, v157, v155
    v_mov_b32 v163, s{STAG}
    s_mov_b64 exec, s[54:55]
    buffer_store_dwordx4 v[160:163], v1, s[{SWS}:{SWS + 3}], s52 offen sc1
    s_mov_b64 exec, -1
    s_cmp_ge_u32 s2, 28
    s_cbranch_scc1 L_fin
    s_waitcnt vmcnt(0)
    L_pub2_done:
    """)
    stamp()
    a(f"""
    s_cmp_ge_u32 s2, 28
    s_cbranch_scc1 L_fin
    s_barrier
    s_lshl_b32 s52, s2, 13
    s_lshl_b32 s53, s{SW}, 11
    s_add_u32 s52, s52, s53
    s_add_u32 s52, s52, {W_FS}
    s_mov_b32 s{SSPIN}, {SPIN}
    L_poll2:
    buffer_load_dwordx4 v[128:131], v{VOG}, s[{SWS}:{SWS + 3}], s52 offen sc1
    buffer_load_dwordx4 v[132:135], v{VOG}, s[{SWS}:{SWS + 3}], s52 offen offset:1024 sc1
    s_sub_u32 s{SSPIN}, s{SSPIN}, 1
    s_cbranch_scc1 L_poll2_done
    s_waitcnt vmcnt(0)
    v_cmp_eq_u32 s[54:55], s{STAG}, v129
    v_cmp_eq_u32 vcc, s{STAG}, v131
    s_and_b64 s[54:55], s[54:55], vcc
    v_cmp_eq_u32 vcc, s{STAG}, v133
    s_and_b64 s[54:55], s[54:55], vcc
    v_cmp_eq_u32 vcc, s{STAG}, v135
    s_and_b64 s[54:55], s[54:55], vcc
    s_cmp_eq_u64 s[54:55], -1
    s_cbranch_scc0 L_poll2
    L_poll2_done:
    s_waitcnt vmcnt(0)
    """)
    stamp()
    a("v_add_f32 v140, v128, v132")
    a("v_add_f32 v141, v130, v134")
    bfly_p8("v_add_f32", [140, 141], [1, 22])
    a(f"""
    s_lshl_b32 s52, s{SW}, 6
    s_add_u32 s52, s52, {L_RED + 4096}
    v_lshl_add_u32 v1, v0, 3, s52
    s_mov_b64 exec, 0xff
    ds_write_b64 v1, v[140:141]
    s_mov_b64 exec, -1
    s_waitcnt lgkmcnt(0)
    s_barrier
    s_cmp_lg_u32 s{SW}, 0
    s_cbranch_scc1 L_fin
    v_and_b32 v1, 7, v0
    v_lshlrev_b32 v1, 3, v1
    ds_read_b64 v[142:143], v1 offset:{L_RED + 4096 + 64}
    ds_read_b64 v[144:145], v1 offset:{L_RED + 4096 + 128}
    ds_read_b64 v[146:147], v1 offset:{L_RED + 4096 + 192}
    s_lshl_b32 s52, s2, 5
    v_lshlrev_b32 v22, 2, v0
    s_waitcnt lgkmcnt(0)
    v_add_f32 v140, v140, v142
    v_add_f32 v141, v141, v143
    v_add_f32 v144, v144, v146
    v_add_f32 v145, v145, v147
    v_add_f32 v140, v140, v144
    v_add_f32 v141, v141, v145
    v_cvt_pk_bf16_f32 v140, v140, v141
    s_mov_b64 exec, 0xff
    buffer_store_dword v140, v22, s[{SOUT}:{SOUT + 3}], s52 offen
    s_cmp_lg_u32 s2, 0
    s_cbranch_scc1 L_fin
    s_mov_b64 exec, 1
    v_mov_b32 v2, 0
    v_mov_b32 v3, s{STAG}
    buffer_store_dword v3, v2, s[{SWS}:{SWS + 3}], 0 offen sc1
    L_fin:
    s_mov_b64 exec, -1
    """)
    stamp()
    flush_stamps(200, 0, 11, 0)
    a("s_endpgm")

    nst[0] = 1
    SJ, SOF = 66, 67
    VK0, VK1, VV0, VV1, VWQ, VWO, VPA, VPV, VFQ = 4, 5, 6, 7, 8, 9, 10, 11, 12
    a(f"""
    L_loader:
    s_setprio 2
    s_sub_u32 s{SJ}, s{SW}, 4
    v_lshrrev_b32 v1, 3, v0
    v_lshlrev_b32 v2, 13, v1
    v_and_b32 v3, 7, v0
    v_lshrrev_b32 v13, 4, v0
    v_and_b32 v13, 1, v13
    v_lshlrev_b32 v13, 1, v13
    v_xor_b32 v3, v3, v13
    s_and_b32 s52, s{SJ}, 1
    s_lshl_b32 s52, s52, 2
    v_xor_b32 v3, s52, v3
    v_lshl_add_u32 v{VWQ}, v3, 4, v2
    s_lshr_b32 s53, s{SS}, 3
    s_mul_i32 s53, s53, {112 * 8192}
    s_lshl_b32 s54, s{SH}, 10
    s_add_u32 s53, s53, s54
    s_and_b32 s54, s{SS}, 7
    s_lshl_b32 s54, s54, 7
    s_add_u32 s53, s53, s54
    s_lshl_b32 s54, s{SJ}, 16
    s_add_u32 s{SOF}, s53, s54
    s_lshl_b32 s56, s{SJ}, 10
    s_add_u32 s57, s56, {L_WQ}
    s_mov_b32 m0, s57
    s_nop 0
    """)
    n = [0]
    written = [0]
    NTOT = 40
    def prog(cnt):
        a(f"""
        v_mov_b32 v{VPV}, {cnt}
        s_mov_b64 exec, 1
        ds_write_b32 v{VPA}, v{VPV}
        s_mov_b64 exec, -1
        """)
        written[0] = cnt
    def throttle():
        if n[0] >= D:
            a(f"s_waitcnt vmcnt({D - 1})")
            cnt = n[0] - D + 1
            if cnt % 4 == 0:
                prog(cnt)
    for i in range(4):
        if i == 3:
            a(f"s_cmp_lt_u32 s{SJ}, 2\ns_cselect_b32 s{SOF}, s{SOF}, 0x40000000")
        throttle()
        a(f"buffer_load_dwordx4 v{VWQ}, s[{SWQ}:{SWQ + 3}], s{SOF} offen nt lds")
        n[0] += 1
        if i < 3:
            a(f"s_add_u32 m0, m0, 4096\ns_add_u32 s{SOF}, s{SOF}, 262144")
    a(f"""
    v_lshrrev_b32 v1, 5, v0
    v_and_b32 v2, 31, v0
    v_xor_b32 v3, v2, v1
    s_lshl_b32 s52, s{SJ}, 1
    v_xor_b32 v3, s52, v3
    v_lshlrev_b32 v3, 4, v3
    v_lshl_add_u32 v{VK0}, v1, 9, v3
    v_xor_b32 v{VK1}, 128, v{VK0}
    v_lshlrev_b32 v3, 1, v1
    v_xor_b32 v3, v3, v2
    s_and_b32 s52, s{SJ}, 1
    s_lshl_b32 s52, s52, 2
    v_xor_b32 v3, s52, v3
    v_lshlrev_b32 v3, 4, v3
    v_lshl_add_u32 v{VV0}, v1, 9, v3
    s_mov_b32 m0, s56
    v_xor_b32 v{VV1}, 128, v{VV0}
    """)
    first = True
    for i in range(16):
        throttle()
        a(f"buffer_load_dwordx4 v{VK0 + (i & 1)}, s[{SK}:{SK + 3}], m0 offen nt lds")
        n[0] += 1
        a("s_add_u32 m0, m0, 4096")
        if n[0] == D:
            a(f"""
            v_lshrrev_b32 v1, 4, v0
            v_mul_u32_u24 v1, 896, v1
            v_and_b32 v2, 15, v0
            v_lshl_add_u32 v{VWO}, v2, 4, v1
            v_cmp_le_u32 vcc, 8, v2
            s_cmp_eq_u32 s{SCB}, 3
            s_cselect_b64 s[52:53], vcc, 0
            v_mov_b32 v1, 0x40000000
            v_cndmask_b32 v{VWO}, v{VWO}, v1, s[52:53]
            s_lshl_b32 s52, s{SJ}, 2
            s_add_u32 s52, s52, {F_PROG}
            v_mov_b32 v{VPA}, s52
            v_and_b32 v1, 3, v0
            v_lshlrev_b32 v1, 2, v1
            v_add_u32 v{VFQ}, {F_Q}, v1
            s_barrier
            """)
            stamp()
        else:
            a("s_nop 0")
    a(f"s_add_u32 m0, s56, {L_V}\ns_mov_b32 s{SOF}, s56")
    for i in range(16):
        throttle()
        a(f"buffer_load_dwordx4 v{VV0 + (i & 1)}, s[{SV}:{SV + 3}], s{SOF} offen nt lds")
        n[0] += 1
        a(f"s_add_u32 m0, m0, 4096\ns_add_u32 s{SOF}, s{SOF}, 4096")
    stamp()
    a(f"""
    s_lshl_b32 s52, s{SH}, 9
    s_lshl_b32 s53, s{SRB}, 5
    s_add_u32 s52, s52, s53
    s_lshl_b32 s53, s{SJ}, 2
    s_add_u32 s52, s52, s53
    s_mul_i32 s52, s52, 896
    s_lshl_b32 s53, s{SCB}, 8
    s_add_u32 s{SOF}, s52, s53
    s_add_u32 m0, s56, {L_WO}
    """)
    lds_wait(VFQ, 1, "v_cmp_ne_u32 vcc, 0, v1", "lfq")
    for i in range(4):
        throttle()
        a(f"buffer_load_dwordx4 v{VWO}, s[{SWO}:{SWO + 3}], s{SOF} offen nt lds")
        n[0] += 1
        if i < 3:
            step = 16 * 896 if i != 1 else 256 * 896 - 16 * 896
            a(f"s_add_u32 m0, m0, 4096\ns_add_u32 s{SOF}, s{SOF}, {step}")
    stamp()
    thr = written[0] + 4
    while thr <= NTOT:
        a(f"s_waitcnt vmcnt({NTOT - thr})")
        prog(thr)
        thr += 4
    stamp()
    flush_stamps(20, 11, 4, 4)
    a("s_endpgm")
    a("L_end:")
    a("s_endpgm")
    a('.section .rodata,"a"')
    a(".p2align 6")
    out = HEADER + f"; @launch grid=(256,1,1) block=(512,1,1) lds={LDS_BYTES}\n" + a.text() + kernel_desc(k, 208, 102)
    return out

if __name__ == "__main__":
    kw = {}
    for x in sys.argv[2:]:
        key, val = x.lstrip("-").split("=") if "=" in x else (x.lstrip("-"), "1")
        kw[key] = int(val)
    open(sys.argv[1], "w").write(gen(**kw))
```

```python
import struct, sys
from asmlib import *

def f2u(x):
    return struct.unpack("<I", struct.pack("<f", x))[0]

L_K, L_V, L_WQ, L_Q, L_S, L_FL = 0, 65536, 131072, 147456, 148480, 149504
L_WO = L_WQ
L_RED = 0
LDS_BYTES = 149760
F_PROG, F_Q, F_M, F_P = L_FL, L_FL + 16, L_FL + 32, L_FL + 48
L_P, L_MX = L_S, L_S + 512
W_QA, W_OS, W_FS, W_QB, W_TS = 65536, 262144, 1310720, 1572864, 4 << 20
WS_BYTES = 8 << 20
TAG_INC = 0x9E3779B1
SPIN = 200000
OOB = 0x40000000

def gen(stamps=False, D=8, force_remote=False, warm=0, sleep=1, dbg=-1, qa=1, NA=3, qack=0, pretouch=0, ack2=1, D2=0, qprog=0, early4=1, cnt=0, xq=0, bar4=1, lprio=0, cprio=3, bgon=1, qjunk=1, ack1=1, wpol=0, wpos=6, tail=0):
    assert 5 <= D <= 20
    D2 = D2 or D
    a = Asm()
    k = NAME + "_kernel"
    SH, SS, SW, STAG = 20, 21, 22, 23
    SK, SV, SWQ, SX, SWO, SWS, SOUT = 24, 28, 32, 36, 40, 44, 48
    MODD, MHI, MAA = 58, 60, 62
    SXCC, SLOC = 64, 65
    SP = 66
    SSPIN, SRB, SCB = 74, 75, 76
    SOG = 77
    STS = 78
    SOSP, SQP = (56, 57)
    nst = [0]
    def stamp(kind="n"):
        if kind == "e" and tail:
            return
        if kind == "t" and not tail:
            return
        if stamps:
            a(f"s_memrealtime s[{STS + 2 * nst[0]}:{STS + 2 * nst[0] + 1}]")
            nst[0] += 1
    def flush_stamps(vtmp, base=0, cnt=12, wave=0):
        if not stamps:
            return
        if dbg >= 0:
            lb = a.label("dbg")
            a(f"""
            s_waitcnt lgkmcnt(0)
            s_cmp_lg_u32 s2, {dbg}
            s_cbranch_scc1 {lb}
            s_cmp_lg_u32 s{SW}, {wave}
            s_cbranch_scc1 {lb}
            s_mov_b32 s52, s16
            s_and_b32 s53, s17, 0xffff
            s_mov_b32 s54, 256
            s_mov_b32 s55, 0x20000
            s_mov_b64 exec, 1
            """)
            for i in range(cnt):
                a(f"s_sub_u32 s56, s{STS + 2 * (i + 1)}, s{STS}")
                a(f"v_mov_b32 v{vtmp}, s56")
                a(f"v_mov_b32 v{vtmp + 2}, {4 * (base + i)}")
                a(f"buffer_store_dword v{vtmp}, v{vtmp + 2}, s[52:55], 0 offen")
                a("s_nop 1")
            a(f"{lb}:")
            a("s_mov_b64 exec, -1")
            return
        a(f"""
        s_waitcnt lgkmcnt(0)
        s_mov_b32 s{SWS}, s18
        s_and_b32 s{SWS + 1}, s19, 0xffff
        s_mov_b32 s{SWS + 2}, {WS_BYTES}
        s_mov_b32 s{SWS + 3}, 0x20000
        s_lshl_b32 s52, s2, 3
        s_add_u32 s52, s52, s{SW}
        s_lshl_b32 s52, s52, 7
        s_add_u32 s52, s52, {W_TS}
        s_mov_b64 exec, 1
        """)
        for i in range(12):
            a(f"v_mov_b32 v{vtmp}, s{STS + 2 * i}")
            a(f"v_mov_b32 v{vtmp + 1}, s{STS + 2 * i + 1}")
            a(f"v_mov_b32 v{vtmp + 2}, {8 * i}")
            a(f"buffer_store_dwordx2 v[{vtmp}:{vtmp + 1}], v{vtmp + 2}, s[{SWS}:{SWS + 3}], s52 offen")
            a("s_nop 1")
        a("s_mov_b64 exec, -1")
    def lds_wait(addr_v, tmp, cmp, name, slp=None):
        slp = sleep if slp is None else slp
        lb = a.label(name)
        a(f"""
        {lb}:
        ds_read_b32 v{tmp}, v{addr_v}
        s_waitcnt lgkmcnt(0)
        {cmp}
        s_cmp_eq_u64 vcc, -1
        """)
        if slp:
            a(f"""
            s_cbranch_scc1 {lb}_ok
            s_sleep {slp}
            s_branch {lb}
            {lb}_ok:
            """)
        else:
            a(f"s_cbranch_scc0 {lb}")
    def srd(reg, lo, hi, size):
        a(f"""
        s_mov_b32 s{reg}, s{lo}
        s_and_b32 s{reg + 1}, s{hi}, 0xffff
        s_mov_b32 s{reg + 2}, {size}
        s_mov_b32 s{reg + 3}, 0x20000
        """)
    def srd_off(reg, lo, hi, off, size):
        a(f"""
        s_add_u32 s{reg}, s{lo}, s{off}
        s_addc_u32 s{reg + 1}, s{hi}, 0
        s_and_b32 s{reg + 1}, s{reg + 1}, 0xffff
        s_mov_b32 s{reg + 2}, {size}
        s_mov_b32 s{reg + 3}, 0x20000
        """)
    def swapb(op, reg, tmp, kinds):
        for kind in kinds:
            a(f"v_mov_b32 v{tmp}, v{reg}")
            a("s_nop 1")
            a(f"v_permlane{kind}_swap_b32 v{reg}, v{tmp}")
            a("s_nop 0")
            a(f"{op} v{reg}, v{reg}, v{tmp}")
    DPPM = "row_mask:0xf bank_mask:0xf"

    a(f"""
    .amdgcn_target "amdgcn-amd-amdhsa--gfx950"
    .text
    .globl {k}
    .p2align 8
    .type {k},@function
    {k}:
    s_cmp_ge_u32 s2, 256
    s_cbranch_scc1 L_end
    s_load_dwordx16 s[4:19], s[0:1], 0
    """)
    if stamps:
        for i in range(78, 102):
            a(f"s_mov_b32 s{i}, 0")
    stamp()
    a(f"""
    v_lshrrev_b32 v1, 6, v0
    s_and_b32 s{SH}, s2, 7
    s_lshr_b32 s{SS}, s2, 3
    v_readfirstlane_b32 s{SW}, v1
    v_and_b32 v0, 63, v0
    s_lshr_b32 s{SRB}, s{SS}, 2
    s_and_b32 s{SCB}, s{SS}, 3
    s_lshl_b32 s52, s{SH}, 25
    s_lshl_b32 s53, s{SS}, 16
    s_add_u32 s52, s52, s53
    s_add_u32 s68, s52, 31457280
    s_cmp_ge_u32 s{SW}, 4
    s_cbranch_scc1 L_loader
    """)

    VN, VG = 2, 3
    VPRA, VFQA, VFSA, VOG = 4, 5, 6, 7
    XA = 8
    VZ = 180
    VOP, VQPO = 184, 185
    a(f"""
    s_setprio {cprio}
    s_getreg_b32 s{SXCC}, hwreg(HW_REG_XCC_ID, 0, 4)
    v_and_b32 v{VN}, 15, v0
    v_lshrrev_b32 v{VG}, 4, v0
    s_lshr_b32 s52, s{SS}, 3
    s_mul_i32 s52, s52, 224
    v_lshl_add_u32 v1, v{VG}, 4, s52
    v_lshl_add_u32 v22, v{VG}, 3, s52
    v_mov_b32 v{VZ}, 0
    v_mov_b32 v{VZ + 1}, 0
    v_mov_b32 v{VZ + 2}, 0
    v_mov_b32 v{VZ + 3}, 0
    v_lshrrev_b32 v23, 3, v0
    v_lshlrev_b32 v23, 12, v23
    v_and_b32 v26, 7, v0
    v_lshl_add_u32 v{VOP}, v26, 4, v23
    v_lshlrev_b32 v{VQPO}, 3, v0
    v_lshlrev_b32 v{VOG}, 4, v0
    s_lshl_b32 s53, s{SH}, 17
    s_lshl_b32 s54, s{SW}, 15
    s_add_u32 s53, s53, s54
    s_lshl_b32 s54, s{SS}, 7
    s_add_u32 s53, s53, s54
    s_add_u32 s{SOSP}, s53, {W_OS}
    s_lshl_b32 s53, s{SH}, 14
    s_lshr_b32 s54, s{SS}, 3
    s_lshl_b32 s54, s54, 12
    s_add_u32 s53, s53, s54
    s_and_b32 s54, s{SS}, 7
    s_lshl_b32 s54, s54, 9
    s_add_u32 s53, s53, s54
    s_lshl_b32 s54, s{SW}, 7
    s_add_u32 s{SQP}, s53, s54
    s_cmp_lg_u32 s{SW}, 0
    s_cbranch_scc1 L_noinit
    v_lshlrev_b32 v27, 2, v0
    v_add_u32 v27, {L_FL}, v27
    s_mov_b64 exec, 0xffff
    ds_write_b32 v27, v{VZ}
    s_mov_b64 exec, -1
    L_noinit:
    s_waitcnt lgkmcnt(0)
    """)
    srd(SX, 4, 5, 896)
    a(f"""
    s_load_dword s{STAG}, s[18:19], 0
    buffer_load_dwordx4 v[{XA}:{XA + 3}], v1, s[{SX}:{SX + 3}], 0 offen
    buffer_load_dwordx4 v[{XA + 4}:{XA + 7}], v1, s[{SX}:{SX + 3}], 0 offen offset:64
    buffer_load_dwordx4 v[{XA + 8}:{XA + 11}], v1, s[{SX}:{SX + 3}], 0 offen offset:128
    buffer_load_dwordx2 v[{XA + 12}:{XA + 13}], v22, s[{SX}:{SX + 3}], 0 offen offset:192
    s_barrier
    """)
    srd(SWS, 18, 19, WS_BYTES)
    srd(SOUT, 14, 15, 896)
    nlater = 0
    if qa and qjunk:
        a(f"""
        s_add_u32 s52, s{SQP}, {W_QA}
        s_mov_b64 exec, 0xffff
        buffer_store_dwordx2 v[{VZ}:{VZ + 1}], v{VQPO}, s[{SWS}:{SWS + 3}], s52 offen
        s_mov_b64 exec, -1
        """)
        nlater += 1
    if warm == 2:
        a(f"buffer_store_dwordx4 v[{VZ}:{VZ + 3}], v{VOP}, s[{SWS}:{SWS + 3}], s{SOSP} offen")
        nlater += 1
    if pretouch:
        a(f"""
        s_add_u32 s52, s8, s68
        s_addc_u32 s53, s9, 0
        s_lshl_b32 s54, s{SH}, 9
        s_lshl_b32 s55, s{SRB}, 5
        s_add_u32 s54, s54, s55
        s_mul_i32 s54, s54, 896
        s_add_u32 s54, s12, s54
        s_addc_u32 s55, s13, 0
        s_cmp_eq_u32 s{SW}, 1
        s_cselect_b32 s{SV}, s52, s14
        s_cselect_b32 s{SV + 1}, s53, s15
        s_cmp_eq_u32 s{SW}, 2
        s_cselect_b32 s{SV}, s54, s{SV}
        s_cselect_b32 s{SV + 1}, s55, s{SV + 1}
        s_and_b32 s{SV + 1}, s{SV + 1}, 0xffff
        s_mov_b32 s{SV + 2}, 4
        s_mov_b32 s{SV + 3}, 0x20000
        s_mov_b64 exec, 1
        buffer_load_dword v176, v{VZ}, s[{SV}:{SV + 3}], 0 offen nt
        s_mov_b64 exec, -1
        """)
        nlater += 1
    a(f"""
    s_mov_b32 s{MODD}, 0xffff0000
    s_mov_b32 s{MODD + 1}, 0xffff0000
    s_mov_b32 s{MHI}, 0
    s_mov_b32 s{MHI + 1}, -1
    s_mov_b32 s{MAA}, 0xaaaaaaaa
    s_mov_b32 s{MAA + 1}, 0xaaaaaaaa
    v_and_b32 v1, 3, v0
    v_lshlrev_b32 v1, 2, v1
    v_add_u32 v{VPRA}, {F_PROG}, v1
    v_add_u32 v{VFQA}, {F_Q}, v1
    v_add_u32 v{VFSA}, {F_M}, v1
    """)
    VWA, VWA2 = 24, 25
    a(f"""
    v_lshrrev_b32 v1, 2, v{VN}
    v_and_b32 v27, 3, v{VN}
    v_lshl_add_u32 v22, v{VG}, 3, v1
    v_lshlrev_b32 v22, 7, v22
    v_lshl_add_u32 v22, v27, 3, v22
    v_lshrrev_b32 v23, 1, v1
    v_and_b32 v26, 1, v{VG}
    v_lshl_add_u32 v26, v26, 1, v23
    v_xor_b32 v26, s{SW}, v26
    v_lshl_add_u32 v22, v26, 5, v22
    v_add_u32 v{VWA}, {L_WQ}, v22
    v_lshl_add_u32 v22, v{VG}, 2, v1
    v_lshlrev_b32 v22, 7, v22
    v_lshl_add_u32 v22, v27, 3, v22
    v_lshrrev_b32 v26, 1, v{VG}
    v_lshl_add_u32 v26, v26, 1, v23
    v_xor_b32 v26, s{SW}, v26
    v_lshl_add_u32 v22, v26, 5, v22
    v_add_u32 v{VWA2}, {L_WQ + 96 * 128}, v22
    s_lshl_b32 s52, s{SH}, 14
    s_lshl_b32 s53, s{SW}, 10
    s_add_u32 s52, s52, s53
    s_add_u32 s68, s52, {W_QA if qa else W_QB}
    s_add_u32 s69, s68, 4096
    s_add_u32 s70, s68, 8192
    s_add_u32 s71, s68, 12288
    s_lshl_b32 s52, s{SH}, 17
    s_lshl_b32 s53, s{SRB}, 14
    s_add_u32 s52, s52, s53
    s_lshl_b32 s53, s{SW}, 12
    s_add_u32 s52, s52, s53
    s_add_u32 s{SOG}, s52, {W_OS}
    """)
    lds_wait(VPRA, 1, "v_cmp_le_u32 vcc, 4, v1", "wq")
    stamp('e')
    WB = 28
    for t in range(3):
        for u in range(2):
            r = WB + 4 * t + 2 * u
            a(f"ds_read_b64_tr_b16 v[{r}:{r + 1}], v{VWA} offset:{t * 4096 + u * 512}")
    a(f"ds_read_b64_tr_b16 v[{WB + 12}:{WB + 13}], v{VWA2}")
    QC, QC2 = 44, 48
    a(f"s_waitcnt vmcnt({nlater}) lgkmcnt(0)")
    a(f"v_mfma_f32_16x16x16_bf16 v[{QC2}:{QC2 + 3}], v[{XA + 12}:{XA + 13}], v[{WB + 12}:{WB + 13}], 0")
    for t in range(3):
        cin = "0" if t == 0 else f"v[{QC}:{QC + 3}]"
        a(f"v_mfma_f32_16x16x32_bf16 v[{QC}:{QC + 3}], v[{XA + 4 * t}:{XA + 4 * t + 3}], v[{WB + 4 * t}:{WB + 4 * t + 3}], {cin}")
    a(f"""
    s_add_u32 s{STAG}, s{STAG}, {TAG_INC:#x}
    s_or_b32 s{STAG}, s{STAG}, 1
    s_add_u32 s52, s{SQP}, {W_QA}
    s_add_u32 s53, s{SQP}, {W_QB}
    v_mov_b32 v51, s{STAG}
    s_nop 4
    v_add_f32 v50, v{QC}, v{QC2}
    v_and_b32 v50, 0xfffffff0, v50
    v_or_b32 v50, s{SXCC}, v50
    s_mov_b64 exec, 0xffff
    """)
    if qa:
        a(f"buffer_store_dwordx2 v[50:51], v{VQPO}, s[{SWS}:{SWS + 3}], s52 offen")
    a(f"""
    buffer_store_dwordx2 v[50:51], v{VQPO}, s[{SWS}:{SWS + 3}], s53 offen sc1
    s_mov_b64 exec, -1
    """)
    if qack or not qa:
        a("s_waitcnt vmcnt(0)")
    if qprog:
        lds_wait(VPRA, 1, f"v_cmp_le_u32 vcc, {qprog}, v1", "qp")
    stamp('e')
    QG = 52
    VQA, VKA, VVA = 26, 28, 36
    VPW, VMW, VMR, VPA = 32, 33, 35, 27
    VQ, VKB, VC = 72, 104, 168
    VVB = 192
    VP, VONE, VO, VLA, VOUT = 52, 40, 144, 160, 124
    SBG, STHR = 73, 72
    M2 = 30
    def late_warm():
        pol = ["", " sc1", " nt", " sc1 nt"][wpol]
        a(f"""
        s_lshl_b32 s52, s{SCB}, 10
        s_add_u32 s52, s52, s{SOG}
        buffer_load_dwordx4 v[176:179], v{VOG}, s[{SWS}:{SWS + 3}], s52 offen{pol}
        """)
    def addr_setup():
        a(f"""
        v_and_b32 v1, 1, v{VN}
        v_lshlrev_b32 v22, 9, v1
        v_lshl_add_u32 v22, v{VG}, 4, v22
        v_add_u32 v{VQA}, {L_Q}, v22
        v_lshlrev_b32 v22, 8, v1
        v_lshl_add_u32 v22, v{VG}, 4, v22
        v_add_u32 v{VPA}, {L_P}, v22
        v_xor_b32 v1, v{VG}, v{VN}
        v_lshlrev_b32 v1, 4, v1
        v_lshl_add_u32 v1, v{VN}, 9, v1
        s_lshl_b32 s52, s{SW}, 14
        v_add_u32 v{VKA}, s52, v1
        """)
        for t in range(1, 4):
            a(f"v_xor_b32 v{VKA + t}, {t << 6}, v{VKA}")
        a(f"""
        v_lshrrev_b32 v1, 2, v{VN}
        v_and_b32 v22, 3, v{VN}
        v_lshl_add_u32 v23, v{VG}, 3, v1
        v_lshlrev_b32 v23, 9, v23
        v_lshl_add_u32 v23, v22, 3, v23
        v_and_b32 v22, 1, v{VG}
        v_lshl_add_u32 v1, v22, 2, v1
        s_lshl_b32 s52, s{SW}, 2
        v_xor_b32 v1, s52, v1
        v_lshl_add_u32 v23, v1, 5, v23
        v_add_u32 v{VVA}, {L_V}, v23
        """)
        for b in range(1, 4):
            a(f"v_xor_b32 v{VVA + b}, {b << 5}, v{VVA}")
        a(f"""
        v_lshrrev_b32 v1, 5, v0
        v_and_b32 v22, 31, v0
        v_lshlrev_b32 v23, 8, v1
        v_lshl_add_u32 v23, v22, 1, v23
        s_lshl_b32 s52, s{SW}, 6
        s_add_u32 s52, s52, {L_P}
        v_add_u32 v{VPW}, s52, v23
        s_lshl_b32 s52, s{SW}, 2
        s_add_u32 s52, s52, {L_MX}
        v_lshl_add_u32 v{VMW}, v1, 4, s52
        v_mov_b32 v{VMR}, {L_MX}
        s_lshl_b32 s52, s{SW}, 11
        s_add_u32 s52, s52, {L_WO}
        v_lshl_add_u32 v34, v0, 2, s52
        s_mov_b32 s{M2}, 0xcccccccc
        s_mov_b32 s{M2 + 1}, 0xcccccccc
        """)
        for r in range(4):
            a(f"v_mov_b32 v{VONE + r}, 0x3f803f80")
    def task(kk):
        if kk == 0:
            for blk in range(2):
                for t in range(8):
                    r = VKB + blk * 32 + 4 * t
                    a(f"ds_read_b128 v[{r}:{r + 3}], v{VKA + (t & 3)} offset:{blk * 8192 + (t >> 2) * 256}")
                if blk == 0:
                    a("s_waitcnt lgkmcnt(4)")
        else:
            j = kk - 1
            for b in range(4):
                for u in range(2):
                    r = VVB + 16 * j + 4 * b + 2 * u
                    a(f"ds_read_b64_tr_b16 v[{r}:{r + 1}], v{VVA + b} offset:{j * 16384 + u * 2048}")
        a(f"s_mov_b32 s{SBG}, {kk + 1}")
        a(f"s_mov_b32 s{STHR}, {24 + 4 * kk}")
    def bg(loop):
        lb = a.label("bg")
        a(f"""
        {lb}:
        s_cmp_ge_u32 s{SBG}, 5
        s_cbranch_scc1 {lb}_x
        ds_read_b32 v1, v{VPRA}
        s_waitcnt lgkmcnt(0)
        v_cmp_le_u32 vcc, s{STHR}, v1
        s_cmp_eq_u64 vcc, -1
        s_cbranch_scc0 {lb}_x
        """)
        for kk in range(5):
            if kk < 4:
                a(f"s_cmp_lg_u32 s{SBG}, {kk}\ns_cbranch_scc1 {lb}_t{kk}")
            task(kk)
            a(f"s_branch {lb if loop else lb + '_x'}")
            if kk < 4:
                a(f"{lb}_t{kk}:")
        a(f"{lb}_x:")
    def ensure(kk, slp=None):
        lb = a.label("ens")
        a(f"s_cmp_gt_u32 s{SBG}, {kk}\ns_cbranch_scc1 {lb}")
        lds_wait(VPRA, 1, f"v_cmp_le_u32 vcc, s{STHR}, v1", "e", slp=slp)
        task(kk)
        a(f"{lb}:")

    a(f"""
    s_mov_b32 s{SSPIN}, {SPIN}
    s_mov_b32 s24, 0
    s_mov_b32 s{SBG}, 0
    s_lshl_b32 s{STHR}, s{SW}, 2
    s_add_u32 s{STHR}, s{STHR}, 8
    """)
    def qloads():
        for qi, sr_ in enumerate((68, 69, 70, 71)):
            a(f"buffer_load_dwordx4 v[{QG + 4 * qi}:{QG + 4 * qi + 3}], v{VOG}, s[{SWS}:{SWS + 3}], s{sr_} offen sc1")
    qloads()
    addr_setup()
    a("s_branch L_pollq_issued")
    a("L_pollq:")
    qloads()
    a("L_pollq_issued:")
    if bgon:
        bg(True)
    a(f"""
    s_sub_u32 s{SSPIN}, s{SSPIN}, 1
    s_cbranch_scc1 L_pollq_done
    s_waitcnt vmcnt(0)
    v_cmp_eq_u32 s[54:55], s{STAG}, v{QG + 1}
    """)
    for i in range(3, 16, 2):
        a(f"v_cmp_eq_u32 vcc, s{STAG}, v{QG + i}")
        a("s_and_b64 s[54:55], s[54:55], vcc")
    a("s_cmp_eq_u64 s[54:55], -1")
    if qa:
        a(f"""
        s_cbranch_scc1 L_pollq_done
        s_add_u32 s24, s24, 1
        s_cmp_lg_u32 s24, {NA}
        s_cbranch_scc1 L_pollq
        s_add_u32 s68, s68, {W_QB - W_QA}
        s_add_u32 s69, s69, {W_QB - W_QA}
        s_add_u32 s70, s70, {W_QB - W_QA}
        s_add_u32 s71, s71, {W_QB - W_QA}
        s_branch L_pollq
        """)
    else:
        a("s_cbranch_scc0 L_pollq")
    a(f"""
    L_pollq_done:
    s_waitcnt vmcnt(0)
    """)
    if cnt:
        a(f"s_mov_b32 s24, s{SSPIN}")
    a(f"""
    v_add_f32 v22, v{QG}, v{QG + 4}
    v_add_f32 v23, v{QG + 2}, v{QG + 6}
    v_add_f32 v42, v{QG + 8}, v{QG + 12}
    v_add_f32 v43, v{QG + 10}, v{QG + 14}
    v_xor_b32 v1, v{QG}, v{QG + 2}
    v_add_f32 v22, v22, v42
    v_add_f32 v23, v23, v43
    v_mov_b32 v42, 0x3f803f80
    v_mov_b32 v43, 0x3f803f80
    v_cvt_pk_bf16_f32 v22, v22, v23
    s_lshl_b32 s55, s{SW}, 8
    s_add_u32 s55, s55, {L_Q}
    v_lshl_add_u32 v23, v0, 2, s55
    ds_write_b32 v23, v22
    v_xor_b32 v22, v{QG}, v{QG + 4}
    v_or_b32 v1, v1, v22
    """)
    for i in (6, 8, 10, 12, 14):
        a(f"v_xor_b32 v22, v{QG}, v{QG + i}")
        a("v_or_b32 v1, v1, v22")
    a(f"""
    v_xor_b32 v22, s{SXCC}, v{QG}
    v_or_b32 v1, v1, v22
    v_and_b32 v1, 15, v1
    v_cmp_eq_u32 vcc, 0, v1
    s_lshl_b32 s55, s{SW}, 2
    s_add_u32 s55, s55, {F_Q}
    v_mov_b32 v1, s55
    s_cmp_eq_u64 vcc, -1
    s_cselect_b32 s54, 3, 1
    v_mov_b32 v23, s54
    s_mov_b64 exec, 1
    ds_write_b32 v1, v23
    s_mov_b64 exec, -1
    """)
    if warm == 1:
        for kk in range(4):
            a(f"buffer_load_dwordx4 v[{QG + 4 * kk}:{QG + 4 * kk + 3}], v{VOG}, s[{SWS}:{SWS + 3}], s{SOG} offen offset:{kk * 1024} sc1")
    a(f"""
    L_fqw:
    ds_read_b32 v22, v{VFQA}
    s_waitcnt lgkmcnt(0)
    v_cmp_ne_u32 vcc, 0, v22
    s_cmp_eq_u64 vcc, -1
    s_cbranch_scc1 L_fqw_ok
    """)
    if bgon:
        bg(False)
    a(f"""
    s_branch L_fqw
    L_fqw_ok:
    """)
    for t in range(8):
        a(f"ds_read_b128 v[{VQ + 4 * t}:{VQ + 4 * t + 3}], v{VQA} offset:{t * 64}")
    a(f"""
    v_cmp_eq_u32 vcc, 3, v22
    s_cmp_eq_u64 vcc, -1
    s_cselect_b32 s{SLOC}, 1, 0
    """)
    if force_remote:
        a(f"s_mov_b32 s{SLOC}, 0")
    stamp('e')
    if warm == 3 and wpos == 3:
        late_warm()
    ensure(0)
    a("s_waitcnt lgkmcnt(0)")
    for t in range(8):
        for blk in range(2):
            c = VC + 4 * blk
            r = VKB + blk * 32 + 4 * t
            cin = "0" if t == 0 else f"v[{c}:{c + 3}]"
            a(f"v_mfma_f32_16x16x32_bf16 v[{c}:{c + 3}], v[{VQ + 4 * t}:{VQ + 4 * t + 3}], v[{r}:{r + 3}], {cin}")
    C = 1.4426950408889634 / 16.0
    a(f"""
    s_mov_b32 s52, {f2u(C):#x}
    s_mov_b32 s54, 1
    s_mov_b32 s55, 1
    s_lshl_b32 s53, s{SW}, 2
    s_add_u32 s53, s53, {F_M}
    v_mov_b32 v1, s53
    v_mov_b32 v72, 1
    s_nop 0
    v_cndmask_b32 v22, v{VC}, v{VC + 1}, s[{MHI}:{MHI + 1}]
    v_cndmask_b32 v23, v{VC + 4}, v{VC + 5}, s[{MHI}:{MHI + 1}]
    v_cndmask_b32 v22, v22, v23, s[{MODD}:{MODD + 1}]
    s_nop 1
    v_max_f32_dpp v23, v22, v22 quad_perm:[1,0,3,2] {DPPM}
    s_nop 1
    v_max_f32_dpp v23, v23, v23 quad_perm:[2,3,0,1] {DPPM}
    s_nop 1
    v_max_f32_dpp v23, v23, v23 row_half_mirror {DPPM}
    s_nop 1
    v_max_f32_dpp v23, v23, v23 row_mirror {DPPM}
    v_mov_b32 v73, v23
    s_nop 1
    v_permlane16_swap_b32 v23, v73
    s_nop 0
    v_max_f32 v23, v23, v73
    s_mov_b64 exec, s[54:55]
    ds_write_b32 v{VMW}, v23
    s_mov_b64 exec, 1
    ds_write_b32 v1, v72
    s_mov_b64 exec, -1
    """)
    stamp('e')
    a(f"""
    L_mw:
    ds_read_b32 v73, v{VFSA}
    ds_read_b128 v[76:79], v{VMR}
    ds_read_b128 v[80:83], v{VMR} offset:16
    s_waitcnt lgkmcnt(0)
    v_cmp_ne_u32 vcc, 0, v73
    s_cmp_eq_u64 vcc, -1
    s_cbranch_scc0 L_mw
    v_max3_f32 v76, v76, v77, v78
    v_max3_f32 v80, v80, v81, v82
    v_max_f32 v76, v76, v79
    v_max_f32 v80, v80, v83
    v_mul_f32 v76, s52, v76
    v_mul_f32 v80, s52, v80
    v_cndmask_b32 v77, v76, v80, s[{MHI}:{MHI + 1}]
    v_fma_f32 v22, v22, s52, -v77
    v_exp_f32 v22, v22
    v_add_u32 v1, 16, v1
    v_cndmask_b32 v{VOUT + 2}, v76, v80, s[{M2}:{M2 + 1}]
    v_cvt_pk_bf16_f32 v22, v22, v22
    ds_write_b16 v{VPW}, v22
    s_mov_b64 exec, 1
    ds_write_b32 v1, v72
    s_mov_b64 exec, -1
    v_mov_b32 v{VOUT + 3}, s{STAG}
    """)
    stamp('e')
    a(f"""
    L_pw:
    ds_read_b32 v73, v{VFSA} offset:16
    """)
    for j in range(4):
        a(f"ds_read_b128 v[{VP + 4 * j}:{VP + 4 * j + 3}], v{VPA} offset:{j * 64}")
    a(f"""
    s_waitcnt lgkmcnt(0)
    v_cmp_ne_u32 vcc, 0, v73
    s_cmp_eq_u64 vcc, -1
    s_cbranch_scc0 L_pw
    """)
    stamp()
    if warm == 3 and wpos == 6:
        late_warm()
    for j in range(4):
        ensure(j + 1, slp=(0 if j == 3 else None))
        a("s_waitcnt lgkmcnt(0)")
        if j == 3:
            stamp('t')
        cin = "0" if j == 0 else f"v[{VLA}:{VLA + 3}]"
        a(f"v_mfma_f32_16x16x32_bf16 v[{VLA}:{VLA + 3}], v[{VP + 4 * j}:{VP + 4 * j + 3}], v[{VONE}:{VONE + 3}], {cin}")
        for b in range(4):
            c = VO + 4 * b
            r = VVB + 16 * j + 4 * b
            cin = "0" if j == 0 else f"v[{c}:{c + 3}]"
            a(f"v_mfma_f32_16x16x32_bf16 v[{c}:{c + 3}], v[{VP + 4 * j}:{VP + 4 * j + 3}], v[{r}:{r + 3}], {cin}")
    a(f"""
    s_nop 3
    v_cndmask_b32 v1, v{VLA}, v{VLA + 1}, s[{M2}:{M2 + 1}]
    v_cndmask_b32 v{VOUT + 2}, v{VOUT + 2}, v1, s[{MAA}:{MAA + 1}]
    """)
    for hd in range(2):
        a(f"v_cndmask_b32 v{22 + hd}, v{VO + hd}, v{VO + 4 + hd}, s[{MODD}:{MODD + 1}]")
    for hd in range(2):
        a(f"v_cndmask_b32 v{72 + hd}, v{VO + 8 + hd}, v{VO + 12 + hd}, s[{MODD}:{MODD + 1}]")
    for hd in range(2):
        a(f"v_cndmask_b32 v{VOUT + hd}, v{22 + hd}, v{72 + hd}, s[{MHI}:{MHI + 1}]")
    a(f"""
    s_cmp_eq_u32 s{SLOC}, 0
    s_cbranch_scc1 L_pub_remote
    buffer_store_dwordx4 v[{VOUT}:{VOUT + 3}], v{VOP}, s[{SWS}:{SWS + 3}], s{SOSP} offen
    {"s_waitcnt vmcnt(0)" if ack1 else ""}
    s_branch L_pub_done
    L_pub_remote:
    buffer_store_dwordx4 v[{VOUT}:{VOUT + 3}], v{VOP}, s[{SWS}:{SWS + 3}], s{SOSP} offen sc1
    s_waitcnt vmcnt(0)
    L_pub_done:
    """)
    stamp()
    VW = 72
    a(f"""
    s_mov_b32 s54, 0x05040100
    s_mov_b32 s55, 0x07060302
    """)
    lds_wait(VPRA, 1, "v_cmp_le_u32 vcc, 40, v1", "wo", slp=0)
    for hd in range(2):
        for jj in range(4):
            r = VW + 8 * hd + 2 * jj
            a(f"ds_read2st64_b32 v[{r}:{r + 1}], v34 offset0:{hd * 32 + 2 * jj} offset1:{hd * 32 + 2 * jj + 1}")
    G = 128
    a(f"""
    s_mov_b32 s{SSPIN}, {SPIN}
    L_poll1:
    """)
    for kk in range(4):
        a(f"buffer_load_dwordx4 v[{G + 4 * kk}:{G + 4 * kk + 3}], v{VOG}, s[{SWS}:{SWS + 3}], s{SOG} offen offset:{kk * 1024} sc1")
    a(f"""
    s_sub_u32 s{SSPIN}, s{SSPIN}, 1
    s_cbranch_scc1 L_poll1_done
    s_waitcnt vmcnt(0)
    v_cmp_eq_u32 s[52:53], s{STAG}, v{G + 3}
    """)
    for kk in range(1, 4):
        a(f"v_cmp_eq_u32 vcc, s{STAG}, v{G + 4 * kk + 3}")
        a("s_and_b64 s[52:53], s[52:53], vcc")
    a(f"""
    s_cmp_eq_u64 s[52:53], -1
    s_cbranch_scc0 L_poll1
    L_poll1_done:
    s_waitcnt vmcnt(0) lgkmcnt(0)
    """)
    if cnt:
        a(f"s_mov_b32 s25, s{SSPIN}")
    stamp()
    MX, O0, O1, LA, T = 144, 145, 146, 147, 148
    E = 152
    a(f"""
    v_max3_f32 v{MX}, v{G + 2}, v{G + 6}, v{G + 10}
    v_max_f32 v{MX}, v{MX}, v{G + 14}
    """)
    perm = []
    for hd in range(2):
        for i in range(4):
            lo, hi = VW + 8 * hd + 2 * i, VW + 8 * hd + 2 * i + 1
            perm.append(f"v_perm_b32 v{88 + 8 * hd + 2 * i}, v{hi}, v{lo}, s54")
            perm.append(f"v_perm_b32 v{89 + 8 * hd + 2 * i}, v{hi}, v{lo}, s55")
    def fill(n):
        for _ in range(n):
            a(perm.pop(0) if perm else "s_nop 0")
    fill(2)
    a(f"v_max_f32_dpp v{MX}, v{MX}, v{MX} row_ror:8 {DPPM}")
    for kind in (16, 32):
        a(f"v_mov_b32 v{T}, v{MX}")
        fill(2)
        a(f"v_permlane{kind}_swap_b32 v{MX}, v{T}")
        fill(1)
        a(f"v_max_f32 v{MX}, v{MX}, v{T}")
    for kk in range(4):
        a(f"v_sub_f32 v{E + kk}, v{G + 4 * kk + 2}, v{MX}")
    for kk in range(4):
        a(f"v_exp_f32 v{E + kk}, v{E + kk}")
    fill(2)
    for kk in range(4):
        op = "v_mul_f32_dpp" if kk == 0 else "v_fmac_f32_dpp"
        a(f"{op} v{O0}, v{E + kk}, v{G + 4 * kk} quad_perm:[0,0,0,0] {DPPM}")
        a(f"{op} v{O1}, v{E + kk}, v{G + 4 * kk + 1} quad_perm:[2,2,2,2] {DPPM}")
        a(f"{op} v{LA}, v{E + kk}, v{G + 4 * kk + 2} quad_perm:[0,0,2,2] {DPPM}")
    a(f"v_mov_b32 v{T}, v{LA}")
    fill(2)
    a(f"v_permlane32_swap_b32 v{O0}, v{O1}")
    a(f"v_permlane32_swap_b32 v{LA}, v{T}")
    fill(1)
    a(f"v_add_f32 v{O0}, v{O0}, v{O1}")
    a(f"v_add_f32 v{LA}, v{LA}, v{T}")
    fill(2)
    a(f"v_permlane16_swap_b32 v{O0}, v{LA}")
    fill(1)
    a(f"v_add_f32 v{O0}, v{O0}, v{LA}")
    fill(len(perm) if len(perm) > 2 else 2)
    a(f"v_add_f32_dpp v{O0}, v{O0}, v{O0} row_ror:8 {DPPM}")
    a("s_nop 1")
    a(f"v_mov_b32_dpp v{T}, v{O0} quad_perm:[1,1,3,3] {DPPM}")
    a(f"v_rcp_f32 v{LA}, v{O0}")
    a(f"v_cvt_pk_bf16_f32 v{O1}, v{O0}, v{T}")
    a("s_nop 0")
    for i in range(4):
        a(f"v_readlane_b32 s{SP + i}, v{O1}, {2 * i}")
    for i in range(4):
        a(f"v_readlane_b32 s{SP + 4 + i}, v{O1}, {32 + 2 * i}")
    a(f"v_readlane_b32 s52, v{LA}, 17")
    a(f"v_readlane_b32 s53, v{LA}, 19")
    for i in range(4):
        for hd in range(2):
            for hf in range(2):
                acc = 152 + 2 * hd + hf
                src2 = "0" if i == 0 else f"v{acc}"
                a(f"v_dot2_f32_bf16 v{acc}, s{SP + 4 * hd + i}, v{88 + 8 * hd + 2 * i + hf}, {src2}")
    a(f"""
    s_lshl_b32 s54, s{SW}, 9
    s_add_u32 s54, s54, {L_RED}
    v_lshl_add_u32 v1, v0, 3, s54
    """)
    stamp('t')
    a(f"""
    v_mul_f32 v156, s52, v152
    v_mul_f32 v157, s52, v153
    v_fmac_f32 v156, s53, v154
    v_fmac_f32 v157, s53, v155
    ds_write_b64 v1, v[156:157]
    s_waitcnt lgkmcnt(0)
    s_barrier
    """)
    stamp('t')
    a(f"""
    s_cmp_lg_u32 s{SW}, 0
    s_cbranch_scc1 L_pub2_done
    v_lshlrev_b32 v1, 3, v0
    ds_read_b64 v[152:153], v1 offset:{L_RED + 512}
    ds_read_b64 v[154:155], v1 offset:{L_RED + 1024}
    ds_read_b64 v[158:159], v1 offset:{L_RED + 1536}
    v_lshrrev_b32 v1, 3, v0
    v_lshlrev_b32 v1, 13, v1
    v_and_b32 v22, 7, v0
    v_lshl_add_u32 v1, v22, 4, v1
    s_lshl_b32 s52, s{SCB}, 16
    s_lshl_b32 s53, s{SH}, 3
    s_add_u32 s53, s53, s{SRB}
    s_lshl_b32 s53, s53, 7
    s_add_u32 s52, s52, s53
    s_add_u32 s52, s52, {W_FS}
    s_cmp_eq_u32 s{SCB}, 3
    s_cselect_b32 s55, 0, -1
    s_mov_b32 s54, -1
    v_mov_b32 v161, s{STAG}
    v_mov_b32 v163, s{STAG}
    s_waitcnt lgkmcnt(0)
    v_add_f32 v156, v156, v152
    v_add_f32 v157, v157, v153
    v_add_f32 v154, v154, v158
    v_add_f32 v155, v155, v159
    v_add_f32 v160, v156, v154
    v_add_f32 v162, v157, v155
    s_mov_b64 exec, s[54:55]
    buffer_store_dwordx4 v[160:163], v1, s[{SWS}:{SWS + 3}], s52 offen sc1
    s_mov_b64 exec, -1
    """)
    stamp('t')
    a(f"""
    s_cmp_ge_u32 s2, 28
    s_cbranch_scc1 L_fin
    """)
    if ack2:
        a("s_waitcnt vmcnt(0)")
    a("L_pub2_done:")
    stamp()
    a(f"""
    s_cmp_ge_u32 s2, 28
    s_cbranch_scc1 L_fin
    """)
    if ack2:
        a("s_barrier")
    a(f"""
    s_lshl_b32 s52, s2, 13
    s_lshl_b32 s53, s{SW}, 11
    s_add_u32 s52, s52, s53
    s_add_u32 s52, s52, {W_FS}
    s_mov_b32 s{SSPIN}, {SPIN}
    L_poll2:
    buffer_load_dwordx4 v[128:131], v{VOG}, s[{SWS}:{SWS + 3}], s52 offen sc1
    buffer_load_dwordx4 v[132:135], v{VOG}, s[{SWS}:{SWS + 3}], s52 offen offset:1024 sc1
    s_sub_u32 s{SSPIN}, s{SSPIN}, 1
    s_cbranch_scc1 L_poll2_done
    s_waitcnt vmcnt(0)
    v_cmp_eq_u32 s[54:55], s{STAG}, v129
    v_cmp_eq_u32 vcc, s{STAG}, v131
    s_and_b64 s[54:55], s[54:55], vcc
    v_cmp_eq_u32 vcc, s{STAG}, v133
    s_and_b64 s[54:55], s[54:55], vcc
    v_cmp_eq_u32 vcc, s{STAG}, v135
    s_and_b64 s[54:55], s[54:55], vcc
    s_cmp_eq_u64 s[54:55], -1
    s_cbranch_scc0 L_poll2
    L_poll2_done:
    s_waitcnt vmcnt(0)
    """)
    stamp()
    a(f"""
    v_add_f32 v140, v128, v132
    v_add_f32 v141, v130, v134
    s_lshl_b32 s52, s{SW}, 6
    s_add_u32 s52, s52, {L_RED + 4096}
    v_permlane32_swap_b32 v140, v141
    v_and_b32 v1, 7, v0
    v_add_f32 v140, v140, v141
    v_lshlrev_b32 v1, 3, v1
    v_mov_b32 v141, v140
    v_lshrrev_b32 v22, 5, v0
    v_lshl_add_u32 v1, v22, 2, v1
    v_permlane16_swap_b32 v140, v141
    v_add_u32 v1, s52, v1
    v_add_f32 v140, v140, v141
    s_mov_b32 s54, 0xff
    s_mov_b32 s55, 0xff
    v_add_f32_dpp v140, v140, v140 row_ror:8 {DPPM}
    s_mov_b64 exec, s[54:55]
    ds_write_b32 v1, v140
    s_mov_b64 exec, -1
    v_and_b32 v1, 7, v0
    v_lshlrev_b32 v1, 3, v1
    s_waitcnt lgkmcnt(0)
    s_barrier
    """)
    stamp('t')
    a(f"""
    s_cmp_lg_u32 s{SW}, 0
    s_cbranch_scc1 L_fin
    ds_read_b64 v[140:141], v1 offset:{L_RED + 4096}
    ds_read_b64 v[142:143], v1 offset:{L_RED + 4096 + 64}
    ds_read_b64 v[144:145], v1 offset:{L_RED + 4096 + 128}
    ds_read_b64 v[146:147], v1 offset:{L_RED + 4096 + 192}
    s_lshl_b32 s52, s2, 5
    v_lshlrev_b32 v22, 2, v0
    s_waitcnt lgkmcnt(0)
    v_add_f32 v140, v140, v142
    v_add_f32 v141, v141, v143
    v_add_f32 v144, v144, v146
    v_add_f32 v145, v145, v147
    v_add_f32 v140, v140, v144
    v_add_f32 v141, v141, v145
    v_cvt_pk_bf16_f32 v140, v140, v141
    s_mov_b64 exec, 0xff
    buffer_store_dword v140, v22, s[{SOUT}:{SOUT + 3}], s52 offen
    s_cmp_lg_u32 s2, 0
    s_cbranch_scc1 L_fin
    s_mov_b64 exec, 1
    v_mov_b32 v2, 0
    v_mov_b32 v3, s{STAG}
    buffer_store_dword v3, v2, s[{SWS}:{SWS + 3}], 0 offen sc1
    L_fin:
    s_mov_b64 exec, -1
    """)
    stamp()
    if cnt and stamps:
        a(f"""
        s_waitcnt lgkmcnt(0)
        s_sub_u32 s52, {SPIN}, s24
        s_add_u32 s{STS + 10}, s{STS}, s52
        s_mov_b32 s{STS + 11}, s{STS + 1}
        s_sub_u32 s52, {SPIN}, s25
        s_add_u32 s{STS + 8}, s{STS}, s52
        s_mov_b32 s{STS + 9}, s{STS + 1}
        """)
    flush_stamps(200, 0, 11, 0)
    a("s_endpgm")

    nst[0] = 1
    SJ, SOF = 66, 67
    VK0, VK1, VV0, VV1, VWQ, VWO, VPA, VPV, VFQ = 4, 5, 6, 7, 8, 9, 10, 11, 12
    a(f"""
    L_loader:
    s_setprio {lprio}
    s_sub_u32 s{SJ}, s{SW}, 4
    v_lshrrev_b32 v1, 3, v0
    v_lshlrev_b32 v2, 13, v1
    v_and_b32 v3, 7, v0
    v_lshrrev_b32 v13, 4, v0
    v_and_b32 v13, 1, v13
    v_lshlrev_b32 v13, 1, v13
    v_xor_b32 v3, v3, v13
    s_and_b32 s52, s{SJ}, 1
    s_lshl_b32 s52, s52, 2
    v_xor_b32 v3, s52, v3
    v_lshl_add_u32 v{VWQ}, v3, 4, v2
    s_lshr_b32 s53, s{SS}, 3
    s_mul_i32 s53, s53, {112 * 8192}
    s_lshl_b32 s54, s{SH}, 10
    s_add_u32 s53, s53, s54
    s_and_b32 s54, s{SS}, 7
    s_lshl_b32 s54, s54, 7
    s_add_u32 s53, s53, s54
    s_lshl_b32 s54, s{SJ}, 16
    s_add_u32 s{SOF}, s53, s54
    s_lshl_b32 s56, s{SJ}, 10
    s_add_u32 s57, s56, {L_WQ}
    s_mov_b32 m0, s57
    v_lshrrev_b32 v1, 5, v0
    v_and_b32 v2, 31, v0
    v_xor_b32 v3, v2, v1
    s_lshl_b32 s52, s{SJ}, 1
    v_xor_b32 v3, s52, v3
    v_lshlrev_b32 v3, 4, v3
    v_lshl_add_u32 v{VK0}, v1, 9, v3
    v_xor_b32 v{VK1}, 128, v{VK0}
    s_waitcnt lgkmcnt(0)
    """)
    srd(SWQ, 10, 11, 3670016)
    n = [0]
    written = [0]
    NTOT = 40
    def depth():
        return D if n[0] < 20 + D else D2
    def prog(cnt):
        a(f"""
        v_mov_b32 v{VPV}, {cnt}
        s_mov_b64 exec, 1
        ds_write_b32 v{VPA}, v{VPV}
        s_mov_b64 exec, -1
        """)
        written[0] = cnt
    landed = [0]
    def throttle(d):
        if n[0] - landed[0] >= d:
            a(f"s_waitcnt vmcnt({d - 1})")
            landed[0] = n[0] - d + 1
            c4 = landed[0] // 4 * 4
            if c4 > written[0]:
                prog(c4)
    for i in range(4):
        if i == 3:
            a(f"s_cmp_lt_u32 s{SJ}, 2\ns_cselect_b32 s{SOF}, s{SOF}, {OOB:#x}")
        throttle(D)
        a(f"buffer_load_dwordx4 v{VWQ}, s[{SWQ}:{SWQ + 3}], s{SOF} offen nt lds")
        n[0] += 1
        if i < 3:
            a(f"s_add_u32 m0, m0, 4096\ns_add_u32 s{SOF}, s{SOF}, 262144")
        if i == 0:
            srd_off(SK, 6, 7, 68, 65536)
    def setup_rest():
        srd_off(SV, 8, 9, 68, 65536)
        srd(SWO, 12, 13, 3670016)
        a(f"""
        v_lshrrev_b32 v1, 5, v0
        v_and_b32 v2, 31, v0
        v_lshlrev_b32 v3, 1, v1
        v_xor_b32 v3, v3, v2
        s_and_b32 s52, s{SJ}, 1
        s_lshl_b32 s52, s52, 2
        v_xor_b32 v3, s52, v3
        v_lshlrev_b32 v3, 4, v3
        v_lshl_add_u32 v{VV0}, v1, 9, v3
        v_xor_b32 v{VV1}, 128, v{VV0}
        v_lshrrev_b32 v1, 4, v0
        v_mul_u32_u24 v1, 896, v1
        v_and_b32 v2, 15, v0
        v_lshl_add_u32 v{VWO}, v2, 4, v1
        v_cmp_le_u32 vcc, 8, v2
        s_cmp_eq_u32 s{SCB}, 3
        s_cselect_b64 s[52:53], vcc, 0
        v_mov_b32 v1, {OOB:#x}
        v_cndmask_b32 v{VWO}, v{VWO}, v1, s[52:53]
        s_lshl_b32 s52, s{SJ}, 2
        s_add_u32 s52, s52, {F_PROG}
        v_mov_b32 v{VPA}, s52
        v_and_b32 v1, 3, v0
        v_lshlrev_b32 v1, 2, v1
        v_add_u32 v{VFQ}, {F_Q}, v1
        """)
    if bar4:
        a("s_barrier")
    a("s_mov_b32 m0, s56\ns_nop 0")
    for i in range(16):
        throttle(D)
        a(f"buffer_load_dwordx4 v{VK0 + (i & 1)}, s[{SK}:{SK + 3}], m0 offen nt lds")
        n[0] += 1
        a("s_add_u32 m0, m0, 4096")
        if n[0] == D:
            setup_rest()
            if not bar4:
                a("s_barrier")
            stamp()
            if early4:
                a(f"s_waitcnt vmcnt({D - 4})")
                landed[0] = 4
                prog(4)
        else:
            a("s_nop 0")
    a(f"s_add_u32 m0, s56, {L_V}\ns_mov_b32 s{SOF}, s56")
    for i in range(16):
        throttle(D2)
        a(f"buffer_load_dwordx4 v{VV0 + (i & 1)}, s[{SV}:{SV + 3}], s{SOF} offen nt lds")
        n[0] += 1
        a(f"s_add_u32 m0, m0, 4096\ns_add_u32 s{SOF}, s{SOF}, 4096")
    stamp()
    a(f"""
    s_lshl_b32 s52, s{SH}, 9
    s_lshl_b32 s53, s{SRB}, 5
    s_add_u32 s52, s52, s53
    s_lshl_b32 s53, s{SJ}, 2
    s_add_u32 s52, s52, s53
    s_mul_i32 s52, s52, 896
    s_lshl_b32 s53, s{SCB}, 8
    s_add_u32 s{SOF}, s52, s53
    s_add_u32 m0, s56, {L_WO}
    """)
    lds_wait(VFQ, 1, "v_cmp_ne_u32 vcc, 0, v1", "lfq")
    for i in range(4):
        throttle(D2)
        a(f"buffer_load_dwordx4 v{VWO}, s[{SWO}:{SWO + 3}], s{SOF} offen nt lds")
        n[0] += 1
        if i < 3:
            step = 16 * 896 if i != 1 else 256 * 896 - 16 * 896
            a(f"s_add_u32 m0, m0, 4096\ns_add_u32 s{SOF}, s{SOF}, {step}")
    stamp()
    thr = written[0] + 4
    while thr <= NTOT:
        a(f"s_waitcnt vmcnt({NTOT - thr})")
        prog(thr)
        if thr == 36 and tail:
            stamp()
        thr += 4
    stamp()
    flush_stamps(20, 11, 4, 4)
    a("s_endpgm")
    a("L_end:")
    a("s_endpgm")
    a('.section .rodata,"a"')
    a(".p2align 6")
    out = HEADER + f"; @launch grid=(256,1,1) block=(512,1,1) lds={LDS_BYTES}\n" + a.text() + kernel_desc(k, 256, 102)
    return out

if __name__ == "__main__":
    kw = {}
    for x in sys.argv[2:]:
        key, val = x.lstrip("-").split("=") if "=" in x else (x.lstrip("-"), "1")
        kw[key] = int(val)
    open(sys.argv[1], "w").write(gen(**kw))
```

```python
import struct, sys
from asmlib import *

def f2u(x):
    return struct.unpack("<I", struct.pack("<f", x))[0]

L_K, L_V, L_WQ, L_Q, L_S, L_FL = 0, 65536, 131072, 147456, 148480, 149504
L_WO = L_WQ
L_RED = 0
LDS_BYTES = 149760
F_PROG, F_Q, F_M, F_P, F_R, L_TAG, F_R2 = L_FL, L_FL + 16, L_FL + 32, L_FL + 48, L_FL + 64, L_FL + 80, L_FL + 96
L_P, L_MX = L_S, L_S + 512
W_QA, W_OS, W_FS, W_QB, W_TS = 65536, 262144, 1310720, 1572864, 4 << 20
WS_BYTES = 8 << 20
TAG_INC = 0x9E3779B1
SPIN = 200000
OOB = 0x40000000

def gen(stamps=False, D=8, force_remote=False, warm=0, sleep=1, dbg=-1, qa=1, NA=3, qack=0, pretouch=0, ack2=1, D2=0, qprog=0, early4=1, cnt=0, xq=0, bar4=1, lprio=0, cprio=3, bgon=1, qjunk=1, ack1=1, wpol=0, wpos=6, tail=0, specv=1, rsleep=0, fdelay=0, wat=40, wofirst=0, dirty=0):
    assert 5 <= D <= 20
    D2 = D2 or D
    a = Asm()
    k = NAME + "_kernel"
    SH, SS, SW, STAG = 20, 21, 22, 23
    SK, SV, SWQ, SX, SWO, SWS, SOUT = 24, 28, 32, 36, 40, 44, 48
    MODD, MHI, MAA = 58, 60, 62
    SXCC, SLOC = 64, 65
    SP = 66
    SSPIN, SRB, SCB = 74, 75, 76
    SOG = 77
    STS = 78
    SOSP, SQP = (56, 57)
    nst = [0]
    def stamp(kind="n"):
        if kind == "e" and tail:
            return
        if kind == "t" and not tail:
            return
        if stamps:
            a(f"s_memrealtime s[{STS + 2 * nst[0]}:{STS + 2 * nst[0] + 1}]")
            nst[0] += 1
    def flush_stamps(vtmp, base=0, cnt=12, wave=0):
        if not stamps:
            return
        if dbg >= 0:
            lb = a.label("dbg")
            a(f"""
            s_waitcnt lgkmcnt(0)
            s_cmp_lg_u32 s2, {dbg}
            s_cbranch_scc1 {lb}
            s_cmp_lg_u32 s{SW}, {wave}
            s_cbranch_scc1 {lb}
            s_mov_b32 s52, s16
            s_and_b32 s53, s17, 0xffff
            s_mov_b32 s54, 256
            s_mov_b32 s55, 0x20000
            s_mov_b64 exec, 1
            """)
            for i in range(cnt):
                a(f"s_sub_u32 s56, s{STS + 2 * (i + 1)}, s{STS}")
                a(f"v_mov_b32 v{vtmp}, s56")
                a(f"v_mov_b32 v{vtmp + 2}, {4 * (base + i)}")
                a(f"buffer_store_dword v{vtmp}, v{vtmp + 2}, s[52:55], 0 offen")
                a("s_nop 1")
            a(f"{lb}:")
            a("s_mov_b64 exec, -1")
            return
        a(f"""
        s_waitcnt lgkmcnt(0)
        s_mov_b32 s{SWS}, s18
        s_and_b32 s{SWS + 1}, s19, 0xffff
        s_mov_b32 s{SWS + 2}, {WS_BYTES}
        s_mov_b32 s{SWS + 3}, 0x20000
        s_lshl_b32 s52, s2, 3
        s_add_u32 s52, s52, s{SW}
        s_lshl_b32 s52, s52, 7
        s_add_u32 s52, s52, {W_TS}
        s_mov_b64 exec, 1
        """)
        for i in range(12):
            a(f"v_mov_b32 v{vtmp}, s{STS + 2 * i}")
            a(f"v_mov_b32 v{vtmp + 1}, s{STS + 2 * i + 1}")
            a(f"v_mov_b32 v{vtmp + 2}, {8 * i}")
            a(f"buffer_store_dwordx2 v[{vtmp}:{vtmp + 1}], v{vtmp + 2}, s[{SWS}:{SWS + 3}], s52 offen")
            a("s_nop 1")
        a("s_mov_b64 exec, -1")
    def lds_wait(addr_v, tmp, cmp, name, slp=None):
        slp = sleep if slp is None else slp
        lb = a.label(name)
        a(f"""
        {lb}:
        ds_read_b32 v{tmp}, v{addr_v}
        s_waitcnt lgkmcnt(0)
        {cmp}
        s_cmp_eq_u64 vcc, -1
        """)
        if slp:
            a(f"""
            s_cbranch_scc1 {lb}_ok
            s_sleep {slp}
            s_branch {lb}
            {lb}_ok:
            """)
        else:
            a(f"s_cbranch_scc0 {lb}")
    def srd(reg, lo, hi, size):
        a(f"""
        s_mov_b32 s{reg}, s{lo}
        s_and_b32 s{reg + 1}, s{hi}, 0xffff
        s_mov_b32 s{reg + 2}, {size}
        s_mov_b32 s{reg + 3}, 0x20000
        """)
    def srd_off(reg, lo, hi, off, size):
        a(f"""
        s_add_u32 s{reg}, s{lo}, s{off}
        s_addc_u32 s{reg + 1}, s{hi}, 0
        s_and_b32 s{reg + 1}, s{reg + 1}, 0xffff
        s_mov_b32 s{reg + 2}, {size}
        s_mov_b32 s{reg + 3}, 0x20000
        """)
    def swapb(op, reg, tmp, kinds):
        for kind in kinds:
            a(f"v_mov_b32 v{tmp}, v{reg}")
            a("s_nop 1")
            a(f"v_permlane{kind}_swap_b32 v{reg}, v{tmp}")
            a("s_nop 0")
            a(f"{op} v{reg}, v{reg}, v{tmp}")
    DPPM = "row_mask:0xf bank_mask:0xf"

    a(f"""
    .amdgcn_target "amdgcn-amd-amdhsa--gfx950"
    .text
    .globl {k}
    .p2align 8
    .type {k},@function
    {k}:
    s_cmp_ge_u32 s2, 256
    s_cbranch_scc1 L_end
    s_load_dwordx16 s[4:19], s[0:1], 0
    """)
    if stamps:
        for i in range(78, 102):
            a(f"s_mov_b32 s{i}, 0")
    stamp()
    a(f"""
    v_lshrrev_b32 v1, 6, v0
    s_and_b32 s{SH}, s2, 7
    s_lshr_b32 s{SS}, s2, 3
    v_readfirstlane_b32 s{SW}, v1
    v_and_b32 v0, 63, v0
    s_lshr_b32 s{SRB}, s{SS}, 2
    s_and_b32 s{SCB}, s{SS}, 3
    s_lshl_b32 s52, s{SH}, 25
    s_lshl_b32 s53, s{SS}, 16
    s_add_u32 s52, s52, s53
    s_add_u32 s68, s52, 31457280
    s_cmp_ge_u32 s{SW}, 4
    s_cbranch_scc1 L_loader
    """)

    VN, VG = 2, 3
    VPRA, VFQA, VFSA, VOG = 4, 5, 6, 7
    XA = 8
    VZ = 180
    VOP, VQPO = 184, 185
    a(f"""
    s_setprio {cprio}
    s_getreg_b32 s{SXCC}, hwreg(HW_REG_XCC_ID, 0, 4)
    v_and_b32 v{VN}, 15, v0
    v_lshrrev_b32 v{VG}, 4, v0
    s_lshr_b32 s52, s{SS}, 3
    s_mul_i32 s52, s52, 224
    v_lshl_add_u32 v1, v{VG}, 4, s52
    v_lshl_add_u32 v22, v{VG}, 3, s52
    v_mov_b32 v{VZ}, 0
    v_mov_b32 v{VZ + 1}, 0
    v_mov_b32 v{VZ + 2}, 0
    v_mov_b32 v{VZ + 3}, 0
    v_lshrrev_b32 v23, 3, v0
    v_lshlrev_b32 v23, 12, v23
    v_and_b32 v26, 7, v0
    v_lshl_add_u32 v{VOP}, v26, 4, v23
    v_lshlrev_b32 v{VQPO}, 3, v0
    v_lshlrev_b32 v{VOG}, 4, v0
    s_lshl_b32 s53, s{SH}, 17
    s_lshl_b32 s54, s{SW}, 15
    s_add_u32 s53, s53, s54
    s_lshl_b32 s54, s{SS}, 7
    s_add_u32 s53, s53, s54
    s_add_u32 s{SOSP}, s53, {W_OS}
    s_lshl_b32 s53, s{SH}, 14
    s_lshr_b32 s54, s{SS}, 3
    s_lshl_b32 s54, s54, 12
    s_add_u32 s53, s53, s54
    s_and_b32 s54, s{SS}, 7
    s_lshl_b32 s54, s54, 9
    s_add_u32 s53, s53, s54
    s_lshl_b32 s54, s{SW}, 7
    s_add_u32 s{SQP}, s53, s54
    s_cmp_lg_u32 s{SW}, 0
    s_cbranch_scc1 L_noinit
    v_lshlrev_b32 v27, 2, v0
    v_add_u32 v27, {L_FL}, v27
    s_mov_b64 exec, 0xffffffff
    ds_write_b32 v27, v{VZ}
    s_mov_b64 exec, -1
    L_noinit:
    s_waitcnt lgkmcnt(0)
    """)
    srd(SX, 4, 5, 896)
    a(f"""
    s_load_dword s{STAG}, s[18:19], 0
    buffer_load_dwordx4 v[{XA}:{XA + 3}], v1, s[{SX}:{SX + 3}], 0 offen
    buffer_load_dwordx4 v[{XA + 4}:{XA + 7}], v1, s[{SX}:{SX + 3}], 0 offen offset:64
    buffer_load_dwordx4 v[{XA + 8}:{XA + 11}], v1, s[{SX}:{SX + 3}], 0 offen offset:128
    buffer_load_dwordx2 v[{XA + 12}:{XA + 13}], v22, s[{SX}:{SX + 3}], 0 offen offset:192
    s_barrier
    """)
    srd(SWS, 18, 19, WS_BYTES)
    srd(SOUT, 14, 15, 896)
    nlater = 0
    if qa and qjunk:
        a(f"""
        s_add_u32 s52, s{SQP}, {W_QA}
        s_mov_b64 exec, 0xffff
        buffer_store_dwordx2 v[{VZ}:{VZ + 1}], v{VQPO}, s[{SWS}:{SWS + 3}], s52 offen
        s_mov_b64 exec, -1
        """)
        nlater += 1
    if warm == 2:
        a(f"buffer_store_dwordx4 v[{VZ}:{VZ + 3}], v{VOP}, s[{SWS}:{SWS + 3}], s{SOSP} offen")
        nlater += 1
    if pretouch:
        a(f"""
        s_add_u32 s52, s8, s68
        s_addc_u32 s53, s9, 0
        s_lshl_b32 s54, s{SH}, 9
        s_lshl_b32 s55, s{SRB}, 5
        s_add_u32 s54, s54, s55
        s_mul_i32 s54, s54, 896
        s_add_u32 s54, s12, s54
        s_addc_u32 s55, s13, 0
        s_cmp_eq_u32 s{SW}, 1
        s_cselect_b32 s{SV}, s52, s14
        s_cselect_b32 s{SV + 1}, s53, s15
        s_cmp_eq_u32 s{SW}, 2
        s_cselect_b32 s{SV}, s54, s{SV}
        s_cselect_b32 s{SV + 1}, s55, s{SV + 1}
        s_and_b32 s{SV + 1}, s{SV + 1}, 0xffff
        s_mov_b32 s{SV + 2}, 4
        s_mov_b32 s{SV + 3}, 0x20000
        s_mov_b64 exec, 1
        buffer_load_dword v176, v{VZ}, s[{SV}:{SV + 3}], 0 offen nt
        s_mov_b64 exec, -1
        """)
        nlater += 1
    a(f"""
    s_mov_b32 s{MODD}, 0xffff0000
    s_mov_b32 s{MODD + 1}, 0xffff0000
    s_mov_b32 s{MHI}, 0
    s_mov_b32 s{MHI + 1}, -1
    s_mov_b32 s{MAA}, 0xaaaaaaaa
    s_mov_b32 s{MAA + 1}, 0xaaaaaaaa
    v_and_b32 v1, 3, v0
    v_lshlrev_b32 v1, 2, v1
    v_add_u32 v{VPRA}, {F_PROG}, v1
    v_add_u32 v{VFQA}, {F_Q}, v1
    v_add_u32 v{VFSA}, {F_M}, v1
    """)
    VWA, VWA2 = 24, 25
    a(f"""
    v_lshrrev_b32 v1, 2, v{VN}
    v_and_b32 v27, 3, v{VN}
    v_lshl_add_u32 v22, v{VG}, 3, v1
    v_lshlrev_b32 v22, 7, v22
    v_lshl_add_u32 v22, v27, 3, v22
    v_lshrrev_b32 v23, 1, v1
    v_and_b32 v26, 1, v{VG}
    v_lshl_add_u32 v26, v26, 1, v23
    v_xor_b32 v26, s{SW}, v26
    v_lshl_add_u32 v22, v26, 5, v22
    v_add_u32 v{VWA}, {L_WQ}, v22
    v_lshl_add_u32 v22, v{VG}, 2, v1
    v_lshlrev_b32 v22, 7, v22
    v_lshl_add_u32 v22, v27, 3, v22
    v_lshrrev_b32 v26, 1, v{VG}
    v_lshl_add_u32 v26, v26, 1, v23
    v_xor_b32 v26, s{SW}, v26
    v_lshl_add_u32 v22, v26, 5, v22
    v_add_u32 v{VWA2}, {L_WQ + 96 * 128}, v22
    s_lshl_b32 s52, s{SH}, 14
    s_lshl_b32 s53, s{SW}, 10
    s_add_u32 s52, s52, s53
    s_add_u32 s68, s52, {W_QA if qa else W_QB}
    s_add_u32 s69, s68, 4096
    s_add_u32 s70, s68, 8192
    s_add_u32 s71, s68, 12288
    s_lshl_b32 s52, s{SH}, 17
    s_lshl_b32 s53, s{SRB}, 14
    s_add_u32 s52, s52, s53
    s_lshl_b32 s53, s{SW}, 12
    s_add_u32 s52, s52, s53
    s_add_u32 s{SOG}, s52, {W_OS}
    """)
    lds_wait(VPRA, 1, "v_cmp_le_u32 vcc, 4, v1", "wq")
    stamp('e')
    WB = 28
    for t in range(3):
        for u in range(2):
            r = WB + 4 * t + 2 * u
            a(f"ds_read_b64_tr_b16 v[{r}:{r + 1}], v{VWA} offset:{t * 4096 + u * 512}")
    a(f"ds_read_b64_tr_b16 v[{WB + 12}:{WB + 13}], v{VWA2}")
    QC, QC2 = 44, 48
    a(f"s_waitcnt vmcnt({nlater}) lgkmcnt(0)")
    a(f"v_mfma_f32_16x16x16_bf16 v[{QC2}:{QC2 + 3}], v[{XA + 12}:{XA + 13}], v[{WB + 12}:{WB + 13}], 0")
    for t in range(3):
        cin = "0" if t == 0 else f"v[{QC}:{QC + 3}]"
        a(f"v_mfma_f32_16x16x32_bf16 v[{QC}:{QC + 3}], v[{XA + 4 * t}:{XA + 4 * t + 3}], v[{WB + 4 * t}:{WB + 4 * t + 3}], {cin}")
    a(f"""
    s_add_u32 s{STAG}, s{STAG}, {TAG_INC:#x}
    s_or_b32 s{STAG}, s{STAG}, 1
    s_add_u32 s52, s{SQP}, {W_QA}
    s_add_u32 s53, s{SQP}, {W_QB}
    v_mov_b32 v51, s{STAG}
    s_nop 4
    v_add_f32 v50, v{QC}, v{QC2}
    v_and_b32 v50, 0xfffffff0, v50
    v_or_b32 v50, s{SXCC}, v50
    s_mov_b64 exec, 0xffff
    """)
    if qa:
        a(f"buffer_store_dwordx2 v[50:51], v{VQPO}, s[{SWS}:{SWS + 3}], s52 offen")
    a(f"""
    buffer_store_dwordx2 v[50:51], v{VQPO}, s[{SWS}:{SWS + 3}], s53 offen sc1
    s_mov_b64 exec, -1
    """)
    if qack or not qa:
        a("s_waitcnt vmcnt(0)")
    if qprog:
        lds_wait(VPRA, 1, f"v_cmp_le_u32 vcc, {qprog}, v1", "qp")
    stamp('e')
    QG = 52
    VQA, VKA, VVA = 26, 28, 36
    VPW, VMW, VMR, VPA = 32, 33, 35, 27
    VQ, VKB, VC = 72, 104, 168
    VVB = 192
    VP, VONE, VO, VLA, VOUT = 52, 40, 144, 160, 124
    SBG, STHR = 73, 72
    M2 = 30
    def late_warm():
        pol = ["", " sc1", " nt", " sc1 nt"][wpol]
        a(f"""
        s_lshl_b32 s52, s{SCB}, 10
        s_add_u32 s52, s52, s{SOG}
        buffer_load_dwordx4 v[176:179], v{VOG}, s[{SWS}:{SWS + 3}], s52 offen{pol}
        """)
    def addr_setup():
        a(f"""
        v_and_b32 v1, 1, v{VN}
        v_lshlrev_b32 v22, 9, v1
        v_lshl_add_u32 v22, v{VG}, 4, v22
        v_add_u32 v{VQA}, {L_Q}, v22
        v_lshlrev_b32 v22, 8, v1
        v_lshl_add_u32 v22, v{VG}, 4, v22
        v_add_u32 v{VPA}, {L_P}, v22
        v_xor_b32 v1, v{VG}, v{VN}
        v_lshlrev_b32 v1, 4, v1
        v_lshl_add_u32 v1, v{VN}, 9, v1
        s_lshl_b32 s52, s{SW}, 14
        v_add_u32 v{VKA}, s52, v1
        """)
        for t in range(1, 4):
            a(f"v_xor_b32 v{VKA + t}, {t << 6}, v{VKA}")
        a(f"""
        v_lshrrev_b32 v1, 2, v{VN}
        v_and_b32 v22, 3, v{VN}
        v_lshl_add_u32 v23, v{VG}, 3, v1
        v_lshlrev_b32 v23, 9, v23
        v_lshl_add_u32 v23, v22, 3, v23
        v_and_b32 v22, 1, v{VG}
        v_lshl_add_u32 v1, v22, 2, v1
        s_lshl_b32 s52, s{SW}, 2
        v_xor_b32 v1, s52, v1
        v_lshl_add_u32 v23, v1, 5, v23
        v_add_u32 v{VVA}, {L_V}, v23
        """)
        for b in range(1, 4):
            a(f"v_xor_b32 v{VVA + b}, {b << 5}, v{VVA}")
        a(f"""
        v_lshrrev_b32 v1, 5, v0
        v_and_b32 v22, 31, v0
        v_lshlrev_b32 v23, 8, v1
        v_lshl_add_u32 v23, v22, 1, v23
        s_lshl_b32 s52, s{SW}, 6
        s_add_u32 s52, s52, {L_P}
        v_add_u32 v{VPW}, s52, v23
        s_lshl_b32 s52, s{SW}, 2
        s_add_u32 s52, s52, {L_MX}
        v_lshl_add_u32 v{VMW}, v1, 4, s52
        v_mov_b32 v{VMR}, {L_MX}
        s_lshl_b32 s52, s{SW}, 11
        s_add_u32 s52, s52, {L_WO}
        v_lshl_add_u32 v34, v0, 2, s52
        s_mov_b32 s{M2}, 0xcccccccc
        s_mov_b32 s{M2 + 1}, 0xcccccccc
        """)
        for r in range(4):
            a(f"v_mov_b32 v{VONE + r}, 0x3f803f80")
    def task(kk):
        if kk == 0:
            for blk in range(2):
                for t in range(8):
                    r = VKB + blk * 32 + 4 * t
                    a(f"ds_read_b128 v[{r}:{r + 3}], v{VKA + (t & 3)} offset:{blk * 8192 + (t >> 2) * 256}")
                if blk == 0:
                    a("s_waitcnt lgkmcnt(4)")
        else:
            j = kk - 1
            for b in range(4):
                for u in range(2):
                    r = VVB + 16 * j + 4 * b + 2 * u
                    a(f"ds_read_b64_tr_b16 v[{r}:{r + 1}], v{VVA + b} offset:{j * 16384 + u * 2048}")
        a(f"s_mov_b32 s{SBG}, {kk + 1}")
        a(f"s_mov_b32 s{STHR}, {24 + 4 * kk}")
    def bg(loop):
        lb = a.label("bg")
        a(f"""
        {lb}:
        s_cmp_ge_u32 s{SBG}, 5
        s_cbranch_scc1 {lb}_x
        ds_read_b32 v1, v{VPRA}
        s_waitcnt lgkmcnt(0)
        v_cmp_le_u32 vcc, s{STHR}, v1
        s_cmp_eq_u64 vcc, -1
        s_cbranch_scc0 {lb}_x
        """)
        for kk in range(5):
            if kk < 4:
                a(f"s_cmp_lg_u32 s{SBG}, {kk}\ns_cbranch_scc1 {lb}_t{kk}")
            task(kk)
            a(f"s_branch {lb if loop else lb + '_x'}")
            if kk < 4:
                a(f"{lb}_t{kk}:")
        a(f"{lb}_x:")
    def ensure(kk, slp=None):
        lb = a.label("ens")
        a(f"s_cmp_gt_u32 s{SBG}, {kk}\ns_cbranch_scc1 {lb}")
        lds_wait(VPRA, 1, f"v_cmp_le_u32 vcc, s{STHR}, v1", "e", slp=slp)
        task(kk)
        a(f"{lb}:")

    a(f"""
    s_mov_b32 s{SSPIN}, {SPIN}
    s_mov_b32 s24, 0
    s_mov_b32 s{SBG}, 0
    s_lshl_b32 s{STHR}, s{SW}, 2
    s_add_u32 s{STHR}, s{STHR}, 8
    """)
    def qloads():
        for qi, sr_ in enumerate((68, 69, 70, 71)):
            a(f"buffer_load_dwordx4 v[{QG + 4 * qi}:{QG + 4 * qi + 3}], v{VOG}, s[{SWS}:{SWS + 3}], s{sr_} offen sc1")
    qloads()
    addr_setup()
    a("s_branch L_pollq_issued")
    a("L_pollq:")
    qloads()
    a("L_pollq_issued:")
    if bgon:
        bg(True)
    a(f"""
    s_sub_u32 s{SSPIN}, s{SSPIN}, 1
    s_cbranch_scc1 L_pollq_done
    s_waitcnt vmcnt(0)
    v_cmp_eq_u32 s[54:55], s{STAG}, v{QG + 1}
    """)
    for i in range(3, 16, 2):
        a(f"v_cmp_eq_u32 vcc, s{STAG}, v{QG + i}")
        a("s_and_b64 s[54:55], s[54:55], vcc")
    a("s_cmp_eq_u64 s[54:55], -1")
    if qa:
        a(f"""
        s_cbranch_scc1 L_pollq_done
        s_add_u32 s24, s24, 1
        s_cmp_lg_u32 s24, {NA}
        s_cbranch_scc1 L_pollq
        s_add_u32 s68, s68, {W_QB - W_QA}
        s_add_u32 s69, s69, {W_QB - W_QA}
        s_add_u32 s70, s70, {W_QB - W_QA}
        s_add_u32 s71, s71, {W_QB - W_QA}
        s_branch L_pollq
        """)
    else:
        a("s_cbranch_scc0 L_pollq")
    a(f"""
    L_pollq_done:
    s_waitcnt vmcnt(0)
    """)
    if cnt:
        a(f"s_mov_b32 s24, s{SSPIN}")
    a(f"""
    v_add_f32 v22, v{QG}, v{QG + 4}
    v_add_f32 v23, v{QG + 2}, v{QG + 6}
    v_add_f32 v42, v{QG + 8}, v{QG + 12}
    v_add_f32 v43, v{QG + 10}, v{QG + 14}
    v_xor_b32 v1, v{QG}, v{QG + 2}
    v_add_f32 v22, v22, v42
    v_add_f32 v23, v23, v43
    v_mov_b32 v42, 0x3f803f80
    v_mov_b32 v43, 0x3f803f80
    v_cvt_pk_bf16_f32 v22, v22, v23
    s_lshl_b32 s55, s{SW}, 8
    s_add_u32 s55, s55, {L_Q}
    v_lshl_add_u32 v23, v0, 2, s55
    ds_write_b32 v23, v22
    v_xor_b32 v22, v{QG}, v{QG + 4}
    v_or_b32 v1, v1, v22
    """)
    for i in (6, 8, 10, 12, 14):
        a(f"v_xor_b32 v22, v{QG}, v{QG + i}")
        a("v_or_b32 v1, v1, v22")
    a(f"""
    v_xor_b32 v22, s{SXCC}, v{QG}
    v_or_b32 v1, v1, v22
    v_and_b32 v1, 15, v1
    v_cmp_eq_u32 vcc, 0, v1
    s_lshl_b32 s55, s{SW}, 2
    s_add_u32 s55, s55, {F_Q}
    v_mov_b32 v1, s55
    s_cmp_eq_u64 vcc, -1
    s_cselect_b32 s54, 3, 1
    v_mov_b32 v23, s54
    v_mov_b32 v22, {L_TAG}
    v_mov_b32 v42, s{STAG}
    s_mov_b64 exec, 1
    ds_write_b32 v22, v42
    ds_write_b32 v1, v23
    s_mov_b64 exec, -1
    v_mov_b32 v42, 0x3f803f80
    """)
    if warm == 1:
        for kk in range(4):
            a(f"buffer_load_dwordx4 v[{QG + 4 * kk}:{QG + 4 * kk + 3}], v{VOG}, s[{SWS}:{SWS + 3}], s{SOG} offen offset:{kk * 1024} sc1")
    a(f"""
    L_fqw:
    ds_read_b32 v22, v{VFQA}
    s_waitcnt lgkmcnt(0)
    v_cmp_ne_u32 vcc, 0, v22
    s_cmp_eq_u64 vcc, -1
    s_cbranch_scc1 L_fqw_ok
    """)
    if bgon:
        bg(False)
    a(f"""
    s_branch L_fqw
    L_fqw_ok:
    """)
    for t in range(8):
        a(f"ds_read_b128 v[{VQ + 4 * t}:{VQ + 4 * t + 3}], v{VQA} offset:{t * 64}")
    a(f"""
    v_cmp_eq_u32 vcc, 3, v22
    s_cmp_eq_u64 vcc, -1
    s_cselect_b32 s{SLOC}, 1, 0
    """)
    if force_remote:
        a(f"s_mov_b32 s{SLOC}, 0")
    stamp('e')
    if warm == 3 and wpos == 3:
        late_warm()
    ensure(0)
    a("s_waitcnt lgkmcnt(0)")
    for t in range(8):
        for blk in range(2):
            c = VC + 4 * blk
            r = VKB + blk * 32 + 4 * t
            cin = "0" if t == 0 else f"v[{c}:{c + 3}]"
            a(f"v_mfma_f32_16x16x32_bf16 v[{c}:{c + 3}], v[{VQ + 4 * t}:{VQ + 4 * t + 3}], v[{r}:{r + 3}], {cin}")
    C = 1.4426950408889634 / 16.0
    a(f"""
    s_mov_b32 s52, {f2u(C):#x}
    s_mov_b32 s54, 1
    s_mov_b32 s55, 1
    s_lshl_b32 s53, s{SW}, 2
    s_add_u32 s53, s53, {F_M}
    v_mov_b32 v1, s53
    v_mov_b32 v72, 1
    s_nop 0
    v_cndmask_b32 v22, v{VC}, v{VC + 1}, s[{MHI}:{MHI + 1}]
    v_cndmask_b32 v23, v{VC + 4}, v{VC + 5}, s[{MHI}:{MHI + 1}]
    v_cndmask_b32 v22, v22, v23, s[{MODD}:{MODD + 1}]
    s_nop 1
    v_max_f32_dpp v23, v22, v22 quad_perm:[1,0,3,2] {DPPM}
    s_nop 1
    v_max_f32_dpp v23, v23, v23 quad_perm:[2,3,0,1] {DPPM}
    s_nop 1
    v_max_f32_dpp v23, v23, v23 row_half_mirror {DPPM}
    s_nop 1
    v_max_f32_dpp v23, v23, v23 row_mirror {DPPM}
    v_mov_b32 v73, v23
    s_nop 1
    v_permlane16_swap_b32 v23, v73
    s_nop 0
    v_max_f32 v23, v23, v73
    s_mov_b64 exec, s[54:55]
    ds_write_b32 v{VMW}, v23
    s_mov_b64 exec, 1
    ds_write_b32 v1, v72
    s_mov_b64 exec, -1
    """)
    stamp('e')
    a(f"""
    L_mw:
    ds_read_b32 v73, v{VFSA}
    ds_read_b128 v[76:79], v{VMR}
    ds_read_b128 v[80:83], v{VMR} offset:16
    s_waitcnt lgkmcnt(0)
    v_cmp_ne_u32 vcc, 0, v73
    s_cmp_eq_u64 vcc, -1
    s_cbranch_scc0 L_mw
    v_max3_f32 v76, v76, v77, v78
    v_max3_f32 v80, v80, v81, v82
    v_max_f32 v76, v76, v79
    v_max_f32 v80, v80, v83
    v_mul_f32 v76, s52, v76
    v_mul_f32 v80, s52, v80
    v_cndmask_b32 v77, v76, v80, s[{MHI}:{MHI + 1}]
    v_fma_f32 v22, v22, s52, -v77
    v_exp_f32 v22, v22
    v_add_u32 v1, 16, v1
    v_cndmask_b32 v{VOUT + 2}, v76, v80, s[{M2}:{M2 + 1}]
    v_cvt_pk_bf16_f32 v22, v22, v22
    ds_write_b16 v{VPW}, v22
    s_mov_b64 exec, 1
    ds_write_b32 v1, v72
    s_mov_b64 exec, -1
    v_mov_b32 v{VOUT + 3}, s{STAG}
    """)
    stamp('e')
    a(f"""
    L_pw:
    ds_read_b32 v73, v{VFSA} offset:16
    """)
    for j in range(4):
        a(f"ds_read_b128 v[{VP + 4 * j}:{VP + 4 * j + 3}], v{VPA} offset:{j * 64}")
    a(f"""
    s_waitcnt lgkmcnt(0)
    v_cmp_ne_u32 vcc, 0, v73
    s_cmp_eq_u64 vcc, -1
    s_cbranch_scc0 L_pw
    """)
    stamp()
    if warm == 3 and wpos == 6:
        late_warm()
    for j in range(4):
        if j == 3 and specv:
            lb = a.label("v3")
            a(f"""
            s_cmp_gt_u32 s{SBG}, 4
            s_cbranch_scc1 {lb}_ok
            {lb}:
            ds_read_b32 v1, v{VPRA}
            """)
            for b in range(4):
                for u in range(2):
                    r = VVB + 48 + 4 * b + 2 * u
                    a(f"ds_read_b64_tr_b16 v[{r}:{r + 1}], v{VVA + b} offset:{3 * 16384 + u * 2048}")
            a(f"""
            s_waitcnt lgkmcnt(0)
            v_cmp_le_u32 vcc, 36, v1
            s_cmp_eq_u64 vcc, -1
            s_cbranch_scc0 {lb}
            {lb}_ok:
            """)
        else:
            ensure(j + 1, slp=(0 if j == 3 else None))
        a("s_waitcnt lgkmcnt(0)")
        if j == 3:
            stamp('t')
        cin = "0" if j == 0 else f"v[{VLA}:{VLA + 3}]"
        a(f"v_mfma_f32_16x16x32_bf16 v[{VLA}:{VLA + 3}], v[{VP + 4 * j}:{VP + 4 * j + 3}], v[{VONE}:{VONE + 3}], {cin}")
        for b in range(4):
            c = VO + 4 * b
            r = VVB + 16 * j + 4 * b
            cin = "0" if j == 0 else f"v[{c}:{c + 3}]"
            a(f"v_mfma_f32_16x16x32_bf16 v[{c}:{c + 3}], v[{VP + 4 * j}:{VP + 4 * j + 3}], v[{r}:{r + 3}], {cin}")
    a(f"""
    s_nop 3
    v_cndmask_b32 v1, v{VLA}, v{VLA + 1}, s[{M2}:{M2 + 1}]
    v_cndmask_b32 v{VOUT + 2}, v{VOUT + 2}, v1, s[{MAA}:{MAA + 1}]
    """)
    for hd in range(2):
        a(f"v_cndmask_b32 v{22 + hd}, v{VO + hd}, v{VO + 4 + hd}, s[{MODD}:{MODD + 1}]")
    for hd in range(2):
        a(f"v_cndmask_b32 v{72 + hd}, v{VO + 8 + hd}, v{VO + 12 + hd}, s[{MODD}:{MODD + 1}]")
    for hd in range(2):
        a(f"v_cndmask_b32 v{VOUT + hd}, v{22 + hd}, v{72 + hd}, s[{MHI}:{MHI + 1}]")
    a(f"""
    s_cmp_eq_u32 s{SLOC}, 0
    s_cbranch_scc1 L_pub_remote
    buffer_store_dwordx4 v[{VOUT}:{VOUT + 3}], v{VOP}, s[{SWS}:{SWS + 3}], s{SOSP} offen
    s_branch L_pub_done
    L_pub_remote:
    buffer_store_dwordx4 v[{VOUT}:{VOUT + 3}], v{VOP}, s[{SWS}:{SWS + 3}], s{SOSP} offen sc1
    L_pub_done:
    """)
    stamp()
    VW = 72
    VRW, VRF, VFSP = 104, 105, 106
    a(f"""
    s_mov_b32 s54, 0x05040100
    s_mov_b32 s55, 0x07060302
    s_lshl_b32 s52, s{SW}, 9
    s_add_u32 s52, s52, {L_RED}
    v_lshl_add_u32 v{VRW}, v0, 3, s52
    v_and_b32 v1, 3, v0
    v_max_u32 v1, 1, v1
    v_lshlrev_b32 v1, 2, v1
    v_add_u32 v{VRF}, {F_R}, v1
    v_lshrrev_b32 v1, 3, v0
    v_lshlrev_b32 v1, 13, v1
    v_and_b32 v22, 7, v0
    v_lshl_add_u32 v{VFSP}, v22, 4, v1
    s_lshl_b32 s52, s{SCB}, 16
    s_lshl_b32 s53, s{SH}, 3
    s_add_u32 s53, s53, s{SRB}
    s_lshl_b32 s53, s53, 7
    s_add_u32 s52, s52, s53
    s_add_u32 s24, s52, {W_FS}
    s_cmp_eq_u32 s{SCB}, 3
    s_cselect_b32 s27, 0, -1
    s_mov_b32 s26, -1
    v_mov_b32 v161, s{STAG}
    v_mov_b32 v163, s{STAG}
    s_lshl_b32 s52, s{SW}, 2
    s_add_u32 s52, s52, {F_R}
    v_mov_b32 v107, s52
    v_mov_b32 v108, 1
    """)
    G = 128
    MX, O0, O1, LA, T = 144, 145, 146, 147, 148
    E = 152
    def wo_prep():
        lds_wait(VPRA, 1, "v_cmp_le_u32 vcc, 40, v1", "wo", slp=0)
        for hd in range(2):
            for jj in range(4):
                r = VW + 8 * hd + 2 * jj
                a(f"ds_read2st64_b32 v[{r}:{r + 1}], v34 offset0:{hd * 32 + 2 * jj} offset1:{hd * 32 + 2 * jj + 1}")
        a("s_waitcnt lgkmcnt(0)")
        for hd in range(2):
            for i in range(4):
                lo, hi = VW + 8 * hd + 2 * i, VW + 8 * hd + 2 * i + 1
                a(f"v_perm_b32 v{88 + 8 * hd + 2 * i}, v{hi}, v{lo}, s54")
                a(f"v_perm_b32 v{89 + 8 * hd + 2 * i}, v{hi}, v{lo}, s55")
    def gloads():
        for kk in range(4):
            a(f"buffer_load_dwordx4 v[{G + 4 * kk}:{G + 4 * kk + 3}], v{VOG}, s[{SWS}:{SWS + 3}], s{SOG} offen offset:{kk * 1024} sc1")
    if wofirst:
        wo_prep()
    if ack1:
        a("s_waitcnt vmcnt(0)")
    else:
        a(f"s_cmp_lg_u32 s{SLOC}, 0\ns_cbranch_scc1 L_noack1\ns_waitcnt vmcnt(0)\nL_noack1:")
    a(f"s_mov_b32 s{SSPIN}, {SPIN}")
    if not wofirst:
        gloads()
        wo_prep()
        a("s_branch L_poll1_issued")
    a("L_poll1:")
    gloads()
    a("L_poll1_issued:")
    a(f"""
    s_sub_u32 s{SSPIN}, s{SSPIN}, 1
    s_cselect_b32 s25, 1, 0
    s_waitcnt vmcnt(0)
    v_max3_f32 v{MX}, v{G + 2}, v{G + 6}, v{G + 10}
    v_max_f32 v{MX}, v{MX}, v{G + 14}
    v_cmp_eq_u32 s[52:53], s{STAG}, v{G + 3}
    v_cmp_eq_u32 vcc, s{STAG}, v{G + 7}
    v_max_f32_dpp v{MX}, v{MX}, v{MX} row_ror:8 {DPPM}
    s_and_b64 s[52:53], s[52:53], vcc
    v_mov_b32 v{T}, v{MX}
    v_cmp_eq_u32 vcc, s{STAG}, v{G + 11}
    s_and_b64 s[52:53], s[52:53], vcc
    v_permlane16_swap_b32 v{MX}, v{T}
    v_cmp_eq_u32 vcc, s{STAG}, v{G + 15}
    v_max_f32 v{MX}, v{MX}, v{T}
    s_and_b64 s[52:53], s[52:53], vcc
    v_mov_b32 v{T}, v{MX}
    s_cmp_eq_u64 s[52:53], -1
    s_cbranch_scc1 L_poll1_done
    s_cmp_eq_u32 s25, 0
    s_cbranch_scc1 L_poll1
    L_poll1_done:
    v_permlane32_swap_b32 v{MX}, v{T}
    s_nop 0
    """)
    if cnt:
        a(f"s_mov_b32 s25, s{SSPIN}")
    stamp()
    a(f"v_max_f32 v{MX}, v{MX}, v{T}")
    for kk in range(4):
        a(f"v_sub_f32 v{E + kk}, v{G + 4 * kk + 2}, v{MX}")
    for kk in range(4):
        a(f"v_exp_f32 v{E + kk}, v{E + kk}")
    a("s_nop 0")
    for kk in range(4):
        op = "v_mul_f32_dpp" if kk == 0 else "v_fmac_f32_dpp"
        a(f"{op} v{O0}, v{E + kk}, v{G + 4 * kk} quad_perm:[0,0,0,0] {DPPM}")
        a(f"{op} v{O1}, v{E + kk}, v{G + 4 * kk + 1} quad_perm:[2,2,2,2] {DPPM}")
        a(f"{op} v{LA}, v{E + kk}, v{G + 4 * kk + 2} quad_perm:[0,0,2,2] {DPPM}")
    a(f"""
    v_mov_b32 v{T}, v{LA}
    s_nop 0
    v_permlane32_swap_b32 v{O0}, v{O1}
    v_permlane32_swap_b32 v{LA}, v{T}
    v_add_f32 v{O0}, v{O0}, v{O1}
    v_add_f32 v{LA}, v{LA}, v{T}
    s_nop 1
    v_permlane16_swap_b32 v{O0}, v{LA}
    s_nop 0
    v_add_f32 v{O0}, v{O0}, v{LA}
    s_nop 1
    v_add_f32_dpp v{O0}, v{O0}, v{O0} row_ror:8 {DPPM}
    s_nop 1
    v_mov_b32_dpp v{T}, v{O0} quad_perm:[1,1,3,3] {DPPM}
    v_rcp_f32 v{LA}, v{O0}
    v_cvt_pk_bf16_f32 v{O1}, v{O0}, v{T}
    s_nop 0
    """)
    for i in range(4):
        a(f"v_readlane_b32 s{SP + i}, v{O1}, {2 * i}")
        a(f"v_readlane_b32 s{SP + 4 + i}, v{O1}, {32 + 2 * i}")
    a(f"v_readlane_b32 s52, v{LA}, 17")
    a(f"v_readlane_b32 s53, v{LA}, 19")
    for i in range(4):
        for hd in range(2):
            for hf in range(2):
                acc = 152 + 2 * hd + hf
                src2 = "0" if i == 0 else f"v{acc}"
                a(f"v_dot2_f32_bf16 v{acc}, s{SP + 4 * hd + i}, v{88 + 8 * hd + 2 * i + hf}, {src2}")
    stamp('t')
    a(f"""
    s_nop 0
    v_mul_f32 v156, s52, v152
    v_mul_f32 v157, s52, v153
    s_nop 0
    v_fmac_f32 v156, s53, v154
    v_fmac_f32 v157, s53, v155
    s_cmp_eq_u32 s{SW}, 0
    s_cbranch_scc1 L_red0
    ds_write_b64 v{VRW}, v[156:157]
    s_mov_b64 exec, 1
    ds_write_b32 v107, v108
    s_mov_b64 exec, -1
    s_cmp_ge_u32 s2, 28
    s_cbranch_scc1 L_fin
    s_branch L_final
    L_red0:
    v_lshlrev_b32 v1, 3, v0
    L_redw:
    ds_read_b32 v22, v{VRF}
    ds_read_b64 v[152:153], v1 offset:{L_RED + 512}
    ds_read_b64 v[154:155], v1 offset:{L_RED + 1024}
    ds_read_b64 v[158:159], v1 offset:{L_RED + 1536}
    s_waitcnt lgkmcnt(0)
    v_cmp_ne_u32 vcc, 0, v22
    s_cmp_eq_u64 vcc, -1
    s_cbranch_scc0 L_redw
    """)
    stamp('t')
    a(f"""
    v_add_f32 v156, v156, v152
    v_add_f32 v157, v157, v153
    v_add_f32 v154, v154, v158
    v_add_f32 v155, v155, v159
    v_add_f32 v160, v156, v154
    v_add_f32 v162, v157, v155
    s_mov_b64 exec, s[26:27]
    buffer_store_dwordx4 v[160:163], v{VFSP}, s[{SWS}:{SWS + 3}], s24 offen sc1
    s_mov_b64 exec, -1
    """)
    stamp('t')
    a(f"""
    s_cmp_ge_u32 s2, 28
    s_cbranch_scc1 L_fin
    """)
    if fdelay:
        a(f"s_sleep {fdelay}")
    else:
        a("s_waitcnt vmcnt(0)")
    a(f"""
    L_final:
    s_lshl_b32 s52, s2, 13
    s_lshl_b32 s53, s{SW}, 11
    s_add_u32 s52, s52, s53
    s_add_u32 s52, s52, {W_FS}
    v_and_b32 v1, 7, v0
    v_lshlrev_b32 v1, 3, v1
    v_lshrrev_b32 v22, 5, v0
    v_lshl_add_u32 v23, v22, 2, v1
    s_lshl_b32 s53, s{SW}, 6
    s_add_u32 s53, s53, {L_RED + 4096}
    v_add_u32 v23, s53, v23
    v_add_u32 v107, {F_R2 - F_R}, v107
    v_add_u32 v{VRF}, {F_R2 - F_R}, v{VRF}
    s_mov_b32 s54, 0xff
    s_mov_b32 s55, 0xff
    s_mov_b32 s{SSPIN}, {SPIN}
    s_barrier
    L_poll2:
    buffer_load_dwordx4 v[128:131], v{VOG}, s[{SWS}:{SWS + 3}], s52 offen sc1
    buffer_load_dwordx4 v[132:135], v{VOG}, s[{SWS}:{SWS + 3}], s52 offen offset:1024 sc1
    s_sub_u32 s{SSPIN}, s{SSPIN}, 1
    s_cbranch_scc1 L_poll2_done
    s_waitcnt vmcnt(0)
    v_cmp_eq_u32 s[24:25], s{STAG}, v129
    v_cmp_eq_u32 vcc, s{STAG}, v131
    s_and_b64 s[24:25], s[24:25], vcc
    v_cmp_eq_u32 vcc, s{STAG}, v133
    s_and_b64 s[24:25], s[24:25], vcc
    v_cmp_eq_u32 vcc, s{STAG}, v135
    s_and_b64 s[24:25], s[24:25], vcc
    s_cmp_eq_u64 s[24:25], -1
    s_cbranch_scc0 L_poll2
    L_poll2_done:
    s_waitcnt vmcnt(0)
    """)
    stamp()
    a(f"""
    v_add_f32 v140, v128, v132
    v_add_f32 v141, v130, v134
    s_nop 1
    v_permlane32_swap_b32 v140, v141
    s_nop 0
    v_add_f32 v140, v140, v141
    s_nop 0
    v_mov_b32 v141, v140
    s_nop 1
    v_permlane16_swap_b32 v140, v141
    s_nop 0
    v_add_f32 v140, v140, v141
    s_nop 1
    v_add_f32_dpp v140, v140, v140 row_ror:8 {DPPM}
    s_mov_b64 exec, s[54:55]
    ds_write_b32 v23, v140
    s_cmp_eq_u32 s{SW}, 0
    s_cbranch_scc1 L_fin0
    s_mov_b64 exec, 1
    ds_write_b32 v107, v108
    s_branch L_fin
    L_fin0:
    s_mov_b64 exec, -1
    s_lshl_b32 s52, s2, 5
    v_lshlrev_b32 v22, 2, v0
    L_finw:
    ds_read_b32 v23, v{VRF}
    ds_read_b64 v[140:141], v1 offset:{L_RED + 4096}
    ds_read_b64 v[142:143], v1 offset:{L_RED + 4096 + 64}
    ds_read_b64 v[144:145], v1 offset:{L_RED + 4096 + 128}
    ds_read_b64 v[146:147], v1 offset:{L_RED + 4096 + 192}
    s_waitcnt lgkmcnt(0)
    v_cmp_ne_u32 vcc, 0, v23
    s_cmp_eq_u64 vcc, -1
    s_cbranch_scc0 L_finw
    """)
    stamp('t')
    a(f"""
    v_add_f32 v140, v140, v142
    v_add_f32 v141, v141, v143
    v_add_f32 v144, v144, v146
    v_add_f32 v145, v145, v147
    v_add_f32 v140, v140, v144
    v_add_f32 v141, v141, v145
    v_cvt_pk_bf16_f32 v140, v140, v141
    s_mov_b64 exec, 0xff
    buffer_store_dword v140, v22, s[{SOUT}:{SOUT + 3}], s52 offen
    s_cmp_lg_u32 s2, 0
    s_cbranch_scc1 L_fin
    s_mov_b64 exec, 1
    v_mov_b32 v2, 0
    v_mov_b32 v3, s{STAG}
    buffer_store_dword v3, v2, s[{SWS}:{SWS + 3}], 0 offen sc1
    L_fin:
    s_mov_b64 exec, -1
    """)
    stamp()
    if cnt and stamps:
        a(f"""
        s_waitcnt lgkmcnt(0)
        s_sub_u32 s52, {SPIN}, s25
        s_add_u32 s{STS + 8}, s{STS}, s52
        s_mov_b32 s{STS + 9}, s{STS + 1}
        """)
    flush_stamps(200, 0, 11, 0)
    a("s_endpgm")

    nst[0] = 1
    SJ, SOF = 66, 67
    VK0, VK1, VV0, VV1, VWQ, VWO, VPA, VPV, VFQ = 4, 5, 6, 7, 8, 9, 10, 11, 12
    a(f"""
    L_loader:
    s_setprio {lprio}
    s_sub_u32 s{SJ}, s{SW}, 4
    v_lshrrev_b32 v1, 3, v0
    v_lshlrev_b32 v2, 13, v1
    v_and_b32 v3, 7, v0
    v_lshrrev_b32 v13, 4, v0
    v_and_b32 v13, 1, v13
    v_lshlrev_b32 v13, 1, v13
    v_xor_b32 v3, v3, v13
    s_and_b32 s52, s{SJ}, 1
    s_lshl_b32 s52, s52, 2
    v_xor_b32 v3, s52, v3
    v_lshl_add_u32 v{VWQ}, v3, 4, v2
    s_lshr_b32 s53, s{SS}, 3
    s_mul_i32 s53, s53, {112 * 8192}
    s_lshl_b32 s54, s{SH}, 10
    s_add_u32 s53, s53, s54
    s_and_b32 s54, s{SS}, 7
    s_lshl_b32 s54, s54, 7
    s_add_u32 s53, s53, s54
    s_lshl_b32 s54, s{SJ}, 16
    s_add_u32 s{SOF}, s53, s54
    s_lshl_b32 s56, s{SJ}, 10
    s_add_u32 s57, s56, {L_WQ}
    s_mov_b32 m0, s57
    v_lshrrev_b32 v1, 5, v0
    v_and_b32 v2, 31, v0
    v_xor_b32 v3, v2, v1
    s_lshl_b32 s52, s{SJ}, 1
    v_xor_b32 v3, s52, v3
    v_lshlrev_b32 v3, 4, v3
    v_lshl_add_u32 v{VK0}, v1, 9, v3
    v_xor_b32 v{VK1}, 128, v{VK0}
    s_waitcnt lgkmcnt(0)
    """)
    srd(SWQ, 10, 11, 3670016)
    n = [0]
    written = [0]
    NTOT = 40
    def depth():
        return D if n[0] < 20 + D else D2
    def prog(cnt):
        a(f"""
        v_mov_b32 v{VPV}, {cnt}
        s_mov_b64 exec, 1
        ds_write_b32 v{VPA}, v{VPV}
        s_mov_b64 exec, -1
        """)
        written[0] = cnt
    landed = [0]
    def lwarm():
        srd(SWS, 18, 19, WS_BYTES)
        a(f"""
        s_lshl_b32 s52, s{SH}, 17
        s_lshl_b32 s53, s{SRB}, 14
        s_add_u32 s52, s52, s53
        s_lshl_b32 s53, s{SJ}, 12
        s_add_u32 s52, s52, s53
        s_lshl_b32 s53, s{SCB}, 10
        s_add_u32 s52, s52, s53
        s_add_u32 s52, s52, {W_OS}
        v_lshlrev_b32 v13, 4, v0
        buffer_load_dwordx4 v[16:19], v13, s[{SWS}:{SWS + 3}], s52 offen
        """)
    def throttle(d):
        if n[0] - landed[0] >= d:
            a(f"s_waitcnt vmcnt({d - 1})")
            landed[0] = n[0] - d + 1
            c4 = landed[0] // 4 * 4
            if c4 > written[0]:
                prog(c4)
    for i in range(4):
        if i == 3:
            a(f"s_cmp_lt_u32 s{SJ}, 2\ns_cselect_b32 s{SOF}, s{SOF}, {OOB:#x}")
        throttle(D)
        a(f"buffer_load_dwordx4 v{VWQ}, s[{SWQ}:{SWQ + 3}], s{SOF} offen nt lds")
        n[0] += 1
        if i < 3:
            a(f"s_add_u32 m0, m0, 4096\ns_add_u32 s{SOF}, s{SOF}, 262144")
        if i == 0:
            srd_off(SK, 6, 7, 68, 65536)
    def setup_rest():
        srd_off(SV, 8, 9, 68, 65536)
        srd(SWO, 12, 13, 3670016)
        a(f"""
        v_lshrrev_b32 v1, 5, v0
        v_and_b32 v2, 31, v0
        v_lshlrev_b32 v3, 1, v1
        v_xor_b32 v3, v3, v2
        s_and_b32 s52, s{SJ}, 1
        s_lshl_b32 s52, s52, 2
        v_xor_b32 v3, s52, v3
        v_lshlrev_b32 v3, 4, v3
        v_lshl_add_u32 v{VV0}, v1, 9, v3
        v_xor_b32 v{VV1}, 128, v{VV0}
        v_lshrrev_b32 v1, 4, v0
        v_mul_u32_u24 v1, 896, v1
        v_and_b32 v2, 15, v0
        v_lshl_add_u32 v{VWO}, v2, 4, v1
        v_cmp_le_u32 vcc, 8, v2
        s_cmp_eq_u32 s{SCB}, 3
        s_cselect_b64 s[52:53], vcc, 0
        v_mov_b32 v1, {OOB:#x}
        v_cndmask_b32 v{VWO}, v{VWO}, v1, s[52:53]
        s_lshl_b32 s52, s{SJ}, 2
        s_add_u32 s52, s52, {F_PROG}
        v_mov_b32 v{VPA}, s52
        v_and_b32 v1, 3, v0
        v_lshlrev_b32 v1, 2, v1
        v_add_u32 v{VFQ}, {F_Q}, v1
        """)
    if bar4:
        a("s_barrier")
    a("s_mov_b32 m0, s56\ns_nop 0")
    for i in range(16):
        throttle(D)
        a(f"buffer_load_dwordx4 v{VK0 + (i & 1)}, s[{SK}:{SK + 3}], m0 offen nt lds")
        n[0] += 1
        a("s_add_u32 m0, m0, 4096")
        if n[0] == D:
            setup_rest()
            if not bar4:
                a("s_barrier")
            stamp()
            if early4:
                a(f"s_waitcnt vmcnt({D - 4})")
                landed[0] = 4
                prog(4)
        else:
            a("s_nop 0")
    a(f"s_add_u32 m0, s56, {L_V}\ns_mov_b32 s{SOF}, s56")
    for i in range(16):
        throttle(D2)
        a(f"buffer_load_dwordx4 v{VV0 + (i & 1)}, s[{SV}:{SV + 3}], s{SOF} offen nt lds")
        n[0] += 1
        a(f"s_add_u32 m0, m0, 4096\ns_add_u32 s{SOF}, s{SOF}, 4096")
    stamp()
    a(f"""
    s_lshl_b32 s52, s{SH}, 9
    s_lshl_b32 s53, s{SRB}, 5
    s_add_u32 s52, s52, s53
    s_lshl_b32 s53, s{SJ}, 2
    s_add_u32 s52, s52, s53
    s_mul_i32 s52, s52, 896
    s_lshl_b32 s53, s{SCB}, 8
    s_add_u32 s{SOF}, s52, s53
    s_add_u32 m0, s56, {L_WO}
    """)
    lds_wait(VFQ, 1, "v_cmp_ne_u32 vcc, 0, v1", "lfq")
    for i in range(4):
        throttle(D2)
        a(f"buffer_load_dwordx4 v{VWO}, s[{SWO}:{SWO + 3}], s{SOF} offen nt lds")
        n[0] += 1
        if i < 3:
            step = 16 * 896 if i != 1 else 256 * 896 - 16 * 896
            a(f"s_add_u32 m0, m0, 4096\ns_add_u32 s{SOF}, s{SOF}, {step}")
    extra = 0
    if warm == 4:
        lwarm()
        extra = 1
    stamp()
    thr = written[0] + 4
    while thr <= NTOT:
        a(f"s_waitcnt vmcnt({NTOT - thr + extra})")
        prog(thr)
        if thr == 36 and tail:
            stamp()
        thr += 4
    stamp()
    if dirty:
        srd(SWS, 18, 19, WS_BYTES)
        a(f"""
        s_lshl_b32 s52, s2, 2
        s_add_u32 s52, s52, s{SJ}
        s_mul_i32 s52, s52, {dirty * 1024}
        s_add_u32 s52, s52, {5 << 20}
        v_lshlrev_b32 v13, 4, v0
        """)
        for i in range(dirty):
            a(f"buffer_store_dwordx4 v[16:19], v13, s[{SWS}:{SWS + 3}], s52 offen")
            a("s_add_u32 s52, s52, 1024")
    flush_stamps(20, 11, 4, 4)
    a("s_endpgm")
    a("L_end:")
    a("s_endpgm")
    a('.section .rodata,"a"')
    a(".p2align 6")
    out = HEADER + f"; @launch grid=(256,1,1) block=(512,1,1) lds={LDS_BYTES}\n" + a.text() + kernel_desc(k, 256, 102)
    return out

if __name__ == "__main__":
    kw = {}
    for x in sys.argv[2:]:
        key, val = x.lstrip("-").split("=") if "=" in x else (x.lstrip("-"), "1")
        kw[key] = int(val)
    open(sys.argv[1], "w").write(gen(**kw))
```

```python
import struct, sys
from asmlib import *

def f2u(x):
    return struct.unpack("<I", struct.pack("<f", x))[0]

L_K, L_V, L_WQ, L_Q, L_S, L_FL = 0, 65536, 131072, 147456, 148480, 149504
L_WO = L_WQ
L_RED = 0
LDS_BYTES = 149760
F_PROG, F_Q, F_M, F_P, F_R, L_TAG, F_R2, F_L = L_FL, L_FL + 16, L_FL + 32, L_FL + 48, L_FL + 64, L_FL + 80, L_FL + 96, L_FL + 112
L_P, L_MX = L_S, L_S + 512
W_QA, W_OS, W_FS, W_QB, W_TS = 65536, 262144, 1310720, 1572864, 4 << 20
WS_BYTES = 8 << 20
TAG_INC = 0x9E3779B1
SPIN = 200000
OOB = 0x40000000

def gen(stamps=False, D=8, force_remote=False, warm=4, sleep=1, dbg=-1, qa=1, NA=3, qack=0, pretouch=0, ack2=1, D2=10, qprog=0, early4=1, cnt=0, xq=0, bar4=1, lprio=0, cprio=3, bgon=1, qjunk=1, ack1=1, wpol=0, wpos=6, tail=0, specv=1, rsleep=0, fdelay=0, wat=40, wofirst=0, dirty=0, ilv=1, phase=0, floc=1, qwarm=1):
    assert 5 <= D <= 20
    D2 = D2 or D
    KVN = 1970176 if ilv else 65536
    KVSTEP = 131072 if ilv else 4096
    a = Asm()
    k = NAME + "_kernel"
    SH, SS, SW, STAG = 20, 21, 22, 23
    SK, SV, SWQ, SX, SWO, SWS, SOUT = 24, 28, 32, 36, 40, 44, 48
    MODD, MHI, MAA = 58, 60, 62
    SXCC, SLOC = 64, 65
    SP = 66
    SSPIN, SRB, SCB = 74, 75, 76
    SOG = 77
    STS = 78
    SOSP, SQP = (56, 57)
    nst = [0]
    def stamp(kind="n"):
        if kind == "e" and tail:
            return
        if kind == "t" and not tail:
            return
        if stamps:
            a(f"s_memrealtime s[{STS + 2 * nst[0]}:{STS + 2 * nst[0] + 1}]")
            nst[0] += 1
    def flush_stamps(vtmp, base=0, cnt=12, wave=0):
        if not stamps:
            return
        if dbg >= 0:
            lb = a.label("dbg")
            a(f"""
            s_waitcnt lgkmcnt(0)
            s_cmp_lg_u32 s2, {dbg}
            s_cbranch_scc1 {lb}
            s_cmp_lg_u32 s{SW}, {wave}
            s_cbranch_scc1 {lb}
            s_mov_b32 s52, s16
            s_and_b32 s53, s17, 0xffff
            s_mov_b32 s54, 256
            s_mov_b32 s55, 0x20000
            s_mov_b64 exec, 1
            """)
            for i in range(cnt):
                a(f"s_sub_u32 s56, s{STS + 2 * (i + 1)}, s{STS}")
                a(f"v_mov_b32 v{vtmp}, s56")
                a(f"v_mov_b32 v{vtmp + 2}, {4 * (base + i)}")
                a(f"buffer_store_dword v{vtmp}, v{vtmp + 2}, s[52:55], 0 offen")
                a("s_nop 1")
            a(f"{lb}:")
            a("s_mov_b64 exec, -1")
            return
        a(f"""
        s_waitcnt lgkmcnt(0)
        s_mov_b32 s{SWS}, s18
        s_and_b32 s{SWS + 1}, s19, 0xffff
        s_mov_b32 s{SWS + 2}, {WS_BYTES}
        s_mov_b32 s{SWS + 3}, 0x20000
        s_lshl_b32 s52, s2, 3
        s_add_u32 s52, s52, s{SW}
        s_lshl_b32 s52, s52, 7
        s_add_u32 s52, s52, {W_TS}
        s_mov_b64 exec, 1
        """)
        for i in range(12):
            a(f"v_mov_b32 v{vtmp}, s{STS + 2 * i}")
            a(f"v_mov_b32 v{vtmp + 1}, s{STS + 2 * i + 1}")
            a(f"v_mov_b32 v{vtmp + 2}, {8 * i}")
            a(f"buffer_store_dwordx2 v[{vtmp}:{vtmp + 1}], v{vtmp + 2}, s[{SWS}:{SWS + 3}], s52 offen")
            a("s_nop 1")
        a("s_mov_b64 exec, -1")
    def lds_wait(addr_v, tmp, cmp, name, slp=None, off=0):
        slp = sleep if slp is None else slp
        lb = a.label(name)
        a(f"""
        {lb}:
        ds_read_b32 v{tmp}, v{addr_v} offset:{off}
        s_waitcnt lgkmcnt(0)
        {cmp}
        s_cmp_eq_u64 vcc, -1
        """)
        if slp:
            a(f"""
            s_cbranch_scc1 {lb}_ok
            s_sleep {slp}
            s_branch {lb}
            {lb}_ok:
            """)
        else:
            a(f"s_cbranch_scc0 {lb}")
    def srd(reg, lo, hi, size):
        a(f"""
        s_mov_b32 s{reg}, s{lo}
        s_and_b32 s{reg + 1}, s{hi}, 0xffff
        s_mov_b32 s{reg + 2}, {size}
        s_mov_b32 s{reg + 3}, 0x20000
        """)
    def srd_off(reg, lo, hi, off, size):
        a(f"""
        s_add_u32 s{reg}, s{lo}, s{off}
        s_addc_u32 s{reg + 1}, s{hi}, 0
        s_and_b32 s{reg + 1}, s{reg + 1}, 0xffff
        s_mov_b32 s{reg + 2}, {size}
        s_mov_b32 s{reg + 3}, 0x20000
        """)
    def swapb(op, reg, tmp, kinds):
        for kind in kinds:
            a(f"v_mov_b32 v{tmp}, v{reg}")
            a("s_nop 1")
            a(f"v_permlane{kind}_swap_b32 v{reg}, v{tmp}")
            a("s_nop 0")
            a(f"{op} v{reg}, v{reg}, v{tmp}")
    DPPM = "row_mask:0xf bank_mask:0xf"

    a(f"""
    .amdgcn_target "amdgcn-amd-amdhsa--gfx950"
    .text
    .globl {k}
    .p2align 8
    .type {k},@function
    {k}:
    s_cmp_ge_u32 s2, 256
    s_cbranch_scc1 L_end
    s_load_dwordx16 s[4:19], s[0:1], 0
    """)
    if stamps:
        for i in range(78, 102):
            a(f"s_mov_b32 s{i}, 0")
    stamp()
    a(f"""
    v_lshrrev_b32 v1, 6, v0
    s_and_b32 s{SH}, s2, 7
    s_lshr_b32 s{SS}, s2, 3
    v_readfirstlane_b32 s{SW}, v1
    v_and_b32 v0, 63, v0
    s_lshr_b32 s{SRB}, s{SS}, 2
    s_and_b32 s{SCB}, s{SS}, 3
    s_lshl_b32 s52, s{SH}, 25
    s_lshl_b32 s53, s{SS}, {12 if ilv else 16}
    s_add_u32 s52, s52, s53
    s_add_u32 s68, s52, 31457280
    s_cmp_ge_u32 s{SW}, 4
    s_cbranch_scc1 L_loader
    """)

    VN, VG = 2, 3
    VPRA, VFQA, VFSA, VOG = 4, 5, 6, 7
    XA = 8
    VZ = 180
    VOP, VQPO = 184, 185
    a(f"""
    s_setprio {cprio}
    s_getreg_b32 s{SXCC}, hwreg(HW_REG_XCC_ID, 0, 4)
    v_and_b32 v{VN}, 15, v0
    v_lshrrev_b32 v{VG}, 4, v0
    s_lshr_b32 s52, s{SS}, 3
    s_mul_i32 s52, s52, 224
    v_lshl_add_u32 v1, v{VG}, 4, s52
    v_lshl_add_u32 v22, v{VG}, 3, s52
    v_mov_b32 v{VZ}, 0
    v_mov_b32 v{VZ + 1}, 0
    v_mov_b32 v{VZ + 2}, 0
    v_mov_b32 v{VZ + 3}, 0
    v_lshrrev_b32 v23, 3, v0
    v_lshlrev_b32 v23, 12, v23
    v_and_b32 v26, 7, v0
    v_lshl_add_u32 v{VOP}, v26, 4, v23
    v_lshlrev_b32 v{VQPO}, 2, v0
    v_lshlrev_b32 v{VOG}, 4, v0
    s_lshl_b32 s53, s{SH}, 17
    s_lshl_b32 s54, s{SW}, 15
    s_add_u32 s53, s53, s54
    s_lshl_b32 s54, s{SS}, 7
    s_add_u32 s53, s53, s54
    s_add_u32 s{SOSP}, s53, {W_OS}
    s_lshl_b32 s53, s{SH}, 13
    s_lshr_b32 s54, s{SS}, 3
    s_lshl_b32 s54, s54, 11
    s_add_u32 s53, s53, s54
    s_and_b32 s54, s{SS}, 7
    s_lshl_b32 s54, s54, 8
    s_add_u32 s53, s53, s54
    s_lshl_b32 s54, s{SW}, 6
    s_add_u32 s{SQP}, s53, s54
    s_cmp_lg_u32 s{SW}, 0
    s_cbranch_scc1 L_noinit
    v_lshlrev_b32 v27, 2, v0
    v_add_u32 v27, {L_FL}, v27
    s_mov_b64 exec, 0xffffffff
    ds_write_b32 v27, v{VZ}
    s_mov_b64 exec, -1
    L_noinit:
    s_waitcnt lgkmcnt(0)
    """)
    srd(SX, 4, 5, 896)
    a(f"""
    s_load_dword s{STAG}, s[18:19], 0
    buffer_load_dwordx4 v[{XA}:{XA + 3}], v1, s[{SX}:{SX + 3}], 0 offen
    buffer_load_dwordx4 v[{XA + 4}:{XA + 7}], v1, s[{SX}:{SX + 3}], 0 offen offset:64
    buffer_load_dwordx4 v[{XA + 8}:{XA + 11}], v1, s[{SX}:{SX + 3}], 0 offen offset:128
    buffer_load_dwordx2 v[{XA + 12}:{XA + 13}], v22, s[{SX}:{SX + 3}], 0 offen offset:192
    s_barrier
    """)
    srd(SWS, 18, 19, WS_BYTES)
    srd(SOUT, 14, 15, 896)
    nlater = 0
    if qa and qwarm:
        a(f"""
        s_add_u32 s52, s{SQP}, {W_QA}
        s_mov_b64 exec, 0xf
        buffer_load_dwordx4 v[176:179], v{VOG}, s[{SWS}:{SWS + 3}], s52 offen
        s_mov_b64 exec, -1
        """)
        nlater += 1
    if warm == 2:
        a(f"buffer_store_dwordx4 v[{VZ}:{VZ + 3}], v{VOP}, s[{SWS}:{SWS + 3}], s{SOSP} offen")
        nlater += 1
    if pretouch:
        a(f"""
        s_add_u32 s52, s8, s68
        s_addc_u32 s53, s9, 0
        s_lshl_b32 s54, s{SH}, 9
        s_lshl_b32 s55, s{SRB}, 5
        s_add_u32 s54, s54, s55
        s_mul_i32 s54, s54, 896
        s_add_u32 s54, s12, s54
        s_addc_u32 s55, s13, 0
        s_cmp_eq_u32 s{SW}, 1
        s_cselect_b32 s{SV}, s52, s14
        s_cselect_b32 s{SV + 1}, s53, s15
        s_cmp_eq_u32 s{SW}, 2
        s_cselect_b32 s{SV}, s54, s{SV}
        s_cselect_b32 s{SV + 1}, s55, s{SV + 1}
        s_and_b32 s{SV + 1}, s{SV + 1}, 0xffff
        s_mov_b32 s{SV + 2}, 4
        s_mov_b32 s{SV + 3}, 0x20000
        s_mov_b64 exec, 1
        buffer_load_dword v176, v{VZ}, s[{SV}:{SV + 3}], 0 offen nt
        s_mov_b64 exec, -1
        """)
        nlater += 1
    a(f"""
    s_mov_b32 s{MODD}, 0xffff0000
    s_mov_b32 s{MODD + 1}, 0xffff0000
    s_mov_b32 s{MHI}, 0
    s_mov_b32 s{MHI + 1}, -1
    s_mov_b32 s{MAA}, 0xaaaaaaaa
    s_mov_b32 s{MAA + 1}, 0xaaaaaaaa
    v_and_b32 v1, 3, v0
    v_lshlrev_b32 v1, 2, v1
    v_add_u32 v{VPRA}, {F_PROG}, v1
    v_add_u32 v{VFQA}, {F_Q}, v1
    v_add_u32 v{VFSA}, {F_M}, v1
    """)
    VWA, VWA2 = 24, 25
    a(f"""
    v_lshrrev_b32 v1, 2, v{VN}
    v_and_b32 v27, 3, v{VN}
    v_lshl_add_u32 v22, v{VG}, 3, v1
    v_lshlrev_b32 v22, 7, v22
    v_lshl_add_u32 v22, v27, 3, v22
    v_lshrrev_b32 v23, 1, v1
    v_and_b32 v26, 1, v{VG}
    v_lshl_add_u32 v26, v26, 1, v23
    v_xor_b32 v26, s{SW}, v26
    v_lshl_add_u32 v22, v26, 5, v22
    v_add_u32 v{VWA}, {L_WQ}, v22
    v_lshl_add_u32 v22, v{VG}, 2, v1
    v_lshlrev_b32 v22, 7, v22
    v_lshl_add_u32 v22, v27, 3, v22
    v_lshrrev_b32 v26, 1, v{VG}
    v_lshl_add_u32 v26, v26, 1, v23
    v_xor_b32 v26, s{SW}, v26
    v_lshl_add_u32 v22, v26, 5, v22
    v_add_u32 v{VWA2}, {L_WQ + 96 * 128}, v22
    s_lshl_b32 s52, s{SH}, 13
    s_lshl_b32 s53, s{SW}, 9
    s_add_u32 s52, s52, s53
    s_add_u32 s68, s52, {W_QA if qa else W_QB}
    s_add_u32 s69, s68, 4096
    v_lshrrev_b32 v1, 5, v0
    v_and_b32 v22, 31, v0
    v_lshlrev_b32 v22, 4, v22
    v_lshl_add_u32 v186, v1, 11, v22
    v_and_b32 v22, 3, v0
    v_lshrrev_b32 v187, v22, s{SXCC}
    v_and_b32 v187, 1, v187
    v_lshlrev_b32 v187, 8, v187
    s_mov_b32 s24, 0x05030201
    s_mov_b32 s25, 0x06050302
    s_mov_b32 s26, 0x07060503
    s_mov_b32 s27, 0xfffffe00
    s_lshl_b32 s52, s{SH}, 17
    s_lshl_b32 s53, s{SRB}, 14
    s_add_u32 s52, s52, s53
    s_lshl_b32 s53, s{SW}, 12
    s_add_u32 s52, s52, s53
    s_add_u32 s{SOG}, s52, {W_OS}
    """)
    lds_wait(VPRA, 1, "v_cmp_le_u32 vcc, 4, v1", "wq")
    stamp('e')
    WB = 28
    for t in range(3):
        for u in range(2):
            r = WB + 4 * t + 2 * u
            a(f"ds_read_b64_tr_b16 v[{r}:{r + 1}], v{VWA} offset:{t * 4096 + u * 512}")
    a(f"ds_read_b64_tr_b16 v[{WB + 12}:{WB + 13}], v{VWA2}")
    QC, QC2 = 44, 48
    a(f"s_waitcnt vmcnt({nlater}) lgkmcnt(0)")
    a(f"v_mfma_f32_16x16x16_bf16 v[{QC2}:{QC2 + 3}], v[{XA + 12}:{XA + 13}], v[{WB + 12}:{WB + 13}], 0")
    for t in range(3):
        cin = "0" if t == 0 else f"v[{QC}:{QC + 3}]"
        a(f"v_mfma_f32_16x16x32_bf16 v[{QC}:{QC + 3}], v[{XA + 4 * t}:{XA + 4 * t + 3}], v[{WB + 4 * t}:{WB + 4 * t + 3}], {cin}")
    a(f"""
    s_add_u32 s{STAG}, s{STAG}, {TAG_INC:#x}
    s_or_b32 s{STAG}, s{STAG}, 1
    s_add_u32 s52, s{SQP}, {W_QA}
    s_add_u32 s53, s{SQP}, {W_QB}
    s_nop 4
    v_add_f32 v56, v{QC}, v{QC2}
    v_add_u32 v56, 0x100, v56
    v_and_or_b32 v56, v56, s27, v187
    v_mov_b32 v51, s{STAG}
    s_nop 0
    v_mov_b32_dpp v52, v56 quad_perm:[0,0,0,0] {DPPM}
    v_mov_b32_dpp v53, v56 quad_perm:[1,1,1,1] {DPPM}
    v_mov_b32_dpp v54, v56 quad_perm:[2,2,2,2] {DPPM}
    v_mov_b32_dpp v55, v56 quad_perm:[3,3,3,3] {DPPM}
    v_perm_b32 v48, v53, v52, s24
    v_perm_b32 v49, v54, v53, s25
    v_perm_b32 v50, v55, v54, s26
    s_mov_b64 exec, 0x1111
    """)
    if qa:
        a(f"buffer_store_dwordx4 v[48:51], v{VQPO}, s[{SWS}:{SWS + 3}], s52 offen")
    a(f"""
    buffer_store_dwordx4 v[48:51], v{VQPO}, s[{SWS}:{SWS + 3}], s53 offen sc1
    s_mov_b64 exec, -1
    """)
    if qack or not qa:
        a("s_waitcnt vmcnt(0)")
    if qprog:
        lds_wait(VPRA, 1, f"v_cmp_le_u32 vcc, {qprog}, v1", "qp")
    stamp('e')
    QG = 52
    VQA, VKA, VVA = 26, 28, 36
    VPW, VMW, VMR, VPA = 32, 33, 35, 27
    VQ, VKB, VC = 72, 104, 168
    VVB = 192
    VP, VONE, VO, VLA, VOUT = 52, 40, 144, 160, 124
    SBG, STHR = 73, 72
    M2 = 30
    def late_warm():
        pol = ["", " sc1", " nt", " sc1 nt"][wpol]
        a(f"""
        s_lshl_b32 s52, s{SCB}, 10
        s_add_u32 s52, s52, s{SOG}
        buffer_load_dwordx4 v[176:179], v{VOG}, s[{SWS}:{SWS + 3}], s52 offen{pol}
        """)
    def addr_setup():
        a(f"""
        v_and_b32 v1, 1, v{VN}
        v_lshlrev_b32 v22, 9, v1
        v_lshl_add_u32 v22, v{VG}, 4, v22
        v_add_u32 v{VQA}, {L_Q}, v22
        v_lshlrev_b32 v22, 8, v1
        v_lshl_add_u32 v22, v{VG}, 4, v22
        v_add_u32 v{VPA}, {L_P}, v22
        v_xor_b32 v1, v{VG}, v{VN}
        v_lshlrev_b32 v1, 4, v1
        v_lshl_add_u32 v1, v{VN}, 9, v1
        s_lshl_b32 s52, s{SW}, 14
        v_add_u32 v{VKA}, s52, v1
        """)
        for t in range(1, 4):
            a(f"v_xor_b32 v{VKA + t}, {t << 6}, v{VKA}")
        a(f"""
        v_lshrrev_b32 v1, 2, v{VN}
        v_and_b32 v22, 3, v{VN}
        v_lshl_add_u32 v23, v{VG}, 3, v1
        v_lshlrev_b32 v23, 9, v23
        v_lshl_add_u32 v23, v22, 3, v23
        v_and_b32 v22, 1, v{VG}
        v_lshl_add_u32 v1, v22, 2, v1
        s_lshl_b32 s52, s{SW}, 2
        v_xor_b32 v1, s52, v1
        v_lshl_add_u32 v23, v1, 5, v23
        v_add_u32 v{VVA}, {L_V}, v23
        """)
        for b in range(1, 4):
            a(f"v_xor_b32 v{VVA + b}, {b << 5}, v{VVA}")
        a(f"""
        v_lshrrev_b32 v1, 5, v0
        v_and_b32 v22, 31, v0
        v_lshlrev_b32 v23, 8, v1
        v_lshl_add_u32 v23, v22, 1, v23
        s_lshl_b32 s52, s{SW}, 6
        s_add_u32 s52, s52, {L_P}
        v_add_u32 v{VPW}, s52, v23
        s_lshl_b32 s52, s{SW}, 2
        s_add_u32 s52, s52, {L_MX}
        v_lshl_add_u32 v{VMW}, v1, 4, s52
        v_mov_b32 v{VMR}, {L_MX}
        s_lshl_b32 s52, s{SW}, 11
        s_add_u32 s52, s52, {L_WO}
        v_lshl_add_u32 v34, v0, 2, s52
        s_mov_b32 s{M2}, 0xcccccccc
        s_mov_b32 s{M2 + 1}, 0xcccccccc
        """)
        for r in range(4):
            a(f"v_mov_b32 v{VONE + r}, 0x3f803f80")
    def task(kk):
        if kk == 0:
            for blk in range(2):
                for t in range(8):
                    r = VKB + blk * 32 + 4 * t
                    a(f"ds_read_b128 v[{r}:{r + 3}], v{VKA + (t & 3)} offset:{blk * 8192 + (t >> 2) * 256}")
                if blk == 0:
                    a("s_waitcnt lgkmcnt(4)")
        else:
            j = kk - 1
            for b in range(4):
                for u in range(2):
                    r = VVB + 16 * j + 4 * b + 2 * u
                    a(f"ds_read_b64_tr_b16 v[{r}:{r + 1}], v{VVA + b} offset:{j * 16384 + u * 2048}")
        a(f"s_mov_b32 s{SBG}, {kk + 1}")
        a(f"s_mov_b32 s{STHR}, {24 + 4 * kk}")
    def bg(loop):
        lb = a.label("bg")
        a(f"""
        {lb}:
        s_cmp_ge_u32 s{SBG}, 5
        s_cbranch_scc1 {lb}_x
        ds_read_b32 v1, v{VPRA}
        s_waitcnt lgkmcnt(0)
        v_cmp_le_u32 vcc, s{STHR}, v1
        s_cmp_eq_u64 vcc, -1
        s_cbranch_scc0 {lb}_x
        """)
        for kk in range(5):
            if kk < 4:
                a(f"s_cmp_lg_u32 s{SBG}, {kk}\ns_cbranch_scc1 {lb}_t{kk}")
            task(kk)
            a(f"s_branch {lb if loop else lb + '_x'}")
            if kk < 4:
                a(f"{lb}_t{kk}:")
        a(f"{lb}_x:")
    def ensure(kk, slp=None):
        lb = a.label("ens")
        a(f"s_cmp_gt_u32 s{SBG}, {kk}\ns_cbranch_scc1 {lb}")
        lds_wait(VPRA, 1, f"v_cmp_le_u32 vcc, s{STHR}, v1", "e", slp=slp)
        task(kk)
        a(f"{lb}:")

    a(f"""
    s_mov_b32 s{SSPIN}, {SPIN}
    s_mov_b32 s24, 0
    s_mov_b32 s{SBG}, 0
    s_lshl_b32 s{STHR}, s{SW}, 2
    s_add_u32 s{STHR}, s{STHR}, 8
    """)
    def qloads():
        for qi, sr_ in enumerate((68, 69)):
            a(f"buffer_load_dwordx4 v[{QG + 4 * qi}:{QG + 4 * qi + 3}], v186, s[{SWS}:{SWS + 3}], s{sr_} offen sc1")
    qloads()
    addr_setup()
    a("s_branch L_pollq_issued")
    a("L_pollq:")
    qloads()
    a("L_pollq_issued:")
    if bgon:
        bg(True)
    a(f"""
    s_sub_u32 s{SSPIN}, s{SSPIN}, 1
    s_cbranch_scc1 L_pollq_done
    s_waitcnt vmcnt(0)
    v_cmp_eq_u32 s[54:55], s{STAG}, v{QG + 3}
    v_cmp_eq_u32 vcc, s{STAG}, v{QG + 7}
    s_and_b64 s[54:55], s[54:55], vcc
    """)
    a("s_cmp_eq_u64 s[54:55], -1")
    if qa:
        a(f"""
        s_cbranch_scc1 L_pollq_done
        s_add_u32 s24, s24, 1
        s_cmp_lg_u32 s24, {NA}
        s_cbranch_scc1 L_pollq
        s_add_u32 s68, s68, {W_QB - W_QA}
        s_add_u32 s69, s69, {W_QB - W_QA}
        s_branch L_pollq
        """)
    else:
        a("s_cbranch_scc0 L_pollq")
    a(f"""
    L_pollq_done:
    s_waitcnt vmcnt(0)
    """)
    if cnt:
        a(f"s_mov_b32 s36, s{SSPIN}")
    a(f"""
    s_mov_b32 s52, 0x0504030c
    s_mov_b32 s53, 0x0403020c
    v_lshlrev_b32 v60, 8, v{QG}
    v_perm_b32 v61, v{QG + 1}, v{QG}, s52
    v_perm_b32 v62, v{QG + 2}, v{QG + 1}, s53
    v_and_b32 v63, 0xffffff00, v{QG + 2}
    v_lshlrev_b32 v64, 8, v{QG + 4}
    v_perm_b32 v65, v{QG + 5}, v{QG + 4}, s52
    v_perm_b32 v66, v{QG + 6}, v{QG + 5}, s53
    v_and_b32 v67, 0xffffff00, v{QG + 6}
    v_add_f32 v60, v60, v64
    v_add_f32 v61, v61, v65
    v_add_f32 v62, v62, v66
    v_add_f32 v63, v63, v67
    v_lshrrev_b32 v1, 5, v0
    v_and_b32 v22, 31, v0
    v_permlane32_swap_b32 v60, v61
    v_permlane32_swap_b32 v62, v63
    v_lshlrev_b32 v22, 3, v22
    v_add_f32 v60, v60, v61
    v_add_f32 v62, v62, v63
    v_lshl_add_u32 v22, v1, 1, v22
    s_lshl_b32 s55, s{SW}, 8
    s_add_u32 s55, s55, {L_Q}
    v_cvt_pk_bf16_f32 v60, v60, v62
    v_add_u32 v22, s55, v22
    s_lshl_b32 s55, s{SW}, 2
    s_add_u32 s55, s55, {F_Q}
    v_mov_b32 v1, s55
    v_mov_b32 v23, 1
    ds_write_b16 v22, v60
    ds_write_b16_d16_hi v22, v60 offset:4
    s_mov_b64 exec, 1
    ds_write_b32 v1, v23
    s_mov_b64 exec, -1
    s_and_b32 s52, s{SXCC}, 1
    s_lshr_b32 s53, s{SXCC}, 1
    s_and_b32 s53, s53, 1
    s_lshl_b32 s53, s53, 24
    s_or_b32 s52, s52, s53
    s_lshr_b32 s53, s{SXCC}, 2
    s_and_b32 s53, s53, 1
    s_lshl_b32 s53, s53, 16
    s_lshr_b32 s54, s{SXCC}, 3
    s_and_b32 s54, s54, 1
    s_lshl_b32 s54, s54, 8
    v_xor_b32 v60, s52, v{QG}
    v_xor_b32 v61, s52, v{QG + 4}
    v_xor_b32 v62, s53, v{QG + 1}
    v_xor_b32 v63, s53, v{QG + 5}
    v_xor_b32 v64, s54, v{QG + 2}
    v_xor_b32 v65, s54, v{QG + 6}
    v_or_b32 v60, v60, v61
    v_or_b32 v62, v62, v63
    v_or_b32 v64, v64, v65
    v_and_b32 v60, 0x01000001, v60
    v_and_b32 v62, 0x00010000, v62
    v_and_b32 v64, 0x00000100, v64
    v_or3_b32 v60, v60, v62, v64
    v_cmp_eq_u32 vcc, 0, v60
    v_add_u32 v1, {F_L - F_Q}, v1
    s_cmp_eq_u64 vcc, -1
    s_cselect_b32 s54, 3, 1
    v_mov_b32 v23, s54
    s_mov_b64 exec, 1
    ds_write_b32 v1, v23
    s_mov_b64 exec, -1
    """)
    if warm == 1:
        for kk in range(4):
            a(f"buffer_load_dwordx4 v[{QG + 4 * kk}:{QG + 4 * kk + 3}], v{VOG}, s[{SWS}:{SWS + 3}], s{SOG} offen offset:{kk * 1024} sc1")
    a(f"""
    L_fqw:
    ds_read_b32 v22, v{VFQA}
    s_waitcnt lgkmcnt(0)
    v_cmp_ne_u32 vcc, 0, v22
    s_cmp_eq_u64 vcc, -1
    s_cbranch_scc1 L_fqw_ok
    """)
    if bgon:
        bg(False)
    a(f"""
    s_branch L_fqw
    L_fqw_ok:
    """)
    for t in range(8):
        a(f"ds_read_b128 v[{VQ + 4 * t}:{VQ + 4 * t + 3}], v{VQA} offset:{t * 64}")
    stamp('e')
    if warm == 3 and wpos == 3:
        late_warm()
    ensure(0)
    a("s_waitcnt lgkmcnt(0)")
    for t in range(8):
        for blk in range(2):
            c = VC + 4 * blk
            r = VKB + blk * 32 + 4 * t
            cin = "0" if t == 0 else f"v[{c}:{c + 3}]"
            a(f"v_mfma_f32_16x16x32_bf16 v[{c}:{c + 3}], v[{VQ + 4 * t}:{VQ + 4 * t + 3}], v[{r}:{r + 3}], {cin}")
    C = 1.4426950408889634 / 16.0
    a(f"""
    s_mov_b32 s52, {f2u(C):#x}
    s_mov_b32 s54, 1
    s_mov_b32 s55, 1
    s_lshl_b32 s53, s{SW}, 2
    s_add_u32 s53, s53, {F_M}
    v_mov_b32 v1, s53
    v_mov_b32 v72, 1
    s_nop 0
    v_cndmask_b32 v22, v{VC}, v{VC + 1}, s[{MHI}:{MHI + 1}]
    v_cndmask_b32 v23, v{VC + 4}, v{VC + 5}, s[{MHI}:{MHI + 1}]
    v_cndmask_b32 v22, v22, v23, s[{MODD}:{MODD + 1}]
    s_nop 1
    v_max_f32_dpp v23, v22, v22 quad_perm:[1,0,3,2] {DPPM}
    s_nop 1
    v_max_f32_dpp v23, v23, v23 quad_perm:[2,3,0,1] {DPPM}
    s_nop 1
    v_max_f32_dpp v23, v23, v23 row_half_mirror {DPPM}
    s_nop 1
    v_max_f32_dpp v23, v23, v23 row_mirror {DPPM}
    v_mov_b32 v73, v23
    s_nop 1
    v_permlane16_swap_b32 v23, v73
    s_nop 0
    v_max_f32 v23, v23, v73
    s_mov_b64 exec, s[54:55]
    ds_write_b32 v{VMW}, v23
    s_mov_b64 exec, 1
    ds_write_b32 v1, v72
    s_mov_b64 exec, -1
    """)
    stamp('e')
    a(f"""
    L_mw:
    ds_read_b32 v73, v{VFSA}
    ds_read_b128 v[76:79], v{VMR}
    ds_read_b128 v[80:83], v{VMR} offset:16
    s_waitcnt lgkmcnt(0)
    v_cmp_ne_u32 vcc, 0, v73
    s_cmp_eq_u64 vcc, -1
    s_cbranch_scc0 L_mw
    v_max3_f32 v76, v76, v77, v78
    v_max3_f32 v80, v80, v81, v82
    v_max_f32 v76, v76, v79
    v_max_f32 v80, v80, v83
    v_mul_f32 v76, s52, v76
    v_mul_f32 v80, s52, v80
    v_cndmask_b32 v77, v76, v80, s[{MHI}:{MHI + 1}]
    v_fma_f32 v22, v22, s52, -v77
    v_exp_f32 v22, v22
    v_add_u32 v1, 16, v1
    v_cndmask_b32 v{VOUT + 2}, v76, v80, s[{M2}:{M2 + 1}]
    v_cvt_pk_bf16_f32 v22, v22, v22
    ds_write_b16 v{VPW}, v22
    s_mov_b64 exec, 1
    ds_write_b32 v1, v72
    s_mov_b64 exec, -1
    v_mov_b32 v{VOUT + 3}, s{STAG}
    """)
    stamp('e')
    a(f"""
    L_pw:
    ds_read_b32 v73, v{VFSA} offset:16
    """)
    for j in range(4):
        a(f"ds_read_b128 v[{VP + 4 * j}:{VP + 4 * j + 3}], v{VPA} offset:{j * 64}")
    a(f"""
    s_waitcnt lgkmcnt(0)
    v_cmp_ne_u32 vcc, 0, v73
    s_cmp_eq_u64 vcc, -1
    s_cbranch_scc0 L_pw
    """)
    stamp()
    lds_wait(VFQA, 1, "v_cmp_ne_u32 vcc, 0, v1", "loc", slp=0, off=F_L - F_Q)
    a(f"""
    v_cmp_eq_u32 vcc, 3, v1
    s_cmp_eq_u64 vcc, -1
    s_cselect_b32 s{SLOC}, 1, 0
    """)
    if force_remote:
        a(f"s_mov_b32 s{SLOC}, 0")
    if warm == 3 and wpos == 6:
        late_warm()
    for j in range(4):
        if j == 3 and specv:
            lb = a.label("v3")
            a(f"""
            s_cmp_gt_u32 s{SBG}, 4
            s_cbranch_scc1 {lb}_ok
            {lb}:
            ds_read_b32 v1, v{VPRA}
            """)
            for b in range(4):
                for u in range(2):
                    r = VVB + 48 + 4 * b + 2 * u
                    a(f"ds_read_b64_tr_b16 v[{r}:{r + 1}], v{VVA + b} offset:{3 * 16384 + u * 2048}")
            a(f"""
            s_waitcnt lgkmcnt(0)
            v_cmp_le_u32 vcc, 36, v1
            s_cmp_eq_u64 vcc, -1
            s_cbranch_scc0 {lb}
            {lb}_ok:
            """)
        else:
            ensure(j + 1, slp=(0 if j == 3 else None))
        a("s_waitcnt lgkmcnt(0)")
        if j == 3:
            stamp('t')
        cin = "0" if j == 0 else f"v[{VLA}:{VLA + 3}]"
        a(f"v_mfma_f32_16x16x32_bf16 v[{VLA}:{VLA + 3}], v[{VP + 4 * j}:{VP + 4 * j + 3}], v[{VONE}:{VONE + 3}], {cin}")
        for b in range(4):
            c = VO + 4 * b
            r = VVB + 16 * j + 4 * b
            cin = "0" if j == 0 else f"v[{c}:{c + 3}]"
            a(f"v_mfma_f32_16x16x32_bf16 v[{c}:{c + 3}], v[{VP + 4 * j}:{VP + 4 * j + 3}], v[{r}:{r + 3}], {cin}")
    a(f"""
    s_nop 3
    v_cndmask_b32 v1, v{VLA}, v{VLA + 1}, s[{M2}:{M2 + 1}]
    v_cndmask_b32 v{VOUT + 2}, v{VOUT + 2}, v1, s[{MAA}:{MAA + 1}]
    """)
    for hd in range(2):
        a(f"v_cndmask_b32 v{22 + hd}, v{VO + hd}, v{VO + 4 + hd}, s[{MODD}:{MODD + 1}]")
    for hd in range(2):
        a(f"v_cndmask_b32 v{72 + hd}, v{VO + 8 + hd}, v{VO + 12 + hd}, s[{MODD}:{MODD + 1}]")
    for hd in range(2):
        a(f"v_cndmask_b32 v{VOUT + hd}, v{22 + hd}, v{72 + hd}, s[{MHI}:{MHI + 1}]")
    a(f"""
    s_cmp_eq_u32 s{SLOC}, 0
    s_cbranch_scc1 L_pub_remote
    buffer_store_dwordx4 v[{VOUT}:{VOUT + 3}], v{VOP}, s[{SWS}:{SWS + 3}], s{SOSP} offen
    s_branch L_pub_done
    L_pub_remote:
    buffer_store_dwordx4 v[{VOUT}:{VOUT + 3}], v{VOP}, s[{SWS}:{SWS + 3}], s{SOSP} offen sc1
    L_pub_done:
    """)
    stamp()
    VW = 72
    VRW, VRF, VFSP = 104, 105, 106
    a(f"""
    s_mov_b32 s54, 0x05040100
    s_mov_b32 s55, 0x07060302
    s_lshl_b32 s52, s{SW}, 9
    s_add_u32 s52, s52, {L_RED}
    v_lshl_add_u32 v{VRW}, v0, 3, s52
    v_and_b32 v1, 3, v0
    v_max_u32 v1, 1, v1
    v_lshlrev_b32 v1, 2, v1
    v_add_u32 v{VRF}, {F_R}, v1
    v_lshrrev_b32 v1, 3, v0
    v_lshlrev_b32 v1, 13, v1
    v_and_b32 v22, 7, v0
    v_lshl_add_u32 v{VFSP}, v22, 4, v1
    s_lshl_b32 s52, s{SCB}, 16
    s_lshl_b32 s53, s{SH}, 3
    s_add_u32 s53, s53, s{SRB}
    s_lshl_b32 s53, s53, 7
    s_add_u32 s52, s52, s53
    s_add_u32 s24, s52, {W_FS}
    s_cmp_eq_u32 s{SCB}, 3
    s_cselect_b32 s27, 0, -1
    s_mov_b32 s26, -1
    s_lshl_b32 s52, s{SH}, 3
    s_lshl_b64 s[28:29], 0xff, s52
    s_cmp_eq_u32 s{SLOC}, 0
    s_cselect_b64 s[28:29], 0, s[28:29]
    s_and_b64 s[28:29], s[28:29], s[26:27]
    v_mov_b32 v161, s{STAG}
    v_mov_b32 v163, s{STAG}
    s_lshl_b32 s52, s{SW}, 2
    s_add_u32 s52, s52, {F_R}
    v_mov_b32 v107, s52
    v_mov_b32 v108, 1
    """)
    G = 128
    MX, O0, O1, LA, T = 144, 145, 146, 147, 148
    E = 152
    def wo_prep():
        lds_wait(VPRA, 1, "v_cmp_le_u32 vcc, 40, v1", "wo", slp=0)
        for hd in range(2):
            for jj in range(4):
                r = VW + 8 * hd + 2 * jj
                a(f"ds_read2st64_b32 v[{r}:{r + 1}], v34 offset0:{hd * 32 + 2 * jj} offset1:{hd * 32 + 2 * jj + 1}")
        a("s_waitcnt lgkmcnt(0)")
        for hd in range(2):
            for i in range(4):
                lo, hi = VW + 8 * hd + 2 * i, VW + 8 * hd + 2 * i + 1
                a(f"v_perm_b32 v{88 + 8 * hd + 2 * i}, v{hi}, v{lo}, s54")
                a(f"v_perm_b32 v{89 + 8 * hd + 2 * i}, v{hi}, v{lo}, s55")
    def gloads():
        for kk in range(4):
            a(f"buffer_load_dwordx4 v[{G + 4 * kk}:{G + 4 * kk + 3}], v{VOG}, s[{SWS}:{SWS + 3}], s{SOG} offen offset:{kk * 1024} sc1")
    if wofirst:
        wo_prep()
    if ack1:
        a("s_waitcnt vmcnt(0)")
    else:
        a(f"s_cmp_lg_u32 s{SLOC}, 0\ns_cbranch_scc1 L_noack1\ns_waitcnt vmcnt(0)\nL_noack1:")
    a(f"s_mov_b32 s{SSPIN}, {SPIN}")
    if not wofirst:
        gloads()
        wo_prep()
        a("s_branch L_poll1_issued")
    a("L_poll1:")
    gloads()
    a("L_poll1_issued:")
    a(f"""
    s_sub_u32 s{SSPIN}, s{SSPIN}, 1
    s_cselect_b32 s25, 1, 0
    s_waitcnt vmcnt(0)
    v_max3_f32 v{MX}, v{G + 2}, v{G + 6}, v{G + 10}
    v_max_f32 v{MX}, v{MX}, v{G + 14}
    v_cmp_eq_u32 s[52:53], s{STAG}, v{G + 3}
    v_cmp_eq_u32 vcc, s{STAG}, v{G + 7}
    v_max_f32_dpp v{MX}, v{MX}, v{MX} row_ror:8 {DPPM}
    s_and_b64 s[52:53], s[52:53], vcc
    v_mov_b32 v{T}, v{MX}
    v_cmp_eq_u32 vcc, s{STAG}, v{G + 11}
    s_and_b64 s[52:53], s[52:53], vcc
    v_permlane16_swap_b32 v{MX}, v{T}
    v_cmp_eq_u32 vcc, s{STAG}, v{G + 15}
    v_max_f32 v{MX}, v{MX}, v{T}
    s_and_b64 s[52:53], s[52:53], vcc
    v_mov_b32 v{T}, v{MX}
    s_cmp_eq_u64 s[52:53], -1
    s_cbranch_scc1 L_poll1_done
    s_cmp_eq_u32 s25, 0
    s_cbranch_scc1 L_poll1
    L_poll1_done:
    v_permlane32_swap_b32 v{MX}, v{T}
    s_nop 0
    """)
    if cnt:
        a(f"s_mov_b32 s37, s{SSPIN}")
    stamp()
    a(f"v_max_f32 v{MX}, v{MX}, v{T}")
    for kk in range(4):
        a(f"v_sub_f32 v{E + kk}, v{G + 4 * kk + 2}, v{MX}")
    for kk in range(4):
        a(f"v_exp_f32 v{E + kk}, v{E + kk}")
    a("s_nop 0")
    for kk in range(4):
        op = "v_mul_f32_dpp" if kk == 0 else "v_fmac_f32_dpp"
        a(f"{op} v{O0}, v{E + kk}, v{G + 4 * kk} quad_perm:[0,0,0,0] {DPPM}")
        a(f"{op} v{O1}, v{E + kk}, v{G + 4 * kk + 1} quad_perm:[2,2,2,2] {DPPM}")
        a(f"{op} v{LA}, v{E + kk}, v{G + 4 * kk + 2} quad_perm:[0,0,2,2] {DPPM}")
    a(f"""
    v_mov_b32 v{T}, v{LA}
    s_nop 0
    v_permlane32_swap_b32 v{O0}, v{O1}
    v_permlane32_swap_b32 v{LA}, v{T}
    v_add_f32 v{O0}, v{O0}, v{O1}
    v_add_f32 v{LA}, v{LA}, v{T}
    s_nop 1
    v_permlane16_swap_b32 v{O0}, v{LA}
    s_nop 0
    v_add_f32 v{O0}, v{O0}, v{LA}
    s_nop 1
    v_add_f32_dpp v{O0}, v{O0}, v{O0} row_ror:8 {DPPM}
    s_nop 1
    v_mov_b32_dpp v{T}, v{O0} quad_perm:[1,1,3,3] {DPPM}
    v_rcp_f32 v{LA}, v{O0}
    v_cvt_pk_bf16_f32 v{O1}, v{O0}, v{T}
    s_nop 0
    """)
    for i in range(4):
        a(f"v_readlane_b32 s{SP + i}, v{O1}, {2 * i}")
        a(f"v_readlane_b32 s{SP + 4 + i}, v{O1}, {32 + 2 * i}")
    a(f"v_readlane_b32 s52, v{LA}, 17")
    a(f"v_readlane_b32 s53, v{LA}, 19")
    for i in range(4):
        for hd in range(2):
            for hf in range(2):
                acc = 152 + 2 * hd + hf
                src2 = "0" if i == 0 else f"v{acc}"
                a(f"v_dot2_f32_bf16 v{acc}, s{SP + 4 * hd + i}, v{88 + 8 * hd + 2 * i + hf}, {src2}")
    stamp('t')
    a(f"""
    s_nop 0
    v_mul_f32 v156, s52, v152
    v_mul_f32 v157, s52, v153
    s_nop 0
    v_fmac_f32 v156, s53, v154
    v_fmac_f32 v157, s53, v155
    s_cmp_eq_u32 s{SW}, 0
    s_cbranch_scc1 L_red0
    ds_write_b64 v{VRW}, v[156:157]
    s_mov_b64 exec, 1
    ds_write_b32 v107, v108
    s_mov_b64 exec, -1
    s_cmp_ge_u32 s2, 28
    s_cbranch_scc1 L_fin
    s_branch L_final
    L_red0:
    v_lshlrev_b32 v1, 3, v0
    L_redw:
    ds_read_b32 v22, v{VRF}
    ds_read_b64 v[152:153], v1 offset:{L_RED + 512}
    ds_read_b64 v[154:155], v1 offset:{L_RED + 1024}
    ds_read_b64 v[158:159], v1 offset:{L_RED + 1536}
    s_waitcnt lgkmcnt(0)
    v_cmp_ne_u32 vcc, 0, v22
    s_cmp_eq_u64 vcc, -1
    s_cbranch_scc0 L_redw
    """)
    stamp('t')
    a(f"""
    v_add_f32 v156, v156, v152
    v_add_f32 v157, v157, v153
    v_add_f32 v154, v154, v158
    v_add_f32 v155, v155, v159
    v_add_f32 v160, v156, v154
    v_add_f32 v162, v157, v155
    """)
    if floc:
        a(f"""
        s_andn2_b64 exec, s[26:27], s[28:29]
        buffer_store_dwordx4 v[160:163], v{VFSP}, s[{SWS}:{SWS + 3}], s24 offen sc1
        s_mov_b64 exec, s[28:29]
        s_cbranch_execz L_noloc
        buffer_store_dwordx4 v[160:163], v{VFSP}, s[{SWS}:{SWS + 3}], s24 offen
        L_noloc:
        s_mov_b64 exec, -1
        """)
    else:
        a(f"""
        s_mov_b64 exec, s[26:27]
        buffer_store_dwordx4 v[160:163], v{VFSP}, s[{SWS}:{SWS + 3}], s24 offen sc1
        s_mov_b64 exec, -1
        """)
    stamp('t')
    a(f"""
    s_cmp_ge_u32 s2, 28
    s_cbranch_scc1 L_fin
    """)
    if fdelay:
        a(f"s_sleep {fdelay}")
    elif ack2:
        a("s_waitcnt vmcnt(0)")
    a(f"""
    L_final:
    s_lshl_b32 s52, s2, 13
    s_lshl_b32 s53, s{SW}, 11
    s_add_u32 s52, s52, s53
    s_add_u32 s52, s52, {W_FS}
    v_and_b32 v1, 7, v0
    v_lshlrev_b32 v1, 3, v1
    v_lshrrev_b32 v22, 5, v0
    v_lshl_add_u32 v23, v22, 2, v1
    s_lshl_b32 s53, s{SW}, 6
    s_add_u32 s53, s53, {L_RED + 4096}
    v_add_u32 v23, s53, v23
    v_add_u32 v107, {F_R2 - F_R}, v107
    v_add_u32 v{VRF}, {F_R2 - F_R}, v{VRF}
    s_mov_b32 s54, 0xff
    s_mov_b32 s55, 0xff
    s_mov_b32 s{SSPIN}, {SPIN}
    {"s_barrier" if ack2 else ""}
    L_poll2:
    buffer_load_dwordx4 v[128:131], v{VOG}, s[{SWS}:{SWS + 3}], s52 offen sc1
    buffer_load_dwordx4 v[132:135], v{VOG}, s[{SWS}:{SWS + 3}], s52 offen offset:1024 sc1
    s_sub_u32 s{SSPIN}, s{SSPIN}, 1
    s_cbranch_scc1 L_poll2_done
    s_waitcnt vmcnt(0)
    v_cmp_eq_u32 s[24:25], s{STAG}, v129
    v_cmp_eq_u32 vcc, s{STAG}, v131
    s_and_b64 s[24:25], s[24:25], vcc
    v_cmp_eq_u32 vcc, s{STAG}, v133
    s_and_b64 s[24:25], s[24:25], vcc
    v_cmp_eq_u32 vcc, s{STAG}, v135
    s_and_b64 s[24:25], s[24:25], vcc
    s_cmp_eq_u64 s[24:25], -1
    s_cbranch_scc0 L_poll2
    L_poll2_done:
    s_waitcnt vmcnt(0)
    """)
    stamp()
    a(f"""
    v_add_f32 v140, v128, v132
    v_add_f32 v141, v130, v134
    s_nop 1
    v_permlane32_swap_b32 v140, v141
    s_nop 0
    v_add_f32 v140, v140, v141
    s_nop 0
    v_mov_b32 v141, v140
    s_nop 1
    v_permlane16_swap_b32 v140, v141
    s_nop 0
    v_add_f32 v140, v140, v141
    s_nop 1
    v_add_f32_dpp v140, v140, v140 row_ror:8 {DPPM}
    s_mov_b64 exec, s[54:55]
    ds_write_b32 v23, v140
    s_cmp_eq_u32 s{SW}, 0
    s_cbranch_scc1 L_fin0
    s_mov_b64 exec, 1
    ds_write_b32 v107, v108
    s_branch L_fin
    L_fin0:
    s_mov_b64 exec, -1
    s_lshl_b32 s52, s2, 5
    v_lshlrev_b32 v22, 2, v0
    L_finw:
    ds_read_b32 v23, v{VRF}
    ds_read_b64 v[140:141], v1 offset:{L_RED + 4096}
    ds_read_b64 v[142:143], v1 offset:{L_RED + 4096 + 64}
    ds_read_b64 v[144:145], v1 offset:{L_RED + 4096 + 128}
    ds_read_b64 v[146:147], v1 offset:{L_RED + 4096 + 192}
    s_waitcnt lgkmcnt(0)
    v_cmp_ne_u32 vcc, 0, v23
    s_cmp_eq_u64 vcc, -1
    s_cbranch_scc0 L_finw
    """)
    stamp('t')
    a(f"""
    v_add_f32 v140, v140, v142
    v_add_f32 v141, v141, v143
    v_add_f32 v144, v144, v146
    v_add_f32 v145, v145, v147
    v_add_f32 v140, v140, v144
    v_add_f32 v141, v141, v145
    v_cvt_pk_bf16_f32 v140, v140, v141
    s_mov_b64 exec, 0xff
    buffer_store_dword v140, v22, s[{SOUT}:{SOUT + 3}], s52 offen
    s_cmp_lg_u32 s2, 0
    s_cbranch_scc1 L_fin
    s_mov_b64 exec, 1
    v_mov_b32 v2, 0
    v_mov_b32 v3, s{STAG}
    buffer_store_dword v3, v2, s[{SWS}:{SWS + 3}], 0 offen sc1
    L_fin:
    s_mov_b64 exec, -1
    """)
    stamp()
    if cnt and stamps:
        a(f"""
        s_waitcnt lgkmcnt(0)
        s_sub_u32 s52, {SPIN}, s36
        s_add_u32 s{STS + 8}, s{STS}, s52
        s_mov_b32 s{STS + 9}, s{STS + 1}
        s_sub_u32 s52, {SPIN}, s37
        s_add_u32 s{STS + 10}, s{STS}, s52
        s_mov_b32 s{STS + 11}, s{STS + 1}
        """)
    flush_stamps(200, 0, 11, 0)
    a("s_endpgm")

    nst[0] = 1
    SJ, SOF = 66, 67
    VK0, VK1, VV0, VV1, VWQ, VWO, VPA, VPV, VFQ = 4, 5, 6, 7, 8, 9, 10, 11, 12
    a(f"""
    L_loader:
    s_setprio {lprio}
    s_sub_u32 s{SJ}, s{SW}, 4
    v_lshrrev_b32 v1, 3, v0
    v_lshlrev_b32 v2, 13, v1
    v_and_b32 v3, 7, v0
    v_lshrrev_b32 v13, 4, v0
    v_and_b32 v13, 1, v13
    v_lshlrev_b32 v13, 1, v13
    v_xor_b32 v3, v3, v13
    s_and_b32 s52, s{SJ}, 1
    s_lshl_b32 s52, s52, 2
    v_xor_b32 v3, s52, v3
    v_lshl_add_u32 v{VWQ}, v3, 4, v2
    s_lshr_b32 s53, s{SS}, 3
    s_mul_i32 s53, s53, {112 * 8192}
    s_lshl_b32 s54, s{SH}, 10
    s_add_u32 s53, s53, s54
    s_and_b32 s54, s{SS}, 7
    s_lshl_b32 s54, s54, 7
    s_add_u32 s53, s53, s54
    s_lshl_b32 s54, s{SJ}, 16
    s_add_u32 s{SOF}, s53, s54
    s_lshl_b32 s56, s{SJ}, 10
    s_add_u32 s57, s56, {L_WQ}
    s_mov_b32 m0, s57
    v_lshrrev_b32 v1, 5, v0
    v_and_b32 v2, 31, v0
    v_xor_b32 v3, v2, v1
    s_lshl_b32 s52, s{SJ}, 1
    v_xor_b32 v3, s52, v3
    v_lshlrev_b32 v3, 4, v3
    v_lshl_add_u32 v{VK0}, v1, 9, v3
    v_xor_b32 v{VK1}, 128, v{VK0}
    s_waitcnt lgkmcnt(0)
    """)
    srd(SWQ, 10, 11, 3670016)
    n = [0]
    written = [0]
    NTOT = 40
    def depth():
        return D if n[0] < 20 + D else D2
    def prog(cnt):
        a(f"""
        v_mov_b32 v{VPV}, {cnt}
        s_mov_b64 exec, 1
        ds_write_b32 v{VPA}, v{VPV}
        s_mov_b64 exec, -1
        """)
        written[0] = cnt
    landed = [0]
    def lwarm():
        srd(SWS, 18, 19, WS_BYTES)
        a(f"""
        s_lshl_b32 s52, s{SH}, 17
        s_lshl_b32 s53, s{SRB}, 14
        s_add_u32 s52, s52, s53
        s_lshl_b32 s53, s{SJ}, 12
        s_add_u32 s52, s52, s53
        s_lshl_b32 s53, s{SCB}, 10
        s_add_u32 s52, s52, s53
        s_add_u32 s52, s52, {W_OS}
        v_lshlrev_b32 v13, 4, v0
        buffer_load_dwordx4 v[16:19], v13, s[{SWS}:{SWS + 3}], s52 offen
        """)
        if floc:
            a(f"""
            s_lshl_b32 s53, s2, 13
            s_lshl_b32 s54, s{SH}, 10
            s_add_u32 s53, s53, s54
            s_add_u32 s53, s53, {W_FS}
            s_cmp_lt_u32 s2, 28
            s_cselect_b32 s53, s53, {OOB:#x}
            s_cmp_eq_u32 s{SJ}, 0
            s_cselect_b32 s53, s53, {OOB:#x}
            buffer_load_dwordx4 v[24:27], v13, s[{SWS}:{SWS + 3}], s53 offen
            """)
    def throttle(d):
        if n[0] - landed[0] >= d:
            a(f"s_waitcnt vmcnt({d - 1})")
            landed[0] = n[0] - d + 1
            c4 = landed[0] // 4 * 4
            if c4 > written[0]:
                prog(c4)
    for i in range(4):
        if i == 3:
            a(f"s_cmp_lt_u32 s{SJ}, 2\ns_cselect_b32 s{SOF}, s{SOF}, {OOB:#x}")
        throttle(D)
        a(f"buffer_load_dwordx4 v{VWQ}, s[{SWQ}:{SWQ + 3}], s{SOF} offen nt lds")
        n[0] += 1
        if i < 3:
            a(f"s_add_u32 m0, m0, 4096\ns_add_u32 s{SOF}, s{SOF}, 262144")
        if i == 0:
            srd_off(SK, 6, 7, 68, KVN)
    def setup_rest():
        srd_off(SV, 8, 9, 68, KVN)
        srd(SWO, 12, 13, 3670016)
        a(f"""
        v_lshrrev_b32 v1, 5, v0
        v_and_b32 v2, 31, v0
        v_lshlrev_b32 v3, 1, v1
        v_xor_b32 v3, v3, v2
        s_and_b32 s52, s{SJ}, 1
        s_lshl_b32 s52, s52, 2
        v_xor_b32 v3, s52, v3
        v_lshlrev_b32 v3, 4, v3
        v_lshl_add_u32 v{VV0}, v1, 9, v3
        v_xor_b32 v{VV1}, 128, v{VV0}
        v_lshrrev_b32 v1, 4, v0
        v_mul_u32_u24 v1, 896, v1
        v_and_b32 v2, 15, v0
        v_lshl_add_u32 v{VWO}, v2, 4, v1
        v_cmp_le_u32 vcc, 8, v2
        s_cmp_eq_u32 s{SCB}, 3
        s_cselect_b64 s[52:53], vcc, 0
        v_mov_b32 v1, {OOB:#x}
        v_cndmask_b32 v{VWO}, v{VWO}, v1, s[52:53]
        s_lshl_b32 s52, s{SJ}, 2
        s_add_u32 s52, s52, {F_PROG}
        v_mov_b32 v{VPA}, s52
        v_and_b32 v1, 3, v0
        v_lshlrev_b32 v1, 2, v1
        v_add_u32 v{VFQ}, {F_Q}, v1
        """)
    if bar4:
        a("s_barrier")
    a(f"s_mov_b32 m0, s56\ns_mov_b32 s{SOF}, s56")
    if phase:
        a(f"s_mul_i32 s69, s{SH}, {phase * 131072}\ns_and_b32 s69, s69, 0x1fffff\ns_add_u32 s69, s69, s56\ns_mov_b32 s{SOF}, s69")
    for i in range(16):
        throttle(D)
        a(f"buffer_load_dwordx4 v{VK0 + (i & 1)}, s[{SK}:{SK + 3}], s{SOF} offen nt lds")
        n[0] += 1
        a(f"s_add_u32 m0, m0, 4096\ns_add_u32 s{SOF}, s{SOF}, {KVSTEP}")
        if phase:
            a(f"s_and_b32 s{SOF}, s{SOF}, 0x1fffff")
        if n[0] == D:
            setup_rest()
            if not bar4:
                a("s_barrier")
            stamp()
            if early4:
                a(f"s_waitcnt vmcnt({D - 4})")
                landed[0] = 4
                prog(4)
        else:
            a("s_nop 0")
    a(f"s_add_u32 m0, s56, {L_V}\ns_mov_b32 s{SOF}, s{69 if phase else 56}")
    for i in range(16):
        throttle(D2)
        a(f"buffer_load_dwordx4 v{VV0 + (i & 1)}, s[{SV}:{SV + 3}], s{SOF} offen nt lds")
        n[0] += 1
        a(f"s_add_u32 m0, m0, 4096\ns_add_u32 s{SOF}, s{SOF}, {KVSTEP}")
        if phase:
            a(f"s_and_b32 s{SOF}, s{SOF}, 0x1fffff")
    stamp()
    a(f"""
    s_lshl_b32 s52, s{SH}, 9
    s_lshl_b32 s53, s{SRB}, 5
    s_add_u32 s52, s52, s53
    s_lshl_b32 s53, s{SJ}, 2
    s_add_u32 s52, s52, s53
    s_mul_i32 s52, s52, 896
    s_lshl_b32 s53, s{SCB}, 8
    s_add_u32 s{SOF}, s52, s53
    s_add_u32 m0, s56, {L_WO}
    """)
    lds_wait(VFQ, 1, "v_cmp_ne_u32 vcc, 0, v1", "lfq")
    for i in range(4):
        throttle(D2)
        a(f"buffer_load_dwordx4 v{VWO}, s[{SWO}:{SWO + 3}], s{SOF} offen nt lds")
        n[0] += 1
        if i < 3:
            step = 16 * 896 if i != 1 else 256 * 896 - 16 * 896
            a(f"s_add_u32 m0, m0, 4096\ns_add_u32 s{SOF}, s{SOF}, {step}")
    extra = 0
    if warm == 4:
        lwarm()
        extra = 2 if floc else 1
    stamp()
    thr = written[0] + 4
    while thr <= NTOT:
        a(f"s_waitcnt vmcnt({NTOT - thr + extra})")
        prog(thr)
        if thr == 36 and tail:
            stamp()
        thr += 4
    stamp()
    if dirty:
        srd(SWS, 18, 19, WS_BYTES)
        a(f"""
        s_lshl_b32 s52, s2, 2
        s_add_u32 s52, s52, s{SJ}
        s_mul_i32 s52, s52, {dirty * 1024}
        s_add_u32 s52, s52, {5 << 20}
        v_lshlrev_b32 v13, 4, v0
        """)
        for i in range(dirty):
            a(f"buffer_store_dwordx4 v[16:19], v13, s[{SWS}:{SWS + 3}], s52 offen")
            a("s_add_u32 s52, s52, 1024")
    flush_stamps(20, 11, 4, 4)
    a("s_endpgm")
    a("L_end:")
    a("s_endpgm")
    a('.section .rodata,"a"')
    a(".p2align 6")
    out = HEADER + f"; @launch grid=(256,1,1) block=(512,1,1) lds={LDS_BYTES}\n" + a.text() + kernel_desc(k, 256, 102)
    return out

if __name__ == "__main__":
    kw = {}
    for x in sys.argv[2:]:
        key, val = x.lstrip("-").split("=") if "=" in x else (x.lstrip("-"), "1")
        kw[key] = int(val)
    open(sys.argv[1], "w").write(gen(**kw))
```

```python
import struct, sys
from asmlib import *

def f2u(x):
    return struct.unpack("<I", struct.pack("<f", x))[0]

L_K, L_V, L_WQ, L_Q, L_S, L_FL = 0, 65536, 131072, 147456, 148480, 149504
L_WO = L_WQ
L_RED = 0
LDS_BYTES = 149760
F_PROG, F_Q, F_M, F_P, F_R, L_TAG, F_R2, F_L = L_FL, L_FL + 16, L_FL + 32, L_FL + 48, L_FL + 64, L_FL + 80, L_FL + 96, L_FL + 112
L_P, L_MX = L_S, L_S + 512
W_QA, W_OS, W_FS, W_QB, W_TS = 65536, 262144, 1310720, 1572864, 4 << 20
WS_BYTES = 8 << 20
TAG_INC = 0x9E3779B1
SPIN = 200000
OOB = 0x40000000

def gen(stamps=False, D=8, force_remote=False, warm=4, sleep=1, dbg=-1, qa=1, NA=3, qack=0, pretouch=0, ack2=1, D2=8, qprog=0, early4=1, cnt=0, xq=0, bar4=1, lprio=0, cprio=3, bgon=1, qjunk=1, ack1=1, wpol=0, wpos=6, tail=0, specv=1, rsleep=0, fdelay=0, wat=40, wofirst=0, dirty=0, ilv=1, phase=0, floc=1, qwarm=1, psleep=0, remap=0, rho=11):
    assert 5 <= D <= 20
    D2 = D2 or D
    KVN = (2097152 if rho else 1970176) if ilv else 65536
    KVSTEP = 131072 if ilv else 4096
    a = Asm()
    k = NAME + "_kernel"
    SH, SS, SW, STAG = 20, 21, 22, 23
    SK, SV, SWQ, SX, SWO, SWS, SOUT = 24, 28, 32, 36, 40, 44, 48
    MODD, MHI, MAA = 58, 60, 62
    SXCC, SLOC = 64, 65
    SP = 66
    SSPIN, SRB, SCB = 74, 75, 76
    SOG = 77
    STS = 78
    SOSP, SQP = (56, 57)
    nst = [0]
    def stamp(kind="n"):
        if kind == "e" and tail:
            return
        if kind == "t" and not tail:
            return
        if stamps:
            a(f"s_memrealtime s[{STS + 2 * nst[0]}:{STS + 2 * nst[0] + 1}]")
            nst[0] += 1
    def flush_stamps(vtmp, base=0, cnt=12, wave=0):
        if not stamps:
            return
        if dbg >= 0:
            lb = a.label("dbg")
            a(f"""
            s_waitcnt lgkmcnt(0)
            s_cmp_lg_u32 s2, {dbg}
            s_cbranch_scc1 {lb}
            s_cmp_lg_u32 s{SW}, {wave}
            s_cbranch_scc1 {lb}
            s_mov_b32 s52, s16
            s_and_b32 s53, s17, 0xffff
            s_mov_b32 s54, 256
            s_mov_b32 s55, 0x20000
            s_mov_b64 exec, 1
            """)
            for i in range(cnt):
                a(f"s_sub_u32 s56, s{STS + 2 * (i + 1)}, s{STS}")
                a(f"v_mov_b32 v{vtmp}, s56")
                a(f"v_mov_b32 v{vtmp + 2}, {4 * (base + i)}")
                a(f"buffer_store_dword v{vtmp}, v{vtmp + 2}, s[52:55], 0 offen")
                a("s_nop 1")
            a(f"{lb}:")
            a("s_mov_b64 exec, -1")
            return
        a(f"""
        s_waitcnt lgkmcnt(0)
        s_mov_b32 s{SWS}, s18
        s_and_b32 s{SWS + 1}, s19, 0xffff
        s_mov_b32 s{SWS + 2}, {WS_BYTES}
        s_mov_b32 s{SWS + 3}, 0x20000
        s_lshl_b32 s52, s2, 3
        s_add_u32 s52, s52, s{SW}
        s_lshl_b32 s52, s52, 7
        s_add_u32 s52, s52, {W_TS}
        s_mov_b64 exec, 1
        """)
        for i in range(12):
            a(f"v_mov_b32 v{vtmp}, s{STS + 2 * i}")
            a(f"v_mov_b32 v{vtmp + 1}, s{STS + 2 * i + 1}")
            a(f"v_mov_b32 v{vtmp + 2}, {8 * i}")
            a(f"buffer_store_dwordx2 v[{vtmp}:{vtmp + 1}], v{vtmp + 2}, s[{SWS}:{SWS + 3}], s52 offen")
            a("s_nop 1")
        a("s_mov_b64 exec, -1")
    def lds_wait(addr_v, tmp, cmp, name, slp=None, off=0):
        slp = sleep if slp is None else slp
        lb = a.label(name)
        a(f"""
        {lb}:
        ds_read_b32 v{tmp}, v{addr_v} offset:{off}
        s_waitcnt lgkmcnt(0)
        {cmp}
        s_cmp_eq_u64 vcc, -1
        """)
        if slp:
            a(f"""
            s_cbranch_scc1 {lb}_ok
            s_sleep {slp}
            s_branch {lb}
            {lb}_ok:
            """)
        else:
            a(f"s_cbranch_scc0 {lb}")
    def srd(reg, lo, hi, size):
        a(f"""
        s_mov_b32 s{reg}, s{lo}
        s_and_b32 s{reg + 1}, s{hi}, 0xffff
        s_mov_b32 s{reg + 2}, {size}
        s_mov_b32 s{reg + 3}, 0x20000
        """)
    def srd_off(reg, lo, hi, off, size):
        a(f"""
        s_add_u32 s{reg}, s{lo}, s{off}
        s_addc_u32 s{reg + 1}, s{hi}, 0
        s_and_b32 s{reg + 1}, s{reg + 1}, 0xffff
        s_mov_b32 s{reg + 2}, {size}
        s_mov_b32 s{reg + 3}, 0x20000
        """)
    def swapb(op, reg, tmp, kinds):
        for kind in kinds:
            a(f"v_mov_b32 v{tmp}, v{reg}")
            a("s_nop 1")
            a(f"v_permlane{kind}_swap_b32 v{reg}, v{tmp}")
            a("s_nop 0")
            a(f"{op} v{reg}, v{reg}, v{tmp}")
    DPPM = "row_mask:0xf bank_mask:0xf"

    a(f"""
    .amdgcn_target "amdgcn-amd-amdhsa--gfx950"
    .text
    .globl {k}
    .p2align 8
    .type {k},@function
    {k}:
    s_cmp_ge_u32 s2, 256
    s_cbranch_scc1 L_end
    s_load_dwordx16 s[4:19], s[0:1], 0
    """)
    if stamps:
        for i in range(78, 102):
            a(f"s_mov_b32 s{i}, 0")
    stamp()
    a(f"""
    v_lshrrev_b32 v1, 6, v0
    {"s_lshr_b32" if remap else "s_and_b32"} s{SH}, s2, {5 if remap else 7}
    {"s_and_b32" if remap else "s_lshr_b32"} s{SS}, s2, {31 if remap else 3}
    v_readfirstlane_b32 s{SW}, v1
    v_and_b32 v0, 63, v0
    s_lshr_b32 s{SRB}, s{SS}, 2
    s_and_b32 s{SCB}, s{SS}, 3
    s_lshl_b32 s52, s{SH}, 25
    s_lshl_b32 s53, s{SS}, {12 if ilv else 16}
    {'s_nop 0' if (ilv and rho) else 's_add_u32 s52, s52, s53'}
    s_add_u32 s68, s52, 31457280
    s_cmp_ge_u32 s{SW}, 4
    s_cbranch_scc1 L_loader
    """)

    VN, VG = 2, 3
    VPRA, VFQA, VFSA, VOG = 4, 5, 6, 7
    XA = 8
    VZ = 180
    VOP, VQPO = 184, 185
    a(f"""
    s_setprio {cprio}
    s_getreg_b32 s{SXCC}, hwreg(HW_REG_XCC_ID, 0, 4)
    v_and_b32 v{VN}, 15, v0
    v_lshrrev_b32 v{VG}, 4, v0
    s_lshr_b32 s52, s{SS}, 3
    s_mul_i32 s52, s52, 224
    v_lshl_add_u32 v1, v{VG}, 4, s52
    v_lshl_add_u32 v22, v{VG}, 3, s52
    v_mov_b32 v{VZ}, 0
    v_mov_b32 v{VZ + 1}, 0
    v_mov_b32 v{VZ + 2}, 0
    v_mov_b32 v{VZ + 3}, 0
    v_lshrrev_b32 v23, 3, v0
    v_lshlrev_b32 v23, 12, v23
    v_and_b32 v26, 7, v0
    v_lshl_add_u32 v{VOP}, v26, 4, v23
    v_lshlrev_b32 v{VQPO}, 2, v0
    v_lshlrev_b32 v{VOG}, 4, v0
    s_lshl_b32 s53, s{SH}, 17
    s_lshl_b32 s54, s{SW}, 15
    s_add_u32 s53, s53, s54
    s_lshl_b32 s54, s{SS}, 7
    s_add_u32 s53, s53, s54
    s_add_u32 s{SOSP}, s53, {W_OS}
    s_lshl_b32 s53, s{SH}, 13
    s_lshr_b32 s54, s{SS}, 3
    s_lshl_b32 s54, s54, 11
    s_add_u32 s53, s53, s54
    s_and_b32 s54, s{SS}, 7
    s_lshl_b32 s54, s54, 8
    s_add_u32 s53, s53, s54
    s_lshl_b32 s54, s{SW}, 6
    s_add_u32 s{SQP}, s53, s54
    s_cmp_lg_u32 s{SW}, 0
    s_cbranch_scc1 L_noinit
    v_lshlrev_b32 v27, 2, v0
    v_add_u32 v27, {L_FL}, v27
    s_mov_b64 exec, 0xffffffff
    ds_write_b32 v27, v{VZ}
    s_mov_b64 exec, -1
    L_noinit:
    s_waitcnt lgkmcnt(0)
    """)
    srd(SX, 4, 5, 896)
    a(f"""
    s_load_dword s{STAG}, s[18:19], 0
    buffer_load_dwordx4 v[{XA}:{XA + 3}], v1, s[{SX}:{SX + 3}], 0 offen
    buffer_load_dwordx4 v[{XA + 4}:{XA + 7}], v1, s[{SX}:{SX + 3}], 0 offen offset:64
    buffer_load_dwordx4 v[{XA + 8}:{XA + 11}], v1, s[{SX}:{SX + 3}], 0 offen offset:128
    buffer_load_dwordx2 v[{XA + 12}:{XA + 13}], v22, s[{SX}:{SX + 3}], 0 offen offset:192
    s_barrier
    """)
    srd(SWS, 18, 19, WS_BYTES)
    srd(SOUT, 14, 15, 896)
    nlater = 0
    if qa and qwarm:
        a(f"""
        s_add_u32 s52, s{SQP}, {W_QA}
        s_mov_b64 exec, 0xf
        buffer_load_dwordx4 v[176:179], v{VOG}, s[{SWS}:{SWS + 3}], s52 offen
        s_mov_b64 exec, -1
        """)
        nlater += 1
    if warm == 2:
        a(f"buffer_store_dwordx4 v[{VZ}:{VZ + 3}], v{VOP}, s[{SWS}:{SWS + 3}], s{SOSP} offen")
        nlater += 1
    if pretouch:
        a(f"""
        s_add_u32 s52, s8, s68
        s_addc_u32 s53, s9, 0
        s_lshl_b32 s54, s{SH}, 9
        s_lshl_b32 s55, s{SRB}, 5
        s_add_u32 s54, s54, s55
        s_mul_i32 s54, s54, 896
        s_add_u32 s54, s12, s54
        s_addc_u32 s55, s13, 0
        s_cmp_eq_u32 s{SW}, 1
        s_cselect_b32 s{SV}, s52, s14
        s_cselect_b32 s{SV + 1}, s53, s15
        s_cmp_eq_u32 s{SW}, 2
        s_cselect_b32 s{SV}, s54, s{SV}
        s_cselect_b32 s{SV + 1}, s55, s{SV + 1}
        s_and_b32 s{SV + 1}, s{SV + 1}, 0xffff
        s_mov_b32 s{SV + 2}, 4
        s_mov_b32 s{SV + 3}, 0x20000
        s_mov_b64 exec, 1
        buffer_load_dword v176, v{VZ}, s[{SV}:{SV + 3}], 0 offen nt
        s_mov_b64 exec, -1
        """)
        nlater += 1
    a(f"""
    s_mov_b32 s{MODD}, 0xffff0000
    s_mov_b32 s{MODD + 1}, 0xffff0000
    s_mov_b32 s{MHI}, 0
    s_mov_b32 s{MHI + 1}, -1
    s_mov_b32 s{MAA}, 0xaaaaaaaa
    s_mov_b32 s{MAA + 1}, 0xaaaaaaaa
    v_and_b32 v1, 3, v0
    v_lshlrev_b32 v1, 2, v1
    v_add_u32 v{VPRA}, {F_PROG}, v1
    v_add_u32 v{VFQA}, {F_Q}, v1
    v_add_u32 v{VFSA}, {F_M}, v1
    """)
    VWA, VWA2 = 24, 25
    a(f"""
    v_lshrrev_b32 v1, 2, v{VN}
    v_and_b32 v27, 3, v{VN}
    v_lshl_add_u32 v22, v{VG}, 3, v1
    v_lshlrev_b32 v22, 7, v22
    v_lshl_add_u32 v22, v27, 3, v22
    v_lshrrev_b32 v23, 1, v1
    v_and_b32 v26, 1, v{VG}
    v_lshl_add_u32 v26, v26, 1, v23
    v_xor_b32 v26, s{SW}, v26
    v_lshl_add_u32 v22, v26, 5, v22
    v_add_u32 v{VWA}, {L_WQ}, v22
    v_lshl_add_u32 v22, v{VG}, 2, v1
    v_lshlrev_b32 v22, 7, v22
    v_lshl_add_u32 v22, v27, 3, v22
    v_lshrrev_b32 v26, 1, v{VG}
    v_lshl_add_u32 v26, v26, 1, v23
    v_xor_b32 v26, s{SW}, v26
    v_lshl_add_u32 v22, v26, 5, v22
    v_add_u32 v{VWA2}, {L_WQ + 96 * 128}, v22
    s_lshl_b32 s52, s{SH}, 13
    s_lshl_b32 s53, s{SW}, 9
    s_add_u32 s52, s52, s53
    s_add_u32 s68, s52, {W_QA if qa else W_QB}
    s_add_u32 s69, s68, 4096
    v_lshrrev_b32 v1, 5, v0
    v_and_b32 v22, 31, v0
    v_lshlrev_b32 v22, 4, v22
    v_lshl_add_u32 v186, v1, 11, v22
    v_and_b32 v22, 3, v0
    v_lshrrev_b32 v187, v22, s{SXCC}
    v_and_b32 v187, 1, v187
    v_lshlrev_b32 v187, 8, v187
    s_mov_b32 s24, 0x05030201
    s_mov_b32 s25, 0x06050302
    s_mov_b32 s26, 0x07060503
    s_mov_b32 s27, 0xfffffe00
    s_lshl_b32 s52, s{SH}, 17
    s_lshl_b32 s53, s{SRB}, 14
    s_add_u32 s52, s52, s53
    s_lshl_b32 s53, s{SW}, 12
    s_add_u32 s52, s52, s53
    s_add_u32 s{SOG}, s52, {W_OS}
    """)
    lds_wait(VPRA, 1, "v_cmp_le_u32 vcc, 4, v1", "wq")
    stamp('e')
    WB = 28
    for t in range(3):
        for u in range(2):
            r = WB + 4 * t + 2 * u
            a(f"ds_read_b64_tr_b16 v[{r}:{r + 1}], v{VWA} offset:{t * 4096 + u * 512}")
    a(f"ds_read_b64_tr_b16 v[{WB + 12}:{WB + 13}], v{VWA2}")
    QC, QC2 = 44, 48
    a(f"s_waitcnt vmcnt({nlater}) lgkmcnt(0)")
    a(f"v_mfma_f32_16x16x16_bf16 v[{QC2}:{QC2 + 3}], v[{XA + 12}:{XA + 13}], v[{WB + 12}:{WB + 13}], 0")
    for t in range(3):
        cin = "0" if t == 0 else f"v[{QC}:{QC + 3}]"
        a(f"v_mfma_f32_16x16x32_bf16 v[{QC}:{QC + 3}], v[{XA + 4 * t}:{XA + 4 * t + 3}], v[{WB + 4 * t}:{WB + 4 * t + 3}], {cin}")
    a(f"""
    s_add_u32 s{STAG}, s{STAG}, {TAG_INC:#x}
    s_or_b32 s{STAG}, s{STAG}, 1
    s_add_u32 s52, s{SQP}, {W_QA}
    s_add_u32 s53, s{SQP}, {W_QB}
    s_nop 4
    v_add_f32 v56, v{QC}, v{QC2}
    v_add_u32 v56, 0x100, v56
    v_and_or_b32 v56, v56, s27, v187
    v_mov_b32 v51, s{STAG}
    s_nop 0
    v_mov_b32_dpp v52, v56 quad_perm:[0,0,0,0] {DPPM}
    v_mov_b32_dpp v53, v56 quad_perm:[1,1,1,1] {DPPM}
    v_mov_b32_dpp v54, v56 quad_perm:[2,2,2,2] {DPPM}
    v_mov_b32_dpp v55, v56 quad_perm:[3,3,3,3] {DPPM}
    v_perm_b32 v48, v53, v52, s24
    v_perm_b32 v49, v54, v53, s25
    v_perm_b32 v50, v55, v54, s26
    s_mov_b64 exec, 0x1111
    """)
    if qa:
        a(f"buffer_store_dwordx4 v[48:51], v{VQPO}, s[{SWS}:{SWS + 3}], s52 offen")
    a(f"""
    buffer_store_dwordx4 v[48:51], v{VQPO}, s[{SWS}:{SWS + 3}], s53 offen sc1
    s_mov_b64 exec, -1
    """)
    if qack or not qa:
        a("s_waitcnt vmcnt(0)")
    if qprog:
        lds_wait(VPRA, 1, f"v_cmp_le_u32 vcc, {qprog}, v1", "qp")
    stamp('e')
    QG = 52
    VQA, VKA, VVA = 26, 28, 36
    VPW, VMW, VMR, VPA = 32, 33, 35, 27
    VQ, VKB, VC = 72, 104, 168
    VVB = 192
    VP, VONE, VO, VLA, VOUT = 52, 40, 144, 160, 124
    SBG, STHR = 73, 72
    M2 = 30
    def late_warm():
        pol = ["", " sc1", " nt", " sc1 nt"][wpol]
        a(f"""
        s_lshl_b32 s52, s{SCB}, 10
        s_add_u32 s52, s52, s{SOG}
        buffer_load_dwordx4 v[176:179], v{VOG}, s[{SWS}:{SWS + 3}], s52 offen{pol}
        """)
    def addr_setup():
        a(f"""
        v_and_b32 v1, 1, v{VN}
        v_lshlrev_b32 v22, 9, v1
        v_lshl_add_u32 v22, v{VG}, 4, v22
        v_add_u32 v{VQA}, {L_Q}, v22
        v_lshlrev_b32 v22, 8, v1
        v_lshl_add_u32 v22, v{VG}, 4, v22
        v_add_u32 v{VPA}, {L_P}, v22
        v_xor_b32 v1, v{VG}, v{VN}
        v_lshlrev_b32 v1, 4, v1
        v_lshl_add_u32 v1, v{VN}, 9, v1
        s_lshl_b32 s52, s{SW}, 14
        v_add_u32 v{VKA}, s52, v1
        """)
        for t in range(1, 4):
            a(f"v_xor_b32 v{VKA + t}, {t << 6}, v{VKA}")
        a(f"""
        v_lshrrev_b32 v1, 2, v{VN}
        v_and_b32 v22, 3, v{VN}
        v_lshl_add_u32 v23, v{VG}, 3, v1
        v_lshlrev_b32 v23, 9, v23
        v_lshl_add_u32 v23, v22, 3, v23
        v_and_b32 v22, 1, v{VG}
        v_lshl_add_u32 v1, v22, 2, v1
        s_lshl_b32 s52, s{SW}, 2
        v_xor_b32 v1, s52, v1
        v_lshl_add_u32 v23, v1, 5, v23
        v_add_u32 v{VVA}, {L_V}, v23
        """)
        for b in range(1, 4):
            a(f"v_xor_b32 v{VVA + b}, {b << 5}, v{VVA}")
        a(f"""
        v_lshrrev_b32 v1, 5, v0
        v_and_b32 v22, 31, v0
        v_lshlrev_b32 v23, 8, v1
        v_lshl_add_u32 v23, v22, 1, v23
        s_lshl_b32 s52, s{SW}, 6
        s_add_u32 s52, s52, {L_P}
        v_add_u32 v{VPW}, s52, v23
        s_lshl_b32 s52, s{SW}, 2
        s_add_u32 s52, s52, {L_MX}
        v_lshl_add_u32 v{VMW}, v1, 4, s52
        v_mov_b32 v{VMR}, {L_MX}
        s_lshl_b32 s52, s{SW}, 11
        s_add_u32 s52, s52, {L_WO}
        v_lshl_add_u32 v34, v0, 2, s52
        s_mov_b32 s{M2}, 0xcccccccc
        s_mov_b32 s{M2 + 1}, 0xcccccccc
        """)
        for r in range(4):
            a(f"v_mov_b32 v{VONE + r}, 0x3f803f80")
    def task(kk):
        if kk == 0:
            for blk in range(2):
                for t in range(8):
                    r = VKB + blk * 32 + 4 * t
                    a(f"ds_read_b128 v[{r}:{r + 3}], v{VKA + (t & 3)} offset:{blk * 8192 + (t >> 2) * 256}")
                if blk == 0:
                    a("s_waitcnt lgkmcnt(4)")
        else:
            j = kk - 1
            for b in range(4):
                for u in range(2):
                    r = VVB + 16 * j + 4 * b + 2 * u
                    a(f"ds_read_b64_tr_b16 v[{r}:{r + 1}], v{VVA + b} offset:{j * 16384 + u * 2048}")
        a(f"s_mov_b32 s{SBG}, {kk + 1}")
        a(f"s_mov_b32 s{STHR}, {24 + 4 * kk}")
    def bg(loop):
        lb = a.label("bg")
        a(f"""
        {lb}:
        s_cmp_ge_u32 s{SBG}, 5
        s_cbranch_scc1 {lb}_x
        ds_read_b32 v1, v{VPRA}
        s_waitcnt lgkmcnt(0)
        v_cmp_le_u32 vcc, s{STHR}, v1
        s_cmp_eq_u64 vcc, -1
        s_cbranch_scc0 {lb}_x
        """)
        for kk in range(5):
            if kk < 4:
                a(f"s_cmp_lg_u32 s{SBG}, {kk}\ns_cbranch_scc1 {lb}_t{kk}")
            task(kk)
            a(f"s_branch {lb if loop else lb + '_x'}")
            if kk < 4:
                a(f"{lb}_t{kk}:")
        a(f"{lb}_x:")
    def ensure(kk, slp=None):
        lb = a.label("ens")
        a(f"s_cmp_gt_u32 s{SBG}, {kk}\ns_cbranch_scc1 {lb}")
        lds_wait(VPRA, 1, f"v_cmp_le_u32 vcc, s{STHR}, v1", "e", slp=slp)
        task(kk)
        a(f"{lb}:")

    a(f"""
    s_mov_b32 s{SSPIN}, {SPIN}
    s_mov_b32 s24, 0
    s_mov_b32 s{SBG}, 0
    s_lshl_b32 s{STHR}, s{SW}, 2
    s_add_u32 s{STHR}, s{STHR}, 8
    """)
    def qloads():
        for qi, sr_ in enumerate((68, 69)):
            a(f"buffer_load_dwordx4 v[{QG + 4 * qi}:{QG + 4 * qi + 3}], v186, s[{SWS}:{SWS + 3}], s{sr_} offen sc1")
    qloads()
    addr_setup()
    a("s_branch L_pollq_issued")
    a("L_pollq:")
    qloads()
    a("L_pollq_issued:")
    if bgon:
        bg(True)
    a(f"""
    s_sub_u32 s{SSPIN}, s{SSPIN}, 1
    s_cbranch_scc1 L_pollq_done
    s_waitcnt vmcnt(0)
    v_cmp_eq_u32 s[54:55], s{STAG}, v{QG + 3}
    v_cmp_eq_u32 vcc, s{STAG}, v{QG + 7}
    s_and_b64 s[54:55], s[54:55], vcc
    """)
    a("s_cmp_eq_u64 s[54:55], -1")
    if qa:
        a(f"""
        s_cbranch_scc1 L_pollq_done
        s_add_u32 s24, s24, 1
        s_cmp_lg_u32 s24, {NA}
        s_cbranch_scc1 L_pollq
        s_add_u32 s68, s68, {W_QB - W_QA}
        s_add_u32 s69, s69, {W_QB - W_QA}
        s_branch L_pollq
        """)
    else:
        a("s_cbranch_scc0 L_pollq")
    a(f"""
    L_pollq_done:
    s_waitcnt vmcnt(0)
    """)
    if cnt:
        a(f"s_mov_b32 s36, s{SSPIN}")
    a(f"""
    s_mov_b32 s52, 0x0504030c
    s_mov_b32 s53, 0x0403020c
    v_lshlrev_b32 v60, 8, v{QG}
    v_perm_b32 v61, v{QG + 1}, v{QG}, s52
    v_perm_b32 v62, v{QG + 2}, v{QG + 1}, s53
    v_and_b32 v63, 0xffffff00, v{QG + 2}
    v_lshlrev_b32 v64, 8, v{QG + 4}
    v_perm_b32 v65, v{QG + 5}, v{QG + 4}, s52
    v_perm_b32 v66, v{QG + 6}, v{QG + 5}, s53
    v_and_b32 v67, 0xffffff00, v{QG + 6}
    v_add_f32 v60, v60, v64
    v_add_f32 v61, v61, v65
    v_add_f32 v62, v62, v66
    v_add_f32 v63, v63, v67
    v_lshrrev_b32 v1, 5, v0
    v_and_b32 v22, 31, v0
    v_permlane32_swap_b32 v60, v61
    v_permlane32_swap_b32 v62, v63
    v_lshlrev_b32 v22, 3, v22
    v_add_f32 v60, v60, v61
    v_add_f32 v62, v62, v63
    v_lshl_add_u32 v22, v1, 1, v22
    s_lshl_b32 s55, s{SW}, 8
    s_add_u32 s55, s55, {L_Q}
    v_cvt_pk_bf16_f32 v60, v60, v62
    v_add_u32 v22, s55, v22
    s_lshl_b32 s55, s{SW}, 2
    s_add_u32 s55, s55, {F_Q}
    v_mov_b32 v1, s55
    v_mov_b32 v23, 1
    ds_write_b16 v22, v60
    ds_write_b16_d16_hi v22, v60 offset:4
    s_mov_b64 exec, 1
    ds_write_b32 v1, v23
    s_mov_b64 exec, -1
    s_and_b32 s52, s{SXCC}, 1
    s_lshr_b32 s53, s{SXCC}, 1
    s_and_b32 s53, s53, 1
    s_lshl_b32 s53, s53, 24
    s_or_b32 s52, s52, s53
    s_lshr_b32 s53, s{SXCC}, 2
    s_and_b32 s53, s53, 1
    s_lshl_b32 s53, s53, 16
    s_lshr_b32 s54, s{SXCC}, 3
    s_and_b32 s54, s54, 1
    s_lshl_b32 s54, s54, 8
    v_xor_b32 v60, s52, v{QG}
    v_xor_b32 v61, s52, v{QG + 4}
    v_xor_b32 v62, s53, v{QG + 1}
    v_xor_b32 v63, s53, v{QG + 5}
    v_xor_b32 v64, s54, v{QG + 2}
    v_xor_b32 v65, s54, v{QG + 6}
    v_or_b32 v60, v60, v61
    v_or_b32 v62, v62, v63
    v_or_b32 v64, v64, v65
    v_and_b32 v60, 0x01000001, v60
    v_and_b32 v62, 0x00010000, v62
    v_and_b32 v64, 0x00000100, v64
    v_or3_b32 v60, v60, v62, v64
    v_cmp_eq_u32 vcc, 0, v60
    v_add_u32 v1, {F_L - F_Q}, v1
    s_cmp_eq_u64 vcc, -1
    s_cselect_b32 s54, 3, 1
    v_mov_b32 v23, s54
    s_mov_b64 exec, 1
    ds_write_b32 v1, v23
    s_mov_b64 exec, -1
    """)
    if warm == 1:
        for kk in range(4):
            a(f"buffer_load_dwordx4 v[{QG + 4 * kk}:{QG + 4 * kk + 3}], v{VOG}, s[{SWS}:{SWS + 3}], s{SOG} offen offset:{kk * 1024} sc1")
    a(f"""
    L_fqw:
    ds_read_b32 v22, v{VFQA}
    s_waitcnt lgkmcnt(0)
    v_cmp_ne_u32 vcc, 0, v22
    s_cmp_eq_u64 vcc, -1
    s_cbranch_scc1 L_fqw_ok
    """)
    if bgon:
        bg(False)
    a(f"""
    s_branch L_fqw
    L_fqw_ok:
    """)
    for t in range(8):
        a(f"ds_read_b128 v[{VQ + 4 * t}:{VQ + 4 * t + 3}], v{VQA} offset:{t * 64}")
    stamp('e')
    if warm == 3 and wpos == 3:
        late_warm()
    ensure(0)
    a("s_waitcnt lgkmcnt(0)")
    for t in range(8):
        for blk in range(2):
            c = VC + 4 * blk
            r = VKB + blk * 32 + 4 * t
            cin = "0" if t == 0 else f"v[{c}:{c + 3}]"
            a(f"v_mfma_f32_16x16x32_bf16 v[{c}:{c + 3}], v[{VQ + 4 * t}:{VQ + 4 * t + 3}], v[{r}:{r + 3}], {cin}")
    C = 1.4426950408889634 / 16.0
    a(f"""
    s_mov_b32 s52, {f2u(C):#x}
    s_mov_b32 s54, 1
    s_mov_b32 s55, 1
    s_lshl_b32 s53, s{SW}, 2
    s_add_u32 s53, s53, {F_M}
    v_mov_b32 v1, s53
    v_mov_b32 v72, 1
    s_nop 0
    v_cndmask_b32 v22, v{VC}, v{VC + 1}, s[{MHI}:{MHI + 1}]
    v_cndmask_b32 v23, v{VC + 4}, v{VC + 5}, s[{MHI}:{MHI + 1}]
    v_cndmask_b32 v22, v22, v23, s[{MODD}:{MODD + 1}]
    s_nop 1
    v_max_f32_dpp v23, v22, v22 quad_perm:[1,0,3,2] {DPPM}
    s_nop 1
    v_max_f32_dpp v23, v23, v23 quad_perm:[2,3,0,1] {DPPM}
    s_nop 1
    v_max_f32_dpp v23, v23, v23 row_half_mirror {DPPM}
    s_nop 1
    v_max_f32_dpp v23, v23, v23 row_mirror {DPPM}
    v_mov_b32 v73, v23
    s_nop 1
    v_permlane16_swap_b32 v23, v73
    s_nop 0
    v_max_f32 v23, v23, v73
    s_mov_b64 exec, s[54:55]
    ds_write_b32 v{VMW}, v23
    s_mov_b64 exec, 1
    ds_write_b32 v1, v72
    s_mov_b64 exec, -1
    """)
    stamp('e')
    a(f"""
    L_mw:
    ds_read_b32 v73, v{VFSA}
    ds_read_b128 v[76:79], v{VMR}
    ds_read_b128 v[80:83], v{VMR} offset:16
    s_waitcnt lgkmcnt(0)
    v_cmp_ne_u32 vcc, 0, v73
    s_cmp_eq_u64 vcc, -1
    s_cbranch_scc0 L_mw
    v_max3_f32 v76, v76, v77, v78
    v_max3_f32 v80, v80, v81, v82
    v_max_f32 v76, v76, v79
    v_max_f32 v80, v80, v83
    v_mul_f32 v76, s52, v76
    v_mul_f32 v80, s52, v80
    v_cndmask_b32 v77, v76, v80, s[{MHI}:{MHI + 1}]
    v_fma_f32 v22, v22, s52, -v77
    v_exp_f32 v22, v22
    v_add_u32 v1, 16, v1
    v_cndmask_b32 v{VOUT + 2}, v76, v80, s[{M2}:{M2 + 1}]
    v_cvt_pk_bf16_f32 v22, v22, v22
    ds_write_b16 v{VPW}, v22
    s_mov_b64 exec, 1
    ds_write_b32 v1, v72
    s_mov_b64 exec, -1
    v_mov_b32 v{VOUT + 3}, s{STAG}
    """)
    stamp('e')
    a(f"""
    L_pw:
    ds_read_b32 v73, v{VFSA} offset:16
    """)
    for j in range(4):
        a(f"ds_read_b128 v[{VP + 4 * j}:{VP + 4 * j + 3}], v{VPA} offset:{j * 64}")
    a(f"""
    s_waitcnt lgkmcnt(0)
    v_cmp_ne_u32 vcc, 0, v73
    s_cmp_eq_u64 vcc, -1
    s_cbranch_scc0 L_pw
    """)
    stamp()
    lds_wait(VFQA, 1, "v_cmp_ne_u32 vcc, 0, v1", "loc", slp=0, off=F_L - F_Q)
    a(f"""
    v_cmp_eq_u32 vcc, 3, v1
    s_cmp_eq_u64 vcc, -1
    s_cselect_b32 s{SLOC}, 1, 0
    """)
    if force_remote:
        a(f"s_mov_b32 s{SLOC}, 0")
    if warm == 3 and wpos == 6:
        late_warm()
    for j in range(4):
        if j == 3 and specv:
            lb = a.label("v3")
            a(f"""
            s_cmp_gt_u32 s{SBG}, 4
            s_cbranch_scc1 {lb}_ok
            {lb}:
            ds_read_b32 v1, v{VPRA}
            """)
            for b in range(4):
                for u in range(2):
                    r = VVB + 48 + 4 * b + 2 * u
                    a(f"ds_read_b64_tr_b16 v[{r}:{r + 1}], v{VVA + b} offset:{3 * 16384 + u * 2048}")
            a(f"""
            s_waitcnt lgkmcnt(0)
            v_cmp_le_u32 vcc, 36, v1
            s_cmp_eq_u64 vcc, -1
            s_cbranch_scc0 {lb}
            {lb}_ok:
            """)
        else:
            ensure(j + 1, slp=(0 if j == 3 else None))
        a("s_waitcnt lgkmcnt(0)")
        if j == 3:
            stamp('t')
        cin = "0" if j == 0 else f"v[{VLA}:{VLA + 3}]"
        a(f"v_mfma_f32_16x16x32_bf16 v[{VLA}:{VLA + 3}], v[{VP + 4 * j}:{VP + 4 * j + 3}], v[{VONE}:{VONE + 3}], {cin}")
        for b in range(4):
            c = VO + 4 * b
            r = VVB + 16 * j + 4 * b
            cin = "0" if j == 0 else f"v[{c}:{c + 3}]"
            a(f"v_mfma_f32_16x16x32_bf16 v[{c}:{c + 3}], v[{VP + 4 * j}:{VP + 4 * j + 3}], v[{r}:{r + 3}], {cin}")
    a(f"""
    s_nop 3
    v_cndmask_b32 v1, v{VLA}, v{VLA + 1}, s[{M2}:{M2 + 1}]
    v_cndmask_b32 v{VOUT + 2}, v{VOUT + 2}, v1, s[{MAA}:{MAA + 1}]
    """)
    for hd in range(2):
        a(f"v_cndmask_b32 v{22 + hd}, v{VO + hd}, v{VO + 4 + hd}, s[{MODD}:{MODD + 1}]")
    for hd in range(2):
        a(f"v_cndmask_b32 v{72 + hd}, v{VO + 8 + hd}, v{VO + 12 + hd}, s[{MODD}:{MODD + 1}]")
    for hd in range(2):
        a(f"v_cndmask_b32 v{VOUT + hd}, v{22 + hd}, v{72 + hd}, s[{MHI}:{MHI + 1}]")
    a(f"""
    s_cmp_eq_u32 s{SLOC}, 0
    s_cbranch_scc1 L_pub_remote
    buffer_store_dwordx4 v[{VOUT}:{VOUT + 3}], v{VOP}, s[{SWS}:{SWS + 3}], s{SOSP} offen
    s_branch L_pub_done
    L_pub_remote:
    buffer_store_dwordx4 v[{VOUT}:{VOUT + 3}], v{VOP}, s[{SWS}:{SWS + 3}], s{SOSP} offen sc1
    L_pub_done:
    """)
    stamp()
    VW = 72
    VRW, VRF, VFSP = 104, 105, 106
    a(f"""
    s_mov_b32 s54, 0x05040100
    s_mov_b32 s55, 0x07060302
    s_lshl_b32 s52, s{SW}, 9
    s_add_u32 s52, s52, {L_RED}
    v_lshl_add_u32 v{VRW}, v0, 3, s52
    v_and_b32 v1, 3, v0
    v_max_u32 v1, 1, v1
    v_lshlrev_b32 v1, 2, v1
    v_add_u32 v{VRF}, {F_R}, v1
    v_lshrrev_b32 v1, 3, v0
    v_lshlrev_b32 v1, 13, v1
    v_and_b32 v22, 7, v0
    v_lshl_add_u32 v{VFSP}, v22, 4, v1
    s_lshl_b32 s52, s{SCB}, 16
    s_lshl_b32 s53, s{SH}, 3
    s_add_u32 s53, s53, s{SRB}
    s_lshl_b32 s53, s53, 7
    s_add_u32 s52, s52, s53
    s_add_u32 s24, s52, {W_FS}
    s_cmp_eq_u32 s{SCB}, 3
    s_cselect_b32 s27, 0, -1
    s_mov_b32 s26, -1
    s_lshl_b32 s52, s{SH}, 3
    s_lshl_b64 s[28:29], 0xff, s52
    s_cmp_eq_u32 s{SLOC}, 0
    s_cselect_b64 s[28:29], 0, s[28:29]
    s_and_b64 s[28:29], s[28:29], s[26:27]
    v_mov_b32 v161, s{STAG}
    v_mov_b32 v163, s{STAG}
    s_lshl_b32 s52, s{SW}, 2
    s_add_u32 s52, s52, {F_R}
    v_mov_b32 v107, s52
    v_mov_b32 v108, 1
    """)
    G = 128
    MX, O0, O1, LA, T = 144, 145, 146, 147, 148
    E = 152
    def wo_prep():
        lds_wait(VPRA, 1, "v_cmp_le_u32 vcc, 40, v1", "wo", slp=0)
        for hd in range(2):
            for jj in range(4):
                r = VW + 8 * hd + 2 * jj
                a(f"ds_read2st64_b32 v[{r}:{r + 1}], v34 offset0:{hd * 32 + 2 * jj} offset1:{hd * 32 + 2 * jj + 1}")
        a("s_waitcnt lgkmcnt(0)")
        for hd in range(2):
            for i in range(4):
                lo, hi = VW + 8 * hd + 2 * i, VW + 8 * hd + 2 * i + 1
                a(f"v_perm_b32 v{88 + 8 * hd + 2 * i}, v{hi}, v{lo}, s54")
                a(f"v_perm_b32 v{89 + 8 * hd + 2 * i}, v{hi}, v{lo}, s55")
    def gloads():
        for kk in range(4):
            a(f"buffer_load_dwordx4 v[{G + 4 * kk}:{G + 4 * kk + 3}], v{VOG}, s[{SWS}:{SWS + 3}], s{SOG} offen offset:{kk * 1024} sc1")
    if wofirst:
        wo_prep()
    if ack1:
        a("s_waitcnt vmcnt(0)")
    else:
        a(f"s_cmp_lg_u32 s{SLOC}, 0\ns_cbranch_scc1 L_noack1\ns_waitcnt vmcnt(0)\nL_noack1:")
    a(f"s_mov_b32 s{SSPIN}, {SPIN}")
    if not wofirst:
        gloads()
        wo_prep()
        a("s_branch L_poll1_issued")
    a("L_poll1:")
    gloads()
    a("L_poll1_issued:")
    a(f"""
    s_sub_u32 s{SSPIN}, s{SSPIN}, 1
    s_cselect_b32 s25, 1, 0
    s_waitcnt vmcnt(0)
    v_max3_f32 v{MX}, v{G + 2}, v{G + 6}, v{G + 10}
    v_max_f32 v{MX}, v{MX}, v{G + 14}
    v_cmp_eq_u32 s[52:53], s{STAG}, v{G + 3}
    v_cmp_eq_u32 vcc, s{STAG}, v{G + 7}
    v_max_f32_dpp v{MX}, v{MX}, v{MX} row_ror:8 {DPPM}
    s_and_b64 s[52:53], s[52:53], vcc
    v_mov_b32 v{T}, v{MX}
    v_cmp_eq_u32 vcc, s{STAG}, v{G + 11}
    s_and_b64 s[52:53], s[52:53], vcc
    v_permlane16_swap_b32 v{MX}, v{T}
    v_cmp_eq_u32 vcc, s{STAG}, v{G + 15}
    v_max_f32 v{MX}, v{MX}, v{T}
    s_and_b64 s[52:53], s[52:53], vcc
    v_mov_b32 v{T}, v{MX}
    s_cmp_eq_u64 s[52:53], -1
    s_cbranch_scc1 L_poll1_done
    s_cmp_eq_u32 s25, 0
    s_cbranch_scc1 L_poll1
    L_poll1_done:
    v_permlane32_swap_b32 v{MX}, v{T}
    s_nop 0
    """)
    if cnt:
        a(f"s_mov_b32 s37, s{SSPIN}")
    stamp()
    a(f"v_max_f32 v{MX}, v{MX}, v{T}")
    for kk in range(4):
        a(f"v_sub_f32 v{E + kk}, v{G + 4 * kk + 2}, v{MX}")
    for kk in range(4):
        a(f"v_exp_f32 v{E + kk}, v{E + kk}")
    a("s_nop 0")
    for kk in range(4):
        op = "v_mul_f32_dpp" if kk == 0 else "v_fmac_f32_dpp"
        a(f"{op} v{O0}, v{E + kk}, v{G + 4 * kk} quad_perm:[0,0,0,0] {DPPM}")
        a(f"{op} v{O1}, v{E + kk}, v{G + 4 * kk + 1} quad_perm:[2,2,2,2] {DPPM}")
        a(f"{op} v{LA}, v{E + kk}, v{G + 4 * kk + 2} quad_perm:[0,0,2,2] {DPPM}")
    a(f"""
    v_mov_b32 v{T}, v{LA}
    s_nop 0
    v_permlane32_swap_b32 v{O0}, v{O1}
    v_permlane32_swap_b32 v{LA}, v{T}
    v_add_f32 v{O0}, v{O0}, v{O1}
    v_add_f32 v{LA}, v{LA}, v{T}
    s_nop 1
    v_permlane16_swap_b32 v{O0}, v{LA}
    s_nop 0
    v_add_f32 v{O0}, v{O0}, v{LA}
    s_nop 1
    v_add_f32_dpp v{O0}, v{O0}, v{O0} row_ror:8 {DPPM}
    s_nop 1
    v_mov_b32_dpp v{T}, v{O0} quad_perm:[1,1,3,3] {DPPM}
    v_rcp_f32 v{LA}, v{O0}
    v_cvt_pk_bf16_f32 v{O1}, v{O0}, v{T}
    s_nop 0
    """)
    for i in range(4):
        a(f"v_readlane_b32 s{SP + i}, v{O1}, {2 * i}")
        a(f"v_readlane_b32 s{SP + 4 + i}, v{O1}, {32 + 2 * i}")
    a(f"v_readlane_b32 s52, v{LA}, 17")
    a(f"v_readlane_b32 s53, v{LA}, 19")
    for i in range(4):
        for hd in range(2):
            for hf in range(2):
                acc = 152 + 2 * hd + hf
                src2 = "0" if i == 0 else f"v{acc}"
                a(f"v_dot2_f32_bf16 v{acc}, s{SP + 4 * hd + i}, v{88 + 8 * hd + 2 * i + hf}, {src2}")
    stamp('t')
    a(f"""
    s_nop 0
    v_mul_f32 v156, s52, v152
    v_mul_f32 v157, s52, v153
    s_nop 0
    v_fmac_f32 v156, s53, v154
    v_fmac_f32 v157, s53, v155
    s_cmp_eq_u32 s{SW}, 0
    s_cbranch_scc1 L_red0
    ds_write_b64 v{VRW}, v[156:157]
    s_mov_b64 exec, 1
    ds_write_b32 v107, v108
    s_mov_b64 exec, -1
    s_cmp_ge_u32 s2, 28
    s_cbranch_scc1 L_fin
    s_branch L_final
    L_red0:
    v_lshlrev_b32 v1, 3, v0
    L_redw:
    ds_read_b32 v22, v{VRF}
    ds_read_b64 v[152:153], v1 offset:{L_RED + 512}
    ds_read_b64 v[154:155], v1 offset:{L_RED + 1024}
    ds_read_b64 v[158:159], v1 offset:{L_RED + 1536}
    s_waitcnt lgkmcnt(0)
    v_cmp_ne_u32 vcc, 0, v22
    s_cmp_eq_u64 vcc, -1
    s_cbranch_scc0 L_redw
    """)
    stamp('t')
    a(f"""
    v_add_f32 v156, v156, v152
    v_add_f32 v157, v157, v153
    v_add_f32 v154, v154, v158
    v_add_f32 v155, v155, v159
    v_add_f32 v160, v156, v154
    v_add_f32 v162, v157, v155
    """)
    if floc:
        a(f"""
        s_andn2_b64 exec, s[26:27], s[28:29]
        buffer_store_dwordx4 v[160:163], v{VFSP}, s[{SWS}:{SWS + 3}], s24 offen sc1
        s_mov_b64 exec, s[28:29]
        s_cbranch_execz L_noloc
        buffer_store_dwordx4 v[160:163], v{VFSP}, s[{SWS}:{SWS + 3}], s24 offen
        L_noloc:
        s_mov_b64 exec, -1
        """)
    else:
        a(f"""
        s_mov_b64 exec, s[26:27]
        buffer_store_dwordx4 v[160:163], v{VFSP}, s[{SWS}:{SWS + 3}], s24 offen sc1
        s_mov_b64 exec, -1
        """)
    stamp('t')
    a(f"""
    s_cmp_ge_u32 s2, 28
    s_cbranch_scc1 L_fin
    """)
    if fdelay:
        a(f"s_sleep {fdelay}")
    elif ack2:
        a("s_waitcnt vmcnt(0)")
    a(f"""
    L_final:
    s_lshl_b32 s52, s2, 13
    s_lshl_b32 s53, s{SW}, 11
    s_add_u32 s52, s52, s53
    s_add_u32 s52, s52, {W_FS}
    v_and_b32 v1, 7, v0
    v_lshlrev_b32 v1, 3, v1
    v_lshrrev_b32 v22, 5, v0
    v_lshl_add_u32 v23, v22, 2, v1
    s_lshl_b32 s53, s{SW}, 6
    s_add_u32 s53, s53, {L_RED + 4096}
    v_add_u32 v23, s53, v23
    v_add_u32 v107, {F_R2 - F_R}, v107
    v_add_u32 v{VRF}, {F_R2 - F_R}, v{VRF}
    s_mov_b32 s54, 0xff
    s_mov_b32 s55, 0xff
    s_mov_b32 s{SSPIN}, {SPIN}
    {"s_barrier" if ack2 else ""}
    L_poll2:
    buffer_load_dwordx4 v[128:131], v{VOG}, s[{SWS}:{SWS + 3}], s52 offen sc1
    buffer_load_dwordx4 v[132:135], v{VOG}, s[{SWS}:{SWS + 3}], s52 offen offset:1024 sc1
    s_sub_u32 s{SSPIN}, s{SSPIN}, 1
    s_cbranch_scc1 L_poll2_done
    s_waitcnt vmcnt(0)
    v_cmp_eq_u32 s[24:25], s{STAG}, v129
    v_cmp_eq_u32 vcc, s{STAG}, v131
    s_and_b64 s[24:25], s[24:25], vcc
    v_cmp_eq_u32 vcc, s{STAG}, v133
    s_and_b64 s[24:25], s[24:25], vcc
    v_cmp_eq_u32 vcc, s{STAG}, v135
    s_and_b64 s[24:25], s[24:25], vcc
    s_cmp_eq_u64 s[24:25], -1
    s_cbranch_scc1 L_poll2_done
    {f"s_sleep {psleep}" if psleep else ""}
    s_branch L_poll2
    L_poll2_done:
    s_waitcnt vmcnt(0)
    """)
    stamp()
    a(f"""
    v_add_f32 v140, v128, v132
    v_add_f32 v141, v130, v134
    s_nop 1
    v_permlane32_swap_b32 v140, v141
    s_nop 0
    v_add_f32 v140, v140, v141
    s_nop 0
    v_mov_b32 v141, v140
    s_nop 1
    v_permlane16_swap_b32 v140, v141
    s_nop 0
    v_add_f32 v140, v140, v141
    s_nop 1
    v_add_f32_dpp v140, v140, v140 row_ror:8 {DPPM}
    s_mov_b64 exec, s[54:55]
    ds_write_b32 v23, v140
    s_cmp_eq_u32 s{SW}, 0
    s_cbranch_scc1 L_fin0
    s_mov_b64 exec, 1
    ds_write_b32 v107, v108
    s_branch L_fin
    L_fin0:
    s_mov_b64 exec, -1
    s_lshl_b32 s52, s2, 5
    v_lshlrev_b32 v22, 2, v0
    L_finw:
    ds_read_b32 v23, v{VRF}
    ds_read_b64 v[140:141], v1 offset:{L_RED + 4096}
    ds_read_b64 v[142:143], v1 offset:{L_RED + 4096 + 64}
    ds_read_b64 v[144:145], v1 offset:{L_RED + 4096 + 128}
    ds_read_b64 v[146:147], v1 offset:{L_RED + 4096 + 192}
    s_waitcnt lgkmcnt(0)
    v_cmp_ne_u32 vcc, 0, v23
    s_cmp_eq_u64 vcc, -1
    s_cbranch_scc0 L_finw
    """)
    stamp('t')
    a(f"""
    v_add_f32 v140, v140, v142
    v_add_f32 v141, v141, v143
    v_add_f32 v144, v144, v146
    v_add_f32 v145, v145, v147
    v_add_f32 v140, v140, v144
    v_add_f32 v141, v141, v145
    v_cvt_pk_bf16_f32 v140, v140, v141
    s_mov_b64 exec, 0xff
    buffer_store_dword v140, v22, s[{SOUT}:{SOUT + 3}], s52 offen
    s_cmp_lg_u32 s2, 0
    s_cbranch_scc1 L_fin
    s_mov_b64 exec, 1
    v_mov_b32 v2, 0
    v_mov_b32 v3, s{STAG}
    buffer_store_dword v3, v2, s[{SWS}:{SWS + 3}], 0 offen sc1
    L_fin:
    s_mov_b64 exec, -1
    """)
    stamp()
    if cnt and stamps:
        a(f"""
        s_waitcnt lgkmcnt(0)
        s_sub_u32 s52, {SPIN}, s36
        s_add_u32 s{STS + 8}, s{STS}, s52
        s_mov_b32 s{STS + 9}, s{STS + 1}
        s_sub_u32 s52, {SPIN}, s37
        s_add_u32 s{STS + 10}, s{STS}, s52
        s_mov_b32 s{STS + 11}, s{STS + 1}
        """)
    flush_stamps(200, 0, 11, 0)
    a("s_endpgm")

    nst[0] = 1
    SJ, SOF = 66, 67
    VK0, VK1, VV0, VV1, VWQ, VWO, VPA, VPV, VFQ = 4, 5, 6, 7, 8, 9, 10, 11, 12
    a(f"""
    L_loader:
    s_setprio {lprio}
    s_sub_u32 s{SJ}, s{SW}, 4
    v_lshrrev_b32 v1, 3, v0
    v_lshlrev_b32 v2, 13, v1
    v_and_b32 v3, 7, v0
    v_lshrrev_b32 v13, 4, v0
    v_and_b32 v13, 1, v13
    v_lshlrev_b32 v13, 1, v13
    v_xor_b32 v3, v3, v13
    s_and_b32 s52, s{SJ}, 1
    s_lshl_b32 s52, s52, 2
    v_xor_b32 v3, s52, v3
    v_lshl_add_u32 v{VWQ}, v3, 4, v2
    s_lshr_b32 s53, s{SS}, 3
    s_mul_i32 s53, s53, {112 * 8192}
    s_lshl_b32 s54, s{SH}, 10
    s_add_u32 s53, s53, s54
    s_and_b32 s54, s{SS}, 7
    s_lshl_b32 s54, s54, 7
    s_add_u32 s53, s53, s54
    s_lshl_b32 s54, s{SJ}, 16
    s_add_u32 s{SOF}, s53, s54
    s_lshl_b32 s56, s{SJ}, 10
    s_add_u32 s57, s56, {L_WQ}
    s_mov_b32 m0, s57
    v_lshrrev_b32 v1, 5, v0
    v_and_b32 v2, 31, v0
    v_xor_b32 v3, v2, v1
    s_lshl_b32 s52, s{SJ}, 1
    v_xor_b32 v3, s52, v3
    v_lshlrev_b32 v3, 4, v3
    v_lshl_add_u32 v{VK0}, v1, 9, v3
    v_xor_b32 v{VK1}, 128, v{VK0}
    s_waitcnt lgkmcnt(0)
    """)
    srd(SWQ, 10, 11, 3670016)
    n = [0]
    written = [0]
    NTOT = 40
    def depth():
        return D if n[0] < 20 + D else D2
    def prog(cnt):
        a(f"""
        v_mov_b32 v{VPV}, {cnt}
        s_mov_b64 exec, 1
        ds_write_b32 v{VPA}, v{VPV}
        s_mov_b64 exec, -1
        """)
        written[0] = cnt
    landed = [0]
    def lwarm():
        srd(SWS, 18, 19, WS_BYTES)
        a(f"""
        s_lshl_b32 s52, s{SH}, 17
        s_lshl_b32 s53, s{SRB}, 14
        s_add_u32 s52, s52, s53
        s_lshl_b32 s53, s{SJ}, 12
        s_add_u32 s52, s52, s53
        s_lshl_b32 s53, s{SCB}, 10
        s_add_u32 s52, s52, s53
        s_add_u32 s52, s52, {W_OS}
        v_lshlrev_b32 v13, 4, v0
        buffer_load_dwordx4 v[16:19], v13, s[{SWS}:{SWS + 3}], s52 offen
        """)
        if floc:
            a(f"""
            s_lshl_b32 s53, s2, 13
            s_lshl_b32 s54, s{SH}, 10
            s_add_u32 s53, s53, s54
            s_add_u32 s53, s53, {W_FS}
            s_cmp_lt_u32 s2, 28
            s_cselect_b32 s53, s53, {OOB:#x}
            s_cmp_eq_u32 s{SJ}, 0
            s_cselect_b32 s53, s53, {OOB:#x}
            buffer_load_dwordx4 v[24:27], v13, s[{SWS}:{SWS + 3}], s53 offen
            """)
    def throttle(d):
        if n[0] - landed[0] >= d:
            a(f"s_waitcnt vmcnt({d - 1})")
            landed[0] = n[0] - d + 1
            c4 = landed[0] // 4 * 4
            if c4 > written[0]:
                prog(c4)
    for i in range(4):
        if i == 3:
            a(f"s_cmp_lt_u32 s{SJ}, 2\ns_cselect_b32 s{SOF}, s{SOF}, {OOB:#x}")
        throttle(D)
        a(f"buffer_load_dwordx4 v{VWQ}, s[{SWQ}:{SWQ + 3}], s{SOF} offen nt lds")
        n[0] += 1
        if i < 3:
            a(f"s_add_u32 m0, m0, 4096\ns_add_u32 s{SOF}, s{SOF}, 262144")
        if i == 0:
            srd_off(SK, 6, 7, 68, KVN)
    def setup_rest():
        srd_off(SV, 8, 9, 68, KVN)
        srd(SWO, 12, 13, 3670016)
        a(f"""
        v_lshrrev_b32 v1, 5, v0
        v_and_b32 v2, 31, v0
        v_lshlrev_b32 v3, 1, v1
        v_xor_b32 v3, v3, v2
        s_and_b32 s52, s{SJ}, 1
        s_lshl_b32 s52, s52, 2
        v_xor_b32 v3, s52, v3
        v_lshlrev_b32 v3, 4, v3
        v_lshl_add_u32 v{VV0}, v1, 9, v3
        v_xor_b32 v{VV1}, 128, v{VV0}
        v_lshrrev_b32 v1, 4, v0
        v_mul_u32_u24 v1, 896, v1
        v_and_b32 v2, 15, v0
        v_lshl_add_u32 v{VWO}, v2, 4, v1
        v_cmp_le_u32 vcc, 8, v2
        s_cmp_eq_u32 s{SCB}, 3
        s_cselect_b64 s[52:53], vcc, 0
        v_mov_b32 v1, {OOB:#x}
        v_cndmask_b32 v{VWO}, v{VWO}, v1, s[52:53]
        s_lshl_b32 s52, s{SJ}, 2
        s_add_u32 s52, s52, {F_PROG}
        v_mov_b32 v{VPA}, s52
        v_and_b32 v1, 3, v0
        v_lshlrev_b32 v1, 2, v1
        v_add_u32 v{VFQ}, {F_Q}, v1
        """)
    if bar4:
        a("s_barrier")
    def kv_first():
        if rho:
            a(f"s_mov_b32 s70, s{SS}\ns_mov_b32 s71, s56\ns_lshl_b32 s{SOF}, s70, 12\ns_add_u32 s{SOF}, s{SOF}, s71")
        else:
            a(f"s_mov_b32 s{SOF}, s56")
    def kv_next():
        if rho:
            a(f"""
            s_add_u32 s70, s70, {rho}
            s_and_b32 s70, s70, 31
            s_add_u32 s71, s71, 131072
            s_lshl_b32 s{SOF}, s70, 12
            s_add_u32 s{SOF}, s{SOF}, s71
            """)
        else:
            a(f"s_add_u32 s{SOF}, s{SOF}, {KVSTEP}")
    a("s_mov_b32 m0, s56")
    kv_first()
    for i in range(16):
        throttle(D)
        a(f"buffer_load_dwordx4 v{VK0 + (i & 1)}, s[{SK}:{SK + 3}], s{SOF} offen nt lds")
        n[0] += 1
        a("s_add_u32 m0, m0, 4096")
        kv_next()
        if n[0] == D:
            setup_rest()
            if not bar4:
                a("s_barrier")
            stamp()
            if early4:
                a(f"s_waitcnt vmcnt({D - 4})")
                landed[0] = 4
                prog(4)
        else:
            a("s_nop 0")
    a(f"s_add_u32 m0, s56, {L_V}")
    kv_first()
    for i in range(16):
        throttle(D2)
        a(f"buffer_load_dwordx4 v{VV0 + (i & 1)}, s[{SV}:{SV + 3}], s{SOF} offen nt lds")
        n[0] += 1
        a("s_add_u32 m0, m0, 4096")
        kv_next()
    stamp()
    a(f"""
    s_lshl_b32 s52, s{SH}, 9
    s_lshl_b32 s53, s{SRB}, 5
    s_add_u32 s52, s52, s53
    s_lshl_b32 s53, s{SJ}, 2
    s_add_u32 s52, s52, s53
    s_mul_i32 s52, s52, 896
    s_lshl_b32 s53, s{SCB}, 8
    s_add_u32 s{SOF}, s52, s53
    s_add_u32 m0, s56, {L_WO}
    """)
    lds_wait(VFQ, 1, "v_cmp_ne_u32 vcc, 0, v1", "lfq")
    for i in range(4):
        throttle(D2)
        a(f"buffer_load_dwordx4 v{VWO}, s[{SWO}:{SWO + 3}], s{SOF} offen nt lds")
        n[0] += 1
        if i < 3:
            step = 16 * 896 if i != 1 else 256 * 896 - 16 * 896
            a(f"s_add_u32 m0, m0, 4096\ns_add_u32 s{SOF}, s{SOF}, {step}")
    extra = 0
    if warm == 4:
        lwarm()
        extra = 2 if floc else 1
    stamp()
    thr = written[0] + 4
    while thr <= NTOT:
        a(f"s_waitcnt vmcnt({NTOT - thr + extra})")
        prog(thr)
        if thr == 36 and tail:
            stamp()
        thr += 4
    stamp()
    if dirty:
        srd(SWS, 18, 19, WS_BYTES)
        a(f"""
        s_lshl_b32 s52, s2, 2
        s_add_u32 s52, s52, s{SJ}
        s_mul_i32 s52, s52, {dirty * 1024}
        s_add_u32 s52, s52, {5 << 20}
        v_lshlrev_b32 v13, 4, v0
        """)
        for i in range(dirty):
            a(f"buffer_store_dwordx4 v[16:19], v13, s[{SWS}:{SWS + 3}], s52 offen")
            a("s_add_u32 s52, s52, 1024")
    flush_stamps(20, 11, 4, 4)
    a("s_endpgm")
    a("L_end:")
    a("s_endpgm")
    a('.section .rodata,"a"')
    a(".p2align 6")
    out = HEADER + f"; @launch grid=(256,1,1) block=(512,1,1) lds={LDS_BYTES}\n" + a.text() + kernel_desc(k, 256, 102)
    return out

if __name__ == "__main__":
    kw = {}
    for x in sys.argv[2:]:
        key, val = x.lstrip("-").split("=") if "=" in x else (x.lstrip("-"), "1")
        kw[key] = int(val)
    open(sys.argv[1], "w").write(gen(**kw))
```

```python
import struct, sys
from asmlib import *

def f2u(x):
    return struct.unpack("<I", struct.pack("<f", x))[0]

L_K, L_V, L_WQ, L_Q, L_S, L_FL = 0, 65536, 131072, 147456, 148480, 149504
L_WO = L_WQ
L_RED = 0
LDS_BYTES = 149760
F_PROG, F_Q, F_M, F_P, F_R, L_TAG, F_R2, F_L = L_FL, L_FL + 16, L_FL + 32, L_FL + 48, L_FL + 64, L_FL + 80, L_FL + 96, L_FL + 112
L_P, L_MX = L_S, L_S + 512
W_QA, W_OS, W_FS, W_QB, W_TS = 65536, 262144, 1310720, 1572864, 4 << 20
WS_BYTES = 8 << 20
TAG_INC = 0x9E3779B1
SPIN = 200000
OOB = 0x40000000

OVERVIEW = """;
;           workgroups of a head as 16-byte granules {4 x 24-bit value, tag}.  Copy A is stored plainly (read through
;   o:      granules {o head0, o head1, max or sum, tag}; consumer (rb = s >> 2, wave) merges the 32 partial results of
;
"""

def gen(stamps=False, D=8, force_remote=False, warm=4, sleep=1, dbg=-1, qa=1, NA=3, qack=0, pretouch=0, ack2=1, D2=8, qprog=0, early4=1, cnt=0, xq=0, bar4=1, lprio=0, cprio=3, bgon=1, qjunk=1, ack1=1, wpol=0, wpos=6, tail=0, specv=1, rsleep=0, fdelay=0, wat=40, wofirst=0, dirty=0, ilv=1, phase=0, floc=1, qwarm=1, psleep=0, remap=0, rho=11, pad=0, align=0):
    assert 5 <= D <= 20
    D2 = D2 or D
    KVN = (2097152 if rho else 1970176) if ilv else 65536
    KVSTEP = 131072 if ilv else 4096
    a = Asm()
    k = NAME + "_kernel"
    SH, SS, SW, STAG = 20, 21, 22, 23
    SK, SV, SWQ, SX, SWO, SWS, SOUT = 24, 28, 32, 36, 40, 44, 48
    MODD, MHI, MAA = 58, 60, 62
    SXCC, SLOC = 64, 65
    SP = 66
    SSPIN, SRB, SCB = 74, 75, 76
    SOG = 77
    STS = 78
    SOSP, SQP = (56, 57)
    nst = [0]
    def stamp(kind="n"):
        if kind == "e" and tail:
            return
        if kind == "t" and not tail:
            return
        if stamps:
            a(f"s_memrealtime s[{STS + 2 * nst[0]}:{STS + 2 * nst[0] + 1}]")
            nst[0] += 1
    def flush_stamps(vtmp, base=0, cnt=12, wave=0):
        if not stamps:
            return
        if dbg >= 0:
            lb = a.label("dbg")
            a(f"""
            s_waitcnt lgkmcnt(0)
            s_cmp_lg_u32 s2, {dbg}
            s_cbranch_scc1 {lb}
            s_cmp_lg_u32 s{SW}, {wave}
            s_cbranch_scc1 {lb}
            s_mov_b32 s52, s16
            s_and_b32 s53, s17, 0xffff
            s_mov_b32 s54, 256
            s_mov_b32 s55, 0x20000
            s_mov_b64 exec, 1
            """)
            for i in range(cnt):
                a(f"s_sub_u32 s56, s{STS + 2 * (i + 1)}, s{STS}")
                a(f"v_mov_b32 v{vtmp}, s56")
                a(f"v_mov_b32 v{vtmp + 2}, {4 * (base + i)}")
                a(f"buffer_store_dword v{vtmp}, v{vtmp + 2}, s[52:55], 0 offen")
                a("s_nop 1")
            a(f"{lb}:")
            a("s_mov_b64 exec, -1")
            return
        a(f"""
        s_waitcnt lgkmcnt(0)
        s_mov_b32 s{SWS}, s18
        s_and_b32 s{SWS + 1}, s19, 0xffff
        s_mov_b32 s{SWS + 2}, {WS_BYTES}
        s_mov_b32 s{SWS + 3}, 0x20000
        s_lshl_b32 s52, s2, 3
        s_add_u32 s52, s52, s{SW}
        s_lshl_b32 s52, s52, 7
        s_add_u32 s52, s52, {W_TS}
        s_mov_b64 exec, 1
        """)
        for i in range(12):
            a(f"v_mov_b32 v{vtmp}, s{STS + 2 * i}")
            a(f"v_mov_b32 v{vtmp + 1}, s{STS + 2 * i + 1}")
            a(f"v_mov_b32 v{vtmp + 2}, {8 * i}")
            a(f"buffer_store_dwordx2 v[{vtmp}:{vtmp + 1}], v{vtmp + 2}, s[{SWS}:{SWS + 3}], s52 offen")
            a("s_nop 1")
        a("s_mov_b64 exec, -1")
    def lds_wait(addr_v, tmp, cmp, name, slp=None, off=0):
        slp = sleep if slp is None else slp
        lb = a.label(name)
        a(f"""
        {lb}:
        ds_read_b32 v{tmp}, v{addr_v} offset:{off}
        s_waitcnt lgkmcnt(0)
        {cmp}
        s_cmp_eq_u64 vcc, -1
        """)
        if slp:
            a(f"""
            s_cbranch_scc1 {lb}_ok
            s_sleep {slp}
            s_branch {lb}
            {lb}_ok:
            """)
        else:
            a(f"s_cbranch_scc0 {lb}")
    def srd(reg, lo, hi, size):
        a(f"""
        s_mov_b32 s{reg}, s{lo}
        s_and_b32 s{reg + 1}, s{hi}, 0xffff
        s_mov_b32 s{reg + 2}, {size}
        s_mov_b32 s{reg + 3}, 0x20000
        """)
    def srd_off(reg, lo, hi, off, size):
        a(f"""
        s_add_u32 s{reg}, s{lo}, s{off}
        s_addc_u32 s{reg + 1}, s{hi}, 0
        s_and_b32 s{reg + 1}, s{reg + 1}, 0xffff
        s_mov_b32 s{reg + 2}, {size}
        s_mov_b32 s{reg + 3}, 0x20000
        """)
    def swapb(op, reg, tmp, kinds):
        for kind in kinds:
            a(f"v_mov_b32 v{tmp}, v{reg}")
            a("s_nop 1")
            a(f"v_permlane{kind}_swap_b32 v{reg}, v{tmp}")
            a("s_nop 0")
            a(f"{op} v{reg}, v{reg}, v{tmp}")
    DPPM = "row_mask:0xf bank_mask:0xf"

    a(f"""
    .amdgcn_target "amdgcn-amd-amdhsa--gfx950"
    .text
    .globl {k}
    .p2align 8
    .type {k},@function
    {k}:
    s_cmp_ge_u32 s2, 256
    s_cbranch_scc1 L_end
    s_load_dwordx16 s[4:19], s[0:1], 0
    """)
    for _ in range(pad):
        a("s_nop 0")
    if stamps:
        for i in range(78, 102):
            a(f"s_mov_b32 s{i}, 0")
    stamp()
    a(f"""
    v_lshrrev_b32 v1, 6, v0
    {"s_lshr_b32" if remap else "s_and_b32"} s{SH}, s2, {5 if remap else 7}
    {"s_and_b32" if remap else "s_lshr_b32"} s{SS}, s2, {31 if remap else 3}
    v_readfirstlane_b32 s{SW}, v1
    v_and_b32 v0, 63, v0
    s_lshr_b32 s{SRB}, s{SS}, 2
    s_and_b32 s{SCB}, s{SS}, 3
    s_lshl_b32 s52, s{SH}, 25
    s_add_u32 s68, s52, 31457280
    s_cmp_ge_u32 s{SW}, 4
    s_cbranch_scc1 L_loader
    """)

    VN, VG = 2, 3
    VPRA, VFQA, VFSA, VOG = 4, 5, 6, 7
    XA = 8
    VZ = 180
    VOP, VQPO = 184, 185
    a(f"""
    s_setprio {cprio}
    s_getreg_b32 s{SXCC}, hwreg(HW_REG_XCC_ID, 0, 4)
    v_and_b32 v{VN}, 15, v0
    v_lshrrev_b32 v{VG}, 4, v0
    s_lshr_b32 s52, s{SS}, 3
    s_mul_i32 s52, s52, 224
    v_lshl_add_u32 v1, v{VG}, 4, s52
    v_lshl_add_u32 v22, v{VG}, 3, s52
    v_mov_b32 v{VZ}, 0
    v_lshrrev_b32 v23, 3, v0
    v_lshlrev_b32 v23, 12, v23
    v_and_b32 v26, 7, v0
    v_lshl_add_u32 v{VOP}, v26, 4, v23
    v_lshlrev_b32 v{VQPO}, 2, v0
    v_lshlrev_b32 v{VOG}, 4, v0
    s_lshl_b32 s53, s{SH}, 17
    s_lshl_b32 s54, s{SW}, 15
    s_add_u32 s53, s53, s54
    s_lshl_b32 s54, s{SS}, 7
    s_add_u32 s53, s53, s54
    s_add_u32 s{SOSP}, s53, {W_OS}
    s_lshl_b32 s53, s{SH}, 13
    s_lshr_b32 s54, s{SS}, 3
    s_lshl_b32 s54, s54, 11
    s_add_u32 s53, s53, s54
    s_and_b32 s54, s{SS}, 7
    s_lshl_b32 s54, s54, 8
    s_add_u32 s53, s53, s54
    s_lshl_b32 s54, s{SW}, 6
    s_add_u32 s{SQP}, s53, s54
    s_cmp_lg_u32 s{SW}, 0
    s_cbranch_scc1 L_noinit
    v_lshlrev_b32 v27, 2, v0
    v_add_u32 v27, {L_FL}, v27
    s_mov_b64 exec, 0xffffffff
    ds_write_b32 v27, v{VZ}
    s_mov_b64 exec, -1
    L_noinit:
    s_waitcnt lgkmcnt(0)
    """)
    srd(SX, 4, 5, 896)
    a(f"""
    s_load_dword s{STAG}, s[18:19], 0
    buffer_load_dwordx4 v[{XA}:{XA + 3}], v1, s[{SX}:{SX + 3}], 0 offen
    buffer_load_dwordx4 v[{XA + 4}:{XA + 7}], v1, s[{SX}:{SX + 3}], 0 offen offset:64
    buffer_load_dwordx4 v[{XA + 8}:{XA + 11}], v1, s[{SX}:{SX + 3}], 0 offen offset:128
    buffer_load_dwordx2 v[{XA + 12}:{XA + 13}], v22, s[{SX}:{SX + 3}], 0 offen offset:192
    s_barrier
    """)
    srd(SWS, 18, 19, WS_BYTES)
    srd(SOUT, 14, 15, 896)
    nlater = 0
    if qa and qwarm:
        a(f"""
        s_add_u32 s52, s{SQP}, {W_QA}
        s_mov_b64 exec, 0xf
        buffer_load_dwordx4 v[176:179], v{VOG}, s[{SWS}:{SWS + 3}], s52 offen
        s_mov_b64 exec, -1
        """)
        nlater += 1
    if warm == 2:
        a(f"buffer_store_dwordx4 v[{VZ}:{VZ + 3}], v{VOP}, s[{SWS}:{SWS + 3}], s{SOSP} offen")
        nlater += 1
    if pretouch:
        a(f"""
        s_add_u32 s52, s8, s68
        s_addc_u32 s53, s9, 0
        s_lshl_b32 s54, s{SH}, 9
        s_lshl_b32 s55, s{SRB}, 5
        s_add_u32 s54, s54, s55
        s_mul_i32 s54, s54, 896
        s_add_u32 s54, s12, s54
        s_addc_u32 s55, s13, 0
        s_cmp_eq_u32 s{SW}, 1
        s_cselect_b32 s{SV}, s52, s14
        s_cselect_b32 s{SV + 1}, s53, s15
        s_cmp_eq_u32 s{SW}, 2
        s_cselect_b32 s{SV}, s54, s{SV}
        s_cselect_b32 s{SV + 1}, s55, s{SV + 1}
        s_and_b32 s{SV + 1}, s{SV + 1}, 0xffff
        s_mov_b32 s{SV + 2}, 4
        s_mov_b32 s{SV + 3}, 0x20000
        s_mov_b64 exec, 1
        buffer_load_dword v176, v{VZ}, s[{SV}:{SV + 3}], 0 offen nt
        s_mov_b64 exec, -1
        """)
        nlater += 1
    a(f"""
    s_mov_b32 s{MODD}, 0xffff0000
    s_mov_b32 s{MODD + 1}, 0xffff0000
    s_mov_b32 s{MHI}, 0
    s_mov_b32 s{MHI + 1}, -1
    s_mov_b32 s{MAA}, 0xaaaaaaaa
    s_mov_b32 s{MAA + 1}, 0xaaaaaaaa
    v_and_b32 v1, 3, v0
    v_lshlrev_b32 v1, 2, v1
    v_add_u32 v{VPRA}, {F_PROG}, v1
    v_add_u32 v{VFQA}, {F_Q}, v1
    v_add_u32 v{VFSA}, {F_M}, v1
    """)
    VWA, VWA2 = 24, 25
    a(f"""
    v_lshrrev_b32 v1, 2, v{VN}
    v_and_b32 v27, 3, v{VN}
    v_lshl_add_u32 v22, v{VG}, 3, v1
    v_lshlrev_b32 v22, 7, v22
    v_lshl_add_u32 v22, v27, 3, v22
    v_lshrrev_b32 v23, 1, v1
    v_and_b32 v26, 1, v{VG}
    v_lshl_add_u32 v26, v26, 1, v23
    v_xor_b32 v26, s{SW}, v26
    v_lshl_add_u32 v22, v26, 5, v22
    v_add_u32 v{VWA}, {L_WQ}, v22
    v_lshl_add_u32 v22, v{VG}, 2, v1
    v_lshlrev_b32 v22, 7, v22
    v_lshl_add_u32 v22, v27, 3, v22
    v_lshrrev_b32 v26, 1, v{VG}
    v_lshl_add_u32 v26, v26, 1, v23
    v_xor_b32 v26, s{SW}, v26
    v_lshl_add_u32 v22, v26, 5, v22
    v_add_u32 v{VWA2}, {L_WQ + 96 * 128}, v22
    s_lshl_b32 s52, s{SH}, 13
    s_lshl_b32 s53, s{SW}, 9
    s_add_u32 s52, s52, s53
    s_add_u32 s68, s52, {W_QA if qa else W_QB}
    s_add_u32 s69, s68, 4096
    v_lshrrev_b32 v1, 5, v0
    v_and_b32 v22, 31, v0
    v_lshlrev_b32 v22, 4, v22
    v_lshl_add_u32 v186, v1, 11, v22
    v_and_b32 v22, 3, v0
    v_lshrrev_b32 v187, v22, s{SXCC}
    v_and_b32 v187, 1, v187
    v_lshlrev_b32 v187, 8, v187
    s_mov_b32 s24, 0x05030201
    s_mov_b32 s25, 0x06050302
    s_mov_b32 s26, 0x07060503
    s_mov_b32 s27, 0xfffffe00
    s_lshl_b32 s52, s{SH}, 17
    s_lshl_b32 s53, s{SRB}, 14
    s_add_u32 s52, s52, s53
    s_lshl_b32 s53, s{SW}, 12
    s_add_u32 s52, s52, s53
    s_add_u32 s{SOG}, s52, {W_OS}
    """)
    lds_wait(VPRA, 1, "v_cmp_le_u32 vcc, 4, v1", "wq")
    stamp('e')
    WB = 28
    for t in range(3):
        for u in range(2):
            r = WB + 4 * t + 2 * u
            a(f"ds_read_b64_tr_b16 v[{r}:{r + 1}], v{VWA} offset:{t * 4096 + u * 512}")
    a(f"ds_read_b64_tr_b16 v[{WB + 12}:{WB + 13}], v{VWA2}")
    QC, QC2 = 44, 48
    a(f"s_waitcnt vmcnt({nlater}) lgkmcnt(0)")
    a(f"v_mfma_f32_16x16x16_bf16 v[{QC2}:{QC2 + 3}], v[{XA + 12}:{XA + 13}], v[{WB + 12}:{WB + 13}], 0")
    for t in range(3):
        cin = "0" if t == 0 else f"v[{QC}:{QC + 3}]"
        a(f"v_mfma_f32_16x16x32_bf16 v[{QC}:{QC + 3}], v[{XA + 4 * t}:{XA + 4 * t + 3}], v[{WB + 4 * t}:{WB + 4 * t + 3}], {cin}")
    a(f"""
    s_add_u32 s{STAG}, s{STAG}, {TAG_INC:#x}
    s_or_b32 s{STAG}, s{STAG}, 1
    s_add_u32 s52, s{SQP}, {W_QA}
    s_add_u32 s53, s{SQP}, {W_QB}
    s_nop 4
    v_add_f32 v56, v{QC}, v{QC2}
    v_add_u32 v56, 0x100, v56
    v_and_or_b32 v56, v56, s27, v187
    v_mov_b32 v51, s{STAG}
    s_nop 0
    v_mov_b32_dpp v52, v56 quad_perm:[0,0,0,0] {DPPM}
    v_mov_b32_dpp v53, v56 quad_perm:[1,1,1,1] {DPPM}
    v_mov_b32_dpp v54, v56 quad_perm:[2,2,2,2] {DPPM}
    v_mov_b32_dpp v55, v56 quad_perm:[3,3,3,3] {DPPM}
    v_perm_b32 v48, v53, v52, s24
    v_perm_b32 v49, v54, v53, s25
    v_perm_b32 v50, v55, v54, s26
    s_mov_b64 exec, 0x1111
    """)
    if qa:
        a(f"buffer_store_dwordx4 v[48:51], v{VQPO}, s[{SWS}:{SWS + 3}], s52 offen")
    a(f"""
    buffer_store_dwordx4 v[48:51], v{VQPO}, s[{SWS}:{SWS + 3}], s53 offen sc1
    s_mov_b64 exec, -1
    """)
    if qack or not qa:
        a("s_waitcnt vmcnt(0)")
    if qprog:
        lds_wait(VPRA, 1, f"v_cmp_le_u32 vcc, {qprog}, v1", "qp")
    stamp('e')
    QG = 52
    VQA, VKA, VVA = 26, 28, 36
    VPW, VMW, VMR, VPA = 32, 33, 35, 27
    VQ, VKB, VC = 72, 104, 168
    VVB = 192
    VP, VONE, VO, VLA, VOUT = 52, 40, 144, 160, 124
    SBG, STHR = 73, 72
    M2 = 30
    def late_warm():
        pol = ["", " sc1", " nt", " sc1 nt"][wpol]
        a(f"""
        s_lshl_b32 s52, s{SCB}, 10
        s_add_u32 s52, s52, s{SOG}
        buffer_load_dwordx4 v[176:179], v{VOG}, s[{SWS}:{SWS + 3}], s52 offen{pol}
        """)
    def addr_setup():
        a(f"""
        v_and_b32 v1, 1, v{VN}
        v_lshlrev_b32 v22, 9, v1
        v_lshl_add_u32 v22, v{VG}, 4, v22
        v_add_u32 v{VQA}, {L_Q}, v22
        v_lshlrev_b32 v22, 8, v1
        v_lshl_add_u32 v22, v{VG}, 4, v22
        v_add_u32 v{VPA}, {L_P}, v22
        v_xor_b32 v1, v{VG}, v{VN}
        v_lshlrev_b32 v1, 4, v1
        v_lshl_add_u32 v1, v{VN}, 9, v1
        s_lshl_b32 s52, s{SW}, 14
        v_add_u32 v{VKA}, s52, v1
        """)
        for t in range(1, 4):
            a(f"v_xor_b32 v{VKA + t}, {t << 6}, v{VKA}")
        a(f"""
        v_lshrrev_b32 v1, 2, v{VN}
        v_and_b32 v22, 3, v{VN}
        v_lshl_add_u32 v23, v{VG}, 3, v1
        v_lshlrev_b32 v23, 9, v23
        v_lshl_add_u32 v23, v22, 3, v23
        v_and_b32 v22, 1, v{VG}
        v_lshl_add_u32 v1, v22, 2, v1
        s_lshl_b32 s52, s{SW}, 2
        v_xor_b32 v1, s52, v1
        v_lshl_add_u32 v23, v1, 5, v23
        v_add_u32 v{VVA}, {L_V}, v23
        """)
        for b in range(1, 4):
            a(f"v_xor_b32 v{VVA + b}, {b << 5}, v{VVA}")
        a(f"""
        v_lshrrev_b32 v1, 5, v0
        v_and_b32 v22, 31, v0
        v_lshlrev_b32 v23, 8, v1
        v_lshl_add_u32 v23, v22, 1, v23
        s_lshl_b32 s52, s{SW}, 6
        s_add_u32 s52, s52, {L_P}
        v_add_u32 v{VPW}, s52, v23
        s_lshl_b32 s52, s{SW}, 2
        s_add_u32 s52, s52, {L_MX}
        v_lshl_add_u32 v{VMW}, v1, 4, s52
        v_mov_b32 v{VMR}, {L_MX}
        s_lshl_b32 s52, s{SW}, 11
        s_add_u32 s52, s52, {L_WO}
        v_lshl_add_u32 v34, v0, 2, s52
        s_mov_b32 s{M2}, 0xcccccccc
        s_mov_b32 s{M2 + 1}, 0xcccccccc
        """)
        for r in range(4):
            a(f"v_mov_b32 v{VONE + r}, 0x3f803f80")
    def task(kk):
        if kk == 0:
            for blk in range(2):
                for t in range(8):
                    r = VKB + blk * 32 + 4 * t
                    a(f"ds_read_b128 v[{r}:{r + 3}], v{VKA + (t & 3)} offset:{blk * 8192 + (t >> 2) * 256}")
                if blk == 0:
                    a("s_waitcnt lgkmcnt(4)")
        else:
            j = kk - 1
            for b in range(4):
                for u in range(2):
                    r = VVB + 16 * j + 4 * b + 2 * u
                    a(f"ds_read_b64_tr_b16 v[{r}:{r + 1}], v{VVA + b} offset:{j * 16384 + u * 2048}")
        a(f"s_mov_b32 s{SBG}, {kk + 1}")
        a(f"s_mov_b32 s{STHR}, {24 + 4 * kk}")
    def bg(loop):
        lb = a.label("bg")
        a(f"""
        {lb}:
        s_cmp_ge_u32 s{SBG}, 5
        s_cbranch_scc1 {lb}_x
        ds_read_b32 v1, v{VPRA}
        s_waitcnt lgkmcnt(0)
        v_cmp_le_u32 vcc, s{STHR}, v1
        s_cmp_eq_u64 vcc, -1
        s_cbranch_scc0 {lb}_x
        """)
        for kk in range(5):
            if kk < 4:
                a(f"s_cmp_lg_u32 s{SBG}, {kk}\ns_cbranch_scc1 {lb}_t{kk}")
            task(kk)
            a(f"s_branch {lb if loop else lb + '_x'}")
            if kk < 4:
                a(f"{lb}_t{kk}:")
        a(f"{lb}_x:")
    def ensure(kk, slp=None):
        lb = a.label("ens")
        a(f"s_cmp_gt_u32 s{SBG}, {kk}\ns_cbranch_scc1 {lb}")
        lds_wait(VPRA, 1, f"v_cmp_le_u32 vcc, s{STHR}, v1", "e", slp=slp)
        task(kk)
        a(f"{lb}:")

    a(f"""
    s_mov_b32 s{SSPIN}, {SPIN}
    s_mov_b32 s24, 0
    s_mov_b32 s{SBG}, 0
    s_lshl_b32 s{STHR}, s{SW}, 2
    s_add_u32 s{STHR}, s{STHR}, 8
    """)
    def qloads():
        for qi, sr_ in enumerate((68, 69)):
            a(f"buffer_load_dwordx4 v[{QG + 4 * qi}:{QG + 4 * qi + 3}], v186, s[{SWS}:{SWS + 3}], s{sr_} offen sc1")
    qloads()
    addr_setup()
    a("s_branch L_pollq_issued")
    a("L_pollq:")
    qloads()
    a("L_pollq_issued:")
    if bgon:
        bg(True)
    a(f"""
    s_sub_u32 s{SSPIN}, s{SSPIN}, 1
    s_cbranch_scc1 L_pollq_done
    s_waitcnt vmcnt(0)
    v_cmp_eq_u32 s[54:55], s{STAG}, v{QG + 3}
    v_cmp_eq_u32 vcc, s{STAG}, v{QG + 7}
    s_and_b64 s[54:55], s[54:55], vcc
    """)
    a("s_cmp_eq_u64 s[54:55], -1")
    if qa:
        a(f"""
        s_cbranch_scc1 L_pollq_done
        s_add_u32 s24, s24, 1
        s_cmp_lg_u32 s24, {NA}
        s_cbranch_scc1 L_pollq
        s_add_u32 s68, s68, {W_QB - W_QA}
        s_add_u32 s69, s69, {W_QB - W_QA}
        s_branch L_pollq
        """)
    else:
        a("s_cbranch_scc0 L_pollq")
    a(f"""
    L_pollq_done:
    s_waitcnt vmcnt(0)
    """)
    if cnt:
        a(f"s_mov_b32 s36, s{SSPIN}")
    a(f"""
    s_mov_b32 s52, 0x0504030c
    s_mov_b32 s53, 0x0403020c
    v_lshlrev_b32 v60, 8, v{QG}
    v_perm_b32 v61, v{QG + 1}, v{QG}, s52
    v_perm_b32 v62, v{QG + 2}, v{QG + 1}, s53
    v_and_b32 v63, 0xffffff00, v{QG + 2}
    v_lshlrev_b32 v64, 8, v{QG + 4}
    v_perm_b32 v65, v{QG + 5}, v{QG + 4}, s52
    v_perm_b32 v66, v{QG + 6}, v{QG + 5}, s53
    v_and_b32 v67, 0xffffff00, v{QG + 6}
    v_add_f32 v60, v60, v64
    v_add_f32 v61, v61, v65
    v_add_f32 v62, v62, v66
    v_add_f32 v63, v63, v67
    v_lshrrev_b32 v1, 5, v0
    v_and_b32 v22, 31, v0
    v_permlane32_swap_b32 v60, v61
    v_permlane32_swap_b32 v62, v63
    v_lshlrev_b32 v22, 3, v22
    v_add_f32 v60, v60, v61
    v_add_f32 v62, v62, v63
    v_lshl_add_u32 v22, v1, 1, v22
    s_lshl_b32 s55, s{SW}, 8
    s_add_u32 s55, s55, {L_Q}
    v_cvt_pk_bf16_f32 v60, v60, v62
    v_add_u32 v22, s55, v22
    s_lshl_b32 s55, s{SW}, 2
    s_add_u32 s55, s55, {F_Q}
    v_mov_b32 v1, s55
    v_mov_b32 v23, 1
    ds_write_b16 v22, v60
    ds_write_b16_d16_hi v22, v60 offset:4
    s_mov_b64 exec, 1
    ds_write_b32 v1, v23
    s_mov_b64 exec, -1
    s_and_b32 s52, s{SXCC}, 1
    s_lshr_b32 s53, s{SXCC}, 1
    s_and_b32 s53, s53, 1
    s_lshl_b32 s53, s53, 24
    s_or_b32 s52, s52, s53
    s_lshr_b32 s53, s{SXCC}, 2
    s_and_b32 s53, s53, 1
    s_lshl_b32 s53, s53, 16
    s_lshr_b32 s54, s{SXCC}, 3
    s_and_b32 s54, s54, 1
    s_lshl_b32 s54, s54, 8
    v_xor_b32 v60, s52, v{QG}
    v_xor_b32 v61, s52, v{QG + 4}
    v_xor_b32 v62, s53, v{QG + 1}
    v_xor_b32 v63, s53, v{QG + 5}
    v_xor_b32 v64, s54, v{QG + 2}
    v_xor_b32 v65, s54, v{QG + 6}
    v_or_b32 v60, v60, v61
    v_or_b32 v62, v62, v63
    v_or_b32 v64, v64, v65
    v_and_b32 v60, 0x01000001, v60
    v_and_b32 v62, 0x00010000, v62
    v_and_b32 v64, 0x00000100, v64
    v_or3_b32 v60, v60, v62, v64
    v_cmp_eq_u32 vcc, 0, v60
    v_add_u32 v1, {F_L - F_Q}, v1
    s_cmp_eq_u64 vcc, -1
    s_cselect_b32 s54, 3, 1
    v_mov_b32 v23, s54
    s_mov_b64 exec, 1
    ds_write_b32 v1, v23
    s_mov_b64 exec, -1
    """)
    if warm == 1:
        for kk in range(4):
            a(f"buffer_load_dwordx4 v[{QG + 4 * kk}:{QG + 4 * kk + 3}], v{VOG}, s[{SWS}:{SWS + 3}], s{SOG} offen offset:{kk * 1024} sc1")
    a(f"""
    L_fqw:
    ds_read_b32 v22, v{VFQA}
    s_waitcnt lgkmcnt(0)
    v_cmp_ne_u32 vcc, 0, v22
    s_cmp_eq_u64 vcc, -1
    s_cbranch_scc1 L_fqw_ok
    """)
    if bgon:
        bg(False)
    a(f"""
    s_branch L_fqw
    L_fqw_ok:
    """)
    for t in range(8):
        a(f"ds_read_b128 v[{VQ + 4 * t}:{VQ + 4 * t + 3}], v{VQA} offset:{t * 64}")
    stamp('e')
    if warm == 3 and wpos == 3:
        late_warm()
    ensure(0)
    a("s_waitcnt lgkmcnt(0)")
    for t in range(8):
        for blk in range(2):
            c = VC + 4 * blk
            r = VKB + blk * 32 + 4 * t
            cin = "0" if t == 0 else f"v[{c}:{c + 3}]"
            a(f"v_mfma_f32_16x16x32_bf16 v[{c}:{c + 3}], v[{VQ + 4 * t}:{VQ + 4 * t + 3}], v[{r}:{r + 3}], {cin}")
    C = 1.4426950408889634 / 16.0
    a(f"""
    s_mov_b32 s52, {f2u(C):#x}
    s_mov_b32 s54, 1
    s_mov_b32 s55, 1
    s_lshl_b32 s53, s{SW}, 2
    s_add_u32 s53, s53, {F_M}
    v_mov_b32 v1, s53
    v_mov_b32 v72, 1
    s_nop 0
    v_cndmask_b32 v22, v{VC}, v{VC + 1}, s[{MHI}:{MHI + 1}]
    v_cndmask_b32 v23, v{VC + 4}, v{VC + 5}, s[{MHI}:{MHI + 1}]
    v_cndmask_b32 v22, v22, v23, s[{MODD}:{MODD + 1}]
    s_nop 1
    v_max_f32_dpp v23, v22, v22 quad_perm:[1,0,3,2] {DPPM}
    s_nop 1
    v_max_f32_dpp v23, v23, v23 quad_perm:[2,3,0,1] {DPPM}
    s_nop 1
    v_max_f32_dpp v23, v23, v23 row_half_mirror {DPPM}
    s_nop 1
    v_max_f32_dpp v23, v23, v23 row_mirror {DPPM}
    v_mov_b32 v73, v23
    s_nop 1
    v_permlane16_swap_b32 v23, v73
    s_nop 0
    v_max_f32 v23, v23, v73
    s_mov_b64 exec, s[54:55]
    ds_write_b32 v{VMW}, v23
    s_mov_b64 exec, 1
    ds_write_b32 v1, v72
    s_mov_b64 exec, -1
    """)
    stamp('e')
    a(f"""
    L_mw:
    ds_read_b32 v73, v{VFSA}
    ds_read_b128 v[76:79], v{VMR}
    ds_read_b128 v[80:83], v{VMR} offset:16
    s_waitcnt lgkmcnt(0)
    v_cmp_ne_u32 vcc, 0, v73
    s_cmp_eq_u64 vcc, -1
    s_cbranch_scc0 L_mw
    v_max3_f32 v76, v76, v77, v78
    v_max3_f32 v80, v80, v81, v82
    v_max_f32 v76, v76, v79
    v_max_f32 v80, v80, v83
    v_mul_f32 v76, s52, v76
    v_mul_f32 v80, s52, v80
    v_cndmask_b32 v77, v76, v80, s[{MHI}:{MHI + 1}]
    v_fma_f32 v22, v22, s52, -v77
    v_exp_f32 v22, v22
    v_add_u32 v1, 16, v1
    v_cndmask_b32 v{VOUT + 2}, v76, v80, s[{M2}:{M2 + 1}]
    v_cvt_pk_bf16_f32 v22, v22, v22
    ds_write_b16 v{VPW}, v22
    s_mov_b64 exec, 1
    ds_write_b32 v1, v72
    s_mov_b64 exec, -1
    v_mov_b32 v{VOUT + 3}, s{STAG}
    """)
    stamp('e')
    a(f"""
    L_pw:
    ds_read_b32 v73, v{VFSA} offset:16
    """)
    for j in range(4):
        a(f"ds_read_b128 v[{VP + 4 * j}:{VP + 4 * j + 3}], v{VPA} offset:{j * 64}")
    a(f"""
    s_waitcnt lgkmcnt(0)
    v_cmp_ne_u32 vcc, 0, v73
    s_cmp_eq_u64 vcc, -1
    s_cbranch_scc0 L_pw
    """)
    stamp()
    lds_wait(VFQA, 1, "v_cmp_ne_u32 vcc, 0, v1", "loc", slp=0, off=F_L - F_Q)
    a(f"""
    v_cmp_eq_u32 vcc, 3, v1
    s_cmp_eq_u64 vcc, -1
    s_cselect_b32 s{SLOC}, 1, 0
    """)
    if force_remote:
        a(f"s_mov_b32 s{SLOC}, 0")
    if warm == 3 and wpos == 6:
        late_warm()
    for j in range(4):
        if j == 3 and specv:
            lb = a.label("v3")
            a(f"""
            s_cmp_gt_u32 s{SBG}, 4
            s_cbranch_scc1 {lb}_ok
            {lb}:
            ds_read_b32 v1, v{VPRA}
            """)
            for b in range(4):
                for u in range(2):
                    r = VVB + 48 + 4 * b + 2 * u
                    a(f"ds_read_b64_tr_b16 v[{r}:{r + 1}], v{VVA + b} offset:{3 * 16384 + u * 2048}")
            a(f"""
            s_waitcnt lgkmcnt(0)
            v_cmp_le_u32 vcc, 36, v1
            s_cmp_eq_u64 vcc, -1
            s_cbranch_scc0 {lb}
            {lb}_ok:
            """)
        else:
            ensure(j + 1, slp=(0 if j == 3 else None))
        a("s_waitcnt lgkmcnt(0)")
        if j == 3:
            stamp('t')
        cin = "0" if j == 0 else f"v[{VLA}:{VLA + 3}]"
        a(f"v_mfma_f32_16x16x32_bf16 v[{VLA}:{VLA + 3}], v[{VP + 4 * j}:{VP + 4 * j + 3}], v[{VONE}:{VONE + 3}], {cin}")
        for b in range(4):
            c = VO + 4 * b
            r = VVB + 16 * j + 4 * b
            cin = "0" if j == 0 else f"v[{c}:{c + 3}]"
            a(f"v_mfma_f32_16x16x32_bf16 v[{c}:{c + 3}], v[{VP + 4 * j}:{VP + 4 * j + 3}], v[{r}:{r + 3}], {cin}")
    a(f"""
    s_nop 3
    v_cndmask_b32 v1, v{VLA}, v{VLA + 1}, s[{M2}:{M2 + 1}]
    v_cndmask_b32 v{VOUT + 2}, v{VOUT + 2}, v1, s[{MAA}:{MAA + 1}]
    """)
    for hd in range(2):
        a(f"v_cndmask_b32 v{22 + hd}, v{VO + hd}, v{VO + 4 + hd}, s[{MODD}:{MODD + 1}]")
    for hd in range(2):
        a(f"v_cndmask_b32 v{72 + hd}, v{VO + 8 + hd}, v{VO + 12 + hd}, s[{MODD}:{MODD + 1}]")
    for hd in range(2):
        a(f"v_cndmask_b32 v{VOUT + hd}, v{22 + hd}, v{72 + hd}, s[{MHI}:{MHI + 1}]")
    a(f"""
    s_cmp_eq_u32 s{SLOC}, 0
    s_cbranch_scc1 L_pub_remote
    buffer_store_dwordx4 v[{VOUT}:{VOUT + 3}], v{VOP}, s[{SWS}:{SWS + 3}], s{SOSP} offen
    s_branch L_pub_done
    L_pub_remote:
    buffer_store_dwordx4 v[{VOUT}:{VOUT + 3}], v{VOP}, s[{SWS}:{SWS + 3}], s{SOSP} offen sc1
    L_pub_done:
    """)
    stamp()
    VW = 72
    VRW, VRF, VFSP = 104, 105, 106
    a(f"""
    s_mov_b32 s54, 0x05040100
    s_mov_b32 s55, 0x07060302
    s_lshl_b32 s52, s{SW}, 9
    s_add_u32 s52, s52, {L_RED}
    v_lshl_add_u32 v{VRW}, v0, 3, s52
    v_and_b32 v1, 3, v0
    v_max_u32 v1, 1, v1
    v_lshlrev_b32 v1, 2, v1
    v_add_u32 v{VRF}, {F_R}, v1
    v_lshrrev_b32 v1, 3, v0
    v_lshlrev_b32 v1, 13, v1
    v_and_b32 v22, 7, v0
    v_lshl_add_u32 v{VFSP}, v22, 4, v1
    s_lshl_b32 s52, s{SCB}, 16
    s_lshl_b32 s53, s{SH}, 3
    s_add_u32 s53, s53, s{SRB}
    s_lshl_b32 s53, s53, 7
    s_add_u32 s52, s52, s53
    s_add_u32 s24, s52, {W_FS}
    s_cmp_eq_u32 s{SCB}, 3
    s_cselect_b32 s27, 0, -1
    s_mov_b32 s26, -1
    s_lshl_b32 s52, s{SH}, 3
    s_lshl_b64 s[28:29], 0xff, s52
    s_cmp_eq_u32 s{SLOC}, 0
    s_cselect_b64 s[28:29], 0, s[28:29]
    s_and_b64 s[28:29], s[28:29], s[26:27]
    v_mov_b32 v161, s{STAG}
    v_mov_b32 v163, s{STAG}
    s_lshl_b32 s52, s{SW}, 2
    s_add_u32 s52, s52, {F_R}
    v_mov_b32 v107, s52
    v_mov_b32 v108, 1
    """)
    G = 128
    MX, O0, O1, LA, T = 144, 145, 146, 147, 148
    E = 152
    def wo_prep():
        lds_wait(VPRA, 1, "v_cmp_le_u32 vcc, 40, v1", "wo", slp=0)
        for hd in range(2):
            for jj in range(4):
                r = VW + 8 * hd + 2 * jj
                a(f"ds_read2st64_b32 v[{r}:{r + 1}], v34 offset0:{hd * 32 + 2 * jj} offset1:{hd * 32 + 2 * jj + 1}")
        a("s_waitcnt lgkmcnt(0)")
        for hd in range(2):
            for i in range(4):
                lo, hi = VW + 8 * hd + 2 * i, VW + 8 * hd + 2 * i + 1
                a(f"v_perm_b32 v{88 + 8 * hd + 2 * i}, v{hi}, v{lo}, s54")
                a(f"v_perm_b32 v{89 + 8 * hd + 2 * i}, v{hi}, v{lo}, s55")
    def gloads():
        for kk in range(4):
            a(f"buffer_load_dwordx4 v[{G + 4 * kk}:{G + 4 * kk + 3}], v{VOG}, s[{SWS}:{SWS + 3}], s{SOG} offen offset:{kk * 1024} sc1")
    if wofirst:
        wo_prep()
    if ack1:
        a("s_waitcnt vmcnt(0)")
    else:
        a(f"s_cmp_lg_u32 s{SLOC}, 0\ns_cbranch_scc1 L_noack1\ns_waitcnt vmcnt(0)\nL_noack1:")
    a(f"s_mov_b32 s{SSPIN}, {SPIN}")
    if not wofirst:
        gloads()
        wo_prep()
        a("s_branch L_poll1_issued")
    a("L_poll1:")
    gloads()
    a("L_poll1_issued:")
    a(f"""
    s_sub_u32 s{SSPIN}, s{SSPIN}, 1
    s_cselect_b32 s25, 1, 0
    s_waitcnt vmcnt(0)
    v_max3_f32 v{MX}, v{G + 2}, v{G + 6}, v{G + 10}
    v_max_f32 v{MX}, v{MX}, v{G + 14}
    v_cmp_eq_u32 s[52:53], s{STAG}, v{G + 3}
    v_cmp_eq_u32 vcc, s{STAG}, v{G + 7}
    v_max_f32_dpp v{MX}, v{MX}, v{MX} row_ror:8 {DPPM}
    s_and_b64 s[52:53], s[52:53], vcc
    v_mov_b32 v{T}, v{MX}
    v_cmp_eq_u32 vcc, s{STAG}, v{G + 11}
    s_and_b64 s[52:53], s[52:53], vcc
    v_permlane16_swap_b32 v{MX}, v{T}
    v_cmp_eq_u32 vcc, s{STAG}, v{G + 15}
    v_max_f32 v{MX}, v{MX}, v{T}
    s_and_b64 s[52:53], s[52:53], vcc
    v_mov_b32 v{T}, v{MX}
    s_cmp_eq_u64 s[52:53], -1
    s_cbranch_scc1 L_poll1_done
    s_cmp_eq_u32 s25, 0
    s_cbranch_scc1 L_poll1
    L_poll1_done:
    v_permlane32_swap_b32 v{MX}, v{T}
    s_nop 0
    """)
    if cnt:
        a(f"s_mov_b32 s37, s{SSPIN}")
    stamp()
    a(f"v_max_f32 v{MX}, v{MX}, v{T}")
    for kk in range(4):
        a(f"v_sub_f32 v{E + kk}, v{G + 4 * kk + 2}, v{MX}")
    for kk in range(4):
        a(f"v_exp_f32 v{E + kk}, v{E + kk}")
    a("s_nop 0")
    for kk in range(4):
        op = "v_mul_f32_dpp" if kk == 0 else "v_fmac_f32_dpp"
        a(f"{op} v{O0}, v{E + kk}, v{G + 4 * kk} quad_perm:[0,0,0,0] {DPPM}")
        a(f"{op} v{O1}, v{E + kk}, v{G + 4 * kk + 1} quad_perm:[2,2,2,2] {DPPM}")
        a(f"{op} v{LA}, v{E + kk}, v{G + 4 * kk + 2} quad_perm:[0,0,2,2] {DPPM}")
    a(f"""
    v_mov_b32 v{T}, v{LA}
    s_nop 0
    v_permlane32_swap_b32 v{O0}, v{O1}
    v_permlane32_swap_b32 v{LA}, v{T}
    v_add_f32 v{O0}, v{O0}, v{O1}
    v_add_f32 v{LA}, v{LA}, v{T}
    s_nop 1
    v_permlane16_swap_b32 v{O0}, v{LA}
    s_nop 0
    v_add_f32 v{O0}, v{O0}, v{LA}
    s_nop 1
    v_add_f32_dpp v{O0}, v{O0}, v{O0} row_ror:8 {DPPM}
    s_nop 1
    v_mov_b32_dpp v{T}, v{O0} quad_perm:[1,1,3,3] {DPPM}
    v_rcp_f32 v{LA}, v{O0}
    v_cvt_pk_bf16_f32 v{O1}, v{O0}, v{T}
    s_nop 0
    """)
    for i in range(4):
        a(f"v_readlane_b32 s{SP + i}, v{O1}, {2 * i}")
        a(f"v_readlane_b32 s{SP + 4 + i}, v{O1}, {32 + 2 * i}")
    a(f"v_readlane_b32 s52, v{LA}, 17")
    a(f"v_readlane_b32 s53, v{LA}, 19")
    for i in range(4):
        for hd in range(2):
            for hf in range(2):
                acc = 152 + 2 * hd + hf
                src2 = "0" if i == 0 else f"v{acc}"
                a(f"v_dot2_f32_bf16 v{acc}, s{SP + 4 * hd + i}, v{88 + 8 * hd + 2 * i + hf}, {src2}")
    stamp('t')
    a(f"""
    s_nop 0
    v_mul_f32 v156, s52, v152
    v_mul_f32 v157, s52, v153
    s_nop 0
    v_fmac_f32 v156, s53, v154
    v_fmac_f32 v157, s53, v155
    s_cmp_eq_u32 s{SW}, 0
    s_cbranch_scc1 L_red0
    ds_write_b64 v{VRW}, v[156:157]
    s_mov_b64 exec, 1
    ds_write_b32 v107, v108
    s_mov_b64 exec, -1
    s_cmp_ge_u32 s2, 28
    s_cbranch_scc1 L_fin
    s_branch L_final
    L_red0:
    v_lshlrev_b32 v1, 3, v0
    L_redw:
    ds_read_b32 v22, v{VRF}
    ds_read_b64 v[152:153], v1 offset:{L_RED + 512}
    ds_read_b64 v[154:155], v1 offset:{L_RED + 1024}
    ds_read_b64 v[158:159], v1 offset:{L_RED + 1536}
    s_waitcnt lgkmcnt(0)
    v_cmp_ne_u32 vcc, 0, v22
    s_cmp_eq_u64 vcc, -1
    s_cbranch_scc0 L_redw
    """)
    stamp('t')
    a(f"""
    v_add_f32 v156, v156, v152
    v_add_f32 v157, v157, v153
    v_add_f32 v154, v154, v158
    v_add_f32 v155, v155, v159
    v_add_f32 v160, v156, v154
    v_add_f32 v162, v157, v155
    """)
    if floc:
        a(f"""
        s_andn2_b64 exec, s[26:27], s[28:29]
        buffer_store_dwordx4 v[160:163], v{VFSP}, s[{SWS}:{SWS + 3}], s24 offen sc1
        s_mov_b64 exec, s[28:29]
        s_cbranch_execz L_noloc
        buffer_store_dwordx4 v[160:163], v{VFSP}, s[{SWS}:{SWS + 3}], s24 offen
        L_noloc:
        s_mov_b64 exec, -1
        """)
    else:
        a(f"""
        s_mov_b64 exec, s[26:27]
        buffer_store_dwordx4 v[160:163], v{VFSP}, s[{SWS}:{SWS + 3}], s24 offen sc1
        s_mov_b64 exec, -1
        """)
    stamp('t')
    a(f"""
    s_cmp_ge_u32 s2, 28
    s_cbranch_scc1 L_fin
    """)
    if fdelay:
        a(f"s_sleep {fdelay}")
    elif ack2:
        a("s_waitcnt vmcnt(0)")
    a(f"""
    L_final:
    s_lshl_b32 s52, s2, 13
    s_lshl_b32 s53, s{SW}, 11
    s_add_u32 s52, s52, s53
    s_add_u32 s52, s52, {W_FS}
    v_and_b32 v1, 7, v0
    v_lshlrev_b32 v1, 3, v1
    v_lshrrev_b32 v22, 5, v0
    v_lshl_add_u32 v23, v22, 2, v1
    s_lshl_b32 s53, s{SW}, 6
    s_add_u32 s53, s53, {L_RED + 4096}
    v_add_u32 v23, s53, v23
    v_add_u32 v107, {F_R2 - F_R}, v107
    v_add_u32 v{VRF}, {F_R2 - F_R}, v{VRF}
    s_mov_b32 s54, 0xff
    s_mov_b32 s55, 0xff
    s_mov_b32 s{SSPIN}, {SPIN}
    {"s_barrier" if ack2 else ""}
    L_poll2:
    buffer_load_dwordx4 v[128:131], v{VOG}, s[{SWS}:{SWS + 3}], s52 offen sc1
    buffer_load_dwordx4 v[132:135], v{VOG}, s[{SWS}:{SWS + 3}], s52 offen offset:1024 sc1
    s_sub_u32 s{SSPIN}, s{SSPIN}, 1
    s_cbranch_scc1 L_poll2_done
    s_waitcnt vmcnt(0)
    v_cmp_eq_u32 s[24:25], s{STAG}, v129
    v_cmp_eq_u32 vcc, s{STAG}, v131
    s_and_b64 s[24:25], s[24:25], vcc
    v_cmp_eq_u32 vcc, s{STAG}, v133
    s_and_b64 s[24:25], s[24:25], vcc
    v_cmp_eq_u32 vcc, s{STAG}, v135
    s_and_b64 s[24:25], s[24:25], vcc
    s_cmp_eq_u64 s[24:25], -1
    s_cbranch_scc1 L_poll2_done
    {f"s_sleep {psleep}" if psleep else ""}
    s_branch L_poll2
    L_poll2_done:
    s_waitcnt vmcnt(0)
    """)
    stamp()
    a(f"""
    v_add_f32 v140, v128, v132
    v_add_f32 v141, v130, v134
    s_nop 1
    v_permlane32_swap_b32 v140, v141
    s_nop 0
    v_add_f32 v140, v140, v141
    s_nop 0
    v_mov_b32 v141, v140
    s_nop 1
    v_permlane16_swap_b32 v140, v141
    s_nop 0
    v_add_f32 v140, v140, v141
    s_nop 1
    v_add_f32_dpp v140, v140, v140 row_ror:8 {DPPM}
    s_mov_b64 exec, s[54:55]
    ds_write_b32 v23, v140
    s_cmp_eq_u32 s{SW}, 0
    s_cbranch_scc1 L_fin0
    s_mov_b64 exec, 1
    ds_write_b32 v107, v108
    s_branch L_fin
    L_fin0:
    s_mov_b64 exec, -1
    s_lshl_b32 s52, s2, 5
    v_lshlrev_b32 v22, 2, v0
    L_finw:
    ds_read_b32 v23, v{VRF}
    ds_read_b64 v[140:141], v1 offset:{L_RED + 4096}
    ds_read_b64 v[142:143], v1 offset:{L_RED + 4096 + 64}
    ds_read_b64 v[144:145], v1 offset:{L_RED + 4096 + 128}
    ds_read_b64 v[146:147], v1 offset:{L_RED + 4096 + 192}
    s_waitcnt lgkmcnt(0)
    v_cmp_ne_u32 vcc, 0, v23
    s_cmp_eq_u64 vcc, -1
    s_cbranch_scc0 L_finw
    """)
    stamp('t')
    a(f"""
    v_add_f32 v140, v140, v142
    v_add_f32 v141, v141, v143
    v_add_f32 v144, v144, v146
    v_add_f32 v145, v145, v147
    v_add_f32 v140, v140, v144
    v_add_f32 v141, v141, v145
    v_cvt_pk_bf16_f32 v140, v140, v141
    s_mov_b64 exec, 0xff
    buffer_store_dword v140, v22, s[{SOUT}:{SOUT + 3}], s52 offen
    s_cmp_lg_u32 s2, 0
    s_cbranch_scc1 L_fin
    s_mov_b64 exec, 1
    v_mov_b32 v2, 0
    v_mov_b32 v3, s{STAG}
    buffer_store_dword v3, v2, s[{SWS}:{SWS + 3}], 0 offen sc1
    L_fin:
    s_mov_b64 exec, -1
    """)
    stamp()
    if cnt and stamps:
        a(f"""
        s_waitcnt lgkmcnt(0)
        s_sub_u32 s52, {SPIN}, s36
        s_add_u32 s{STS + 8}, s{STS}, s52
        s_mov_b32 s{STS + 9}, s{STS + 1}
        s_sub_u32 s52, {SPIN}, s37
        s_add_u32 s{STS + 10}, s{STS}, s52
        s_mov_b32 s{STS + 11}, s{STS + 1}
        """)
    flush_stamps(200, 0, 11, 0)
    a("s_endpgm")

    nst[0] = 1
    SJ, SOF = 66, 67
    VK0, VK1, VV0, VV1, VWQ, VWO, VPA, VPV, VFQ = 4, 5, 6, 7, 8, 9, 10, 11, 12
    a(f"""
    L_loader:
    s_setprio {lprio}
    s_sub_u32 s{SJ}, s{SW}, 4
    v_lshrrev_b32 v1, 3, v0
    v_lshlrev_b32 v2, 13, v1
    v_and_b32 v3, 7, v0
    v_lshrrev_b32 v13, 4, v0
    v_and_b32 v13, 1, v13
    v_lshlrev_b32 v13, 1, v13
    v_xor_b32 v3, v3, v13
    s_and_b32 s52, s{SJ}, 1
    s_lshl_b32 s52, s52, 2
    v_xor_b32 v3, s52, v3
    v_lshl_add_u32 v{VWQ}, v3, 4, v2
    s_lshr_b32 s53, s{SS}, 3
    s_mul_i32 s53, s53, {112 * 8192}
    s_lshl_b32 s54, s{SH}, 10
    s_add_u32 s53, s53, s54
    s_and_b32 s54, s{SS}, 7
    s_lshl_b32 s54, s54, 7
    s_add_u32 s53, s53, s54
    s_lshl_b32 s54, s{SJ}, 16
    s_add_u32 s{SOF}, s53, s54
    s_lshl_b32 s56, s{SJ}, 10
    s_add_u32 s57, s56, {L_WQ}
    s_mov_b32 m0, s57
    v_lshrrev_b32 v1, 5, v0
    v_and_b32 v2, 31, v0
    v_xor_b32 v3, v2, v1
    s_lshl_b32 s52, s{SJ}, 1
    v_xor_b32 v3, s52, v3
    v_lshlrev_b32 v3, 4, v3
    v_lshl_add_u32 v{VK0}, v1, 9, v3
    v_xor_b32 v{VK1}, 128, v{VK0}
    s_waitcnt lgkmcnt(0)
    """)
    srd(SWQ, 10, 11, 3670016)
    n = [0]
    written = [0]
    NTOT = 40
    def depth():
        return D if n[0] < 20 + D else D2
    def prog(cnt):
        a(f"""
        v_mov_b32 v{VPV}, {cnt}
        s_mov_b64 exec, 1
        ds_write_b32 v{VPA}, v{VPV}
        s_mov_b64 exec, -1
        """)
        written[0] = cnt
    landed = [0]
    def lwarm_setup():
        srd(SWS, 18, 19, WS_BYTES)
        a(f"""
        s_lshl_b32 s52, s{SH}, 17
        s_lshl_b32 s53, s{SRB}, 14
        s_add_u32 s52, s52, s53
        s_lshl_b32 s53, s{SJ}, 12
        s_add_u32 s52, s52, s53
        s_lshl_b32 s53, s{SCB}, 10
        s_add_u32 s52, s52, s53
        s_add_u32 s72, s52, {W_OS}
        v_lshlrev_b32 v13, 4, v0
        s_lshl_b32 s53, s2, 13
        s_lshl_b32 s54, s{SH}, 10
        s_add_u32 s53, s53, s54
        s_add_u32 s73, s53, {W_FS}
        s_cmp_lt_u32 s2, 28
        s_cselect_b32 s73, s73, {OOB:#x}
        s_cmp_eq_u32 s{SJ}, 0
        s_cselect_b32 s73, s73, {OOB:#x}
        """)
    def lwarm():
        a(f"buffer_load_dwordx4 v[16:19], v13, s[{SWS}:{SWS + 3}], s72 offen")
        if floc:
            a(f"buffer_load_dwordx4 v[24:27], v13, s[{SWS}:{SWS + 3}], s73 offen")
    def throttle(d):
        if n[0] - landed[0] >= d:
            a(f"s_waitcnt vmcnt({d - 1})")
            landed[0] = n[0] - d + 1
            c4 = landed[0] // 4 * 4
            if c4 > written[0]:
                prog(c4)
    for i in range(4):
        if i == 3:
            a(f"s_cmp_lt_u32 s{SJ}, 2\ns_cselect_b32 s{SOF}, s{SOF}, {OOB:#x}")
        throttle(D)
        a(f"buffer_load_dwordx4 v{VWQ}, s[{SWQ}:{SWQ + 3}], s{SOF} offen nt lds")
        n[0] += 1
        if i < 3:
            a(f"s_add_u32 m0, m0, 4096\ns_add_u32 s{SOF}, s{SOF}, 262144")
        if i == 0:
            srd_off(SK, 6, 7, 68, KVN)
    def setup_rest():
        srd_off(SV, 8, 9, 68, KVN)
        srd(SWO, 12, 13, 3670016)
        a(f"""
        v_lshrrev_b32 v1, 5, v0
        v_and_b32 v2, 31, v0
        v_lshlrev_b32 v3, 1, v1
        v_xor_b32 v3, v3, v2
        s_and_b32 s52, s{SJ}, 1
        s_lshl_b32 s52, s52, 2
        v_xor_b32 v3, s52, v3
        v_lshlrev_b32 v3, 4, v3
        v_lshl_add_u32 v{VV0}, v1, 9, v3
        v_xor_b32 v{VV1}, 128, v{VV0}
        v_lshrrev_b32 v1, 4, v0
        v_mul_u32_u24 v1, 896, v1
        v_and_b32 v2, 15, v0
        v_lshl_add_u32 v{VWO}, v2, 4, v1
        v_cmp_le_u32 vcc, 8, v2
        s_cmp_eq_u32 s{SCB}, 3
        s_cselect_b64 s[52:53], vcc, 0
        v_mov_b32 v1, {OOB:#x}
        v_cndmask_b32 v{VWO}, v{VWO}, v1, s[52:53]
        s_lshl_b32 s52, s{SJ}, 2
        s_add_u32 s52, s52, {F_PROG}
        v_mov_b32 v{VPA}, s52
        v_and_b32 v1, 3, v0
        v_lshlrev_b32 v1, 2, v1
        v_add_u32 v{VFQ}, {F_Q}, v1
        """)
        lwarm_setup()
    if bar4:
        a("s_barrier")
    def kv_first():
        if rho:
            a(f"s_mov_b32 s70, s{SS}")
            if phase:
                a(f"s_mul_i32 s71, s{SH}, {phase * 131072}\ns_and_b32 s71, s71, 0x1fffff\ns_add_u32 s71, s71, s56")
            else:
                a("s_mov_b32 s71, s56")
            a(f"s_lshl_b32 s{SOF}, s70, 12\ns_add_u32 s{SOF}, s{SOF}, s71")
        else:
            a(f"s_mov_b32 s{SOF}, s56")
    def kv_next():
        if rho:
            a(f"""
            s_add_u32 s70, s70, {rho}
            s_and_b32 s70, s70, 31
            s_add_u32 s71, s71, 131072
            {"s_and_b32 s71, s71, 0x1fffff" if phase else ""}
            s_lshl_b32 s{SOF}, s70, 12
            s_add_u32 s{SOF}, s{SOF}, s71
            """)
        else:
            a(f"s_add_u32 s{SOF}, s{SOF}, {KVSTEP}")
    a("s_mov_b32 m0, s56")
    kv_first()
    for i in range(16):
        throttle(D)
        a(f"buffer_load_dwordx4 v{VK0 + (i & 1)}, s[{SK}:{SK + 3}], s{SOF} offen nt lds")
        n[0] += 1
        a("s_add_u32 m0, m0, 4096")
        kv_next()
        if n[0] == D:
            setup_rest()
            if not bar4:
                a("s_barrier")
            stamp()
            if early4:
                a(f"s_waitcnt vmcnt({D - 4})")
                landed[0] = 4
                prog(4)
    a(f"s_add_u32 m0, s56, {L_V}")
    kv_first()
    for i in range(16):
        throttle(D2)
        a(f"buffer_load_dwordx4 v{VV0 + (i & 1)}, s[{SV}:{SV + 3}], s{SOF} offen nt lds")
        n[0] += 1
        a("s_add_u32 m0, m0, 4096")
        kv_next()
    stamp()
    a(f"""
    s_lshl_b32 s52, s{SH}, 9
    s_lshl_b32 s53, s{SRB}, 5
    s_add_u32 s52, s52, s53
    s_lshl_b32 s53, s{SJ}, 2
    s_add_u32 s52, s52, s53
    s_mul_i32 s52, s52, 896
    s_lshl_b32 s53, s{SCB}, 8
    s_add_u32 s{SOF}, s52, s53
    s_add_u32 m0, s56, {L_WO}
    """)
    lds_wait(VFQ, 1, "v_cmp_ne_u32 vcc, 0, v1", "lfq")
    for i in range(4):
        throttle(D2)
        a(f"buffer_load_dwordx4 v{VWO}, s[{SWO}:{SWO + 3}], s{SOF} offen nt lds")
        n[0] += 1
        if i < 3:
            step = 16 * 896 if i != 1 else 256 * 896 - 16 * 896
            a(f"s_add_u32 m0, m0, 4096\ns_add_u32 s{SOF}, s{SOF}, {step}")
    extra = 0
    if warm == 4:
        lwarm()
        extra = 2 if floc else 1
    stamp()
    thr = written[0] + 4
    a("s_setprio 3\ns_mov_b64 exec, 1")
    while thr <= NTOT:
        rv = VPV if (thr // 4) & 1 else 14
        a(f"v_mov_b32 v{rv}, {thr}")
        a(f"s_waitcnt vmcnt({NTOT - thr + extra})")
        a(f"ds_write_b32 v{VPA}, v{rv}")
        if thr == 36 and tail:
            stamp()
        thr += 4
    a("s_mov_b64 exec, -1")
    stamp()
    if dirty:
        srd(SWS, 18, 19, WS_BYTES)
        a(f"""
        s_lshl_b32 s52, s2, 2
        s_add_u32 s52, s52, s{SJ}
        s_mul_i32 s52, s52, {dirty * 1024}
        s_add_u32 s52, s52, {5 << 20}
        v_lshlrev_b32 v13, 4, v0
        """)
        for i in range(dirty):
            a(f"buffer_store_dwordx4 v[16:19], v13, s[{SWS}:{SWS + 3}], s52 offen")
            a("s_add_u32 s52, s52, 1024")
    flush_stamps(20, 11, 4, 4)
    a("s_endpgm")
    a("L_end:")
    a("s_endpgm")
    a('.section .rodata,"a"')
    a(".p2align 6")
    out = HEADER + f"; @launch grid=(256,1,1) block=(512,1,1) lds={LDS_BYTES}\n" + OVERVIEW + a.text() + kernel_desc(k, 256, 102)
    return out

if __name__ == "__main__":
    kw = {}
    for x in sys.argv[2:]:
        key, val = x.lstrip("-").split("=") if "=" in x else (x.lstrip("-"), "1")
        kw[key] = int(val)
    open(sys.argv[1], "w").write(gen(**kw))
```

```python
import struct, sys
from asmlib import *

def f2u(x):
    return struct.unpack("<I", struct.pack("<f", x))[0]

L_K, L_V, L_WQ, L_Q, L_S, L_FL = 0, 65536, 131072, 147456, 148480, 149504
L_WO = L_WQ
L_RED = 0
LDS_BYTES = 149760
F_PROG, F_Q, F_M, F_P, F_R, L_TAG, F_R2, F_L = L_FL, L_FL + 16, L_FL + 32, L_FL + 48, L_FL + 64, L_FL + 80, L_FL + 96, L_FL + 112
L_P, L_MX = L_S, L_S + 512
W_QA, W_OS, W_FS, W_QB, W_TS = 65536, 262144, 1310720, 1572864, 4 << 20
WS_BYTES = 8 << 20
TAG_INC = 0x9E3779B1
SPIN = 200000
OOB = 0x40000000

def gen(stamps=False, D=8, force_remote=False, warm=4, sleep=1, dbg=-1, qa=1, NA=3, qack=0, pretouch=0, ack2=1, D2=8, qprog=0, early4=1, cnt=0, xq=0, bar4=1, lprio=0, cprio=3, bgon=1, qjunk=1, ack1=1, wpol=0, wpos=6, tail=0, specv=1, rsleep=0, fdelay=0, wat=40, wofirst=0, dirty=0, ilv=1, phase=0, floc=1, qwarm=1, psleep=0, remap=0, rho=11):
    assert 5 <= D <= 20
    D2 = D2 or D
    KVN = (2097152 if rho else 1970176) if ilv else 65536
    KVSTEP = 131072 if ilv else 4096
    a = Asm()
    k = NAME + "_kernel"
    SH, SS, SW, STAG = 20, 21, 22, 23
    SK, SV, SWQ, SX, SWO, SWS, SOUT = 24, 28, 32, 36, 40, 44, 48
    MODD, MHI, MAA = 58, 60, 62
    SXCC, SLOC = 64, 65
    SP = 66
    SSPIN, SRB, SCB = 74, 75, 76
    SOG = 77
    STS = 78
    SOSP, SQP = (56, 57)
    nst = [0]
    def stamp(kind="n"):
        if kind == "e" and tail:
            return
        if kind == "t" and not tail:
            return
        if stamps:
            a(f"s_memrealtime s[{STS + 2 * nst[0]}:{STS + 2 * nst[0] + 1}]")
            nst[0] += 1
    def flush_stamps(vtmp, base=0, cnt=12, wave=0):
        if not stamps:
            return
        if dbg >= 0:
            lb = a.label("dbg")
            a(f"""
            s_waitcnt lgkmcnt(0)
            s_cmp_lg_u32 s2, {dbg}
            s_cbranch_scc1 {lb}
            s_cmp_lg_u32 s{SW}, {wave}
            s_cbranch_scc1 {lb}
            s_mov_b32 s52, s16
            s_and_b32 s53, s17, 0xffff
            s_mov_b32 s54, 256
            s_mov_b32 s55, 0x20000
            s_mov_b64 exec, 1
            """)
            for i in range(cnt):
                a(f"s_sub_u32 s56, s{STS + 2 * (i + 1)}, s{STS}")
                a(f"v_mov_b32 v{vtmp}, s56")
                a(f"v_mov_b32 v{vtmp + 2}, {4 * (base + i)}")
                a(f"buffer_store_dword v{vtmp}, v{vtmp + 2}, s[52:55], 0 offen")
                a("s_nop 1")
            a(f"{lb}:")
            a("s_mov_b64 exec, -1")
            return
        a(f"""
        s_waitcnt lgkmcnt(0)
        s_mov_b32 s{SWS}, s18
        s_and_b32 s{SWS + 1}, s19, 0xffff
        s_mov_b32 s{SWS + 2}, {WS_BYTES}
        s_mov_b32 s{SWS + 3}, 0x20000
        s_lshl_b32 s52, s2, 3
        s_add_u32 s52, s52, s{SW}
        s_lshl_b32 s52, s52, 7
        s_add_u32 s52, s52, {W_TS}
        s_mov_b64 exec, 1
        """)
        for i in range(12):
            a(f"v_mov_b32 v{vtmp}, s{STS + 2 * i}")
            a(f"v_mov_b32 v{vtmp + 1}, s{STS + 2 * i + 1}")
            a(f"v_mov_b32 v{vtmp + 2}, {8 * i}")
            a(f"buffer_store_dwordx2 v[{vtmp}:{vtmp + 1}], v{vtmp + 2}, s[{SWS}:{SWS + 3}], s52 offen")
            a("s_nop 1")
        a("s_mov_b64 exec, -1")
    def lds_wait(addr_v, tmp, cmp, name, slp=None, off=0):
        slp = sleep if slp is None else slp
        lb = a.label(name)
        a(f"""
        {lb}:
        ds_read_b32 v{tmp}, v{addr_v} offset:{off}
        s_waitcnt lgkmcnt(0)
        {cmp}
        s_cmp_eq_u64 vcc, -1
        """)
        if slp:
            a(f"""
            s_cbranch_scc1 {lb}_ok
            s_sleep {slp}
            s_branch {lb}
            {lb}_ok:
            """)
        else:
            a(f"s_cbranch_scc0 {lb}")
    def srd(reg, lo, hi, size):
        a(f"""
        s_mov_b32 s{reg}, s{lo}
        s_and_b32 s{reg + 1}, s{hi}, 0xffff
        s_mov_b32 s{reg + 2}, {size}
        s_mov_b32 s{reg + 3}, 0x20000
        """)
    def srd_off(reg, lo, hi, off, size):
        a(f"""
        s_add_u32 s{reg}, s{lo}, s{off}
        s_addc_u32 s{reg + 1}, s{hi}, 0
        s_and_b32 s{reg + 1}, s{reg + 1}, 0xffff
        s_mov_b32 s{reg + 2}, {size}
        s_mov_b32 s{reg + 3}, 0x20000
        """)
    def swapb(op, reg, tmp, kinds):
        for kind in kinds:
            a(f"v_mov_b32 v{tmp}, v{reg}")
            a("s_nop 1")
            a(f"v_permlane{kind}_swap_b32 v{reg}, v{tmp}")
            a("s_nop 0")
            a(f"{op} v{reg}, v{reg}, v{tmp}")
    DPPM = "row_mask:0xf bank_mask:0xf"

    a(f"""
    .amdgcn_target "amdgcn-amd-amdhsa--gfx950"
    .text
    .globl {k}
    .p2align 8
    .type {k},@function
    {k}:
    s_cmp_ge_u32 s2, 256
    s_cbranch_scc1 L_end
    s_load_dwordx16 s[4:19], s[0:1], 0
    """)
    if stamps:
        for i in range(78, 102):
            a(f"s_mov_b32 s{i}, 0")
    stamp()
    a(f"""
    v_lshrrev_b32 v1, 6, v0
    {"s_lshr_b32" if remap else "s_and_b32"} s{SH}, s2, {5 if remap else 7}
    {"s_and_b32" if remap else "s_lshr_b32"} s{SS}, s2, {31 if remap else 3}
    v_readfirstlane_b32 s{SW}, v1
    v_and_b32 v0, 63, v0
    s_lshr_b32 s{SRB}, s{SS}, 2
    s_and_b32 s{SCB}, s{SS}, 3
    s_lshl_b32 s52, s{SH}, 25
    s_lshl_b32 s53, s{SS}, {12 if ilv else 16}
    {'s_nop 0' if (ilv and rho) else 's_add_u32 s52, s52, s53'}
    s_add_u32 s68, s52, 31457280
    s_cmp_ge_u32 s{SW}, 4
    s_cbranch_scc1 L_loader
    """)

    VN, VG = 2, 3
    VPRA, VFQA, VFSA, VOG = 4, 5, 6, 7
    XA = 8
    VZ = 180
    VOP, VQPO = 184, 185
    a(f"""
    s_setprio {cprio}
    s_getreg_b32 s{SXCC}, hwreg(HW_REG_XCC_ID, 0, 4)
    v_and_b32 v{VN}, 15, v0
    v_lshrrev_b32 v{VG}, 4, v0
    s_lshr_b32 s52, s{SS}, 3
    s_mul_i32 s52, s52, 224
    v_lshl_add_u32 v1, v{VG}, 4, s52
    v_lshl_add_u32 v22, v{VG}, 3, s52
    v_mov_b32 v{VZ}, 0
    v_mov_b32 v{VZ + 1}, 0
    v_mov_b32 v{VZ + 2}, 0
    v_mov_b32 v{VZ + 3}, 0
    v_lshrrev_b32 v23, 3, v0
    v_lshlrev_b32 v23, 12, v23
    v_and_b32 v26, 7, v0
    v_lshl_add_u32 v{VOP}, v26, 4, v23
    v_lshlrev_b32 v{VQPO}, 2, v0
    v_lshlrev_b32 v{VOG}, 4, v0
    s_lshl_b32 s53, s{SH}, 17
    s_lshl_b32 s54, s{SW}, 15
    s_add_u32 s53, s53, s54
    s_lshl_b32 s54, s{SS}, 7
    s_add_u32 s53, s53, s54
    s_add_u32 s{SOSP}, s53, {W_OS}
    s_lshl_b32 s53, s{SH}, 13
    s_lshr_b32 s54, s{SS}, 3
    s_lshl_b32 s54, s54, 11
    s_add_u32 s53, s53, s54
    s_and_b32 s54, s{SS}, 7
    s_lshl_b32 s54, s54, 8
    s_add_u32 s53, s53, s54
    s_lshl_b32 s54, s{SW}, 6
    s_add_u32 s{SQP}, s53, s54
    s_cmp_lg_u32 s{SW}, 0
    s_cbranch_scc1 L_noinit
    v_lshlrev_b32 v27, 2, v0
    v_add_u32 v27, {L_FL}, v27
    s_mov_b64 exec, 0xffffffff
    ds_write_b32 v27, v{VZ}
    s_mov_b64 exec, -1
    L_noinit:
    s_waitcnt lgkmcnt(0)
    """)
    srd(SX, 4, 5, 896)
    a(f"""
    s_load_dword s{STAG}, s[18:19], 0
    buffer_load_dwordx4 v[{XA}:{XA + 3}], v1, s[{SX}:{SX + 3}], 0 offen
    buffer_load_dwordx4 v[{XA + 4}:{XA + 7}], v1, s[{SX}:{SX + 3}], 0 offen offset:64
    buffer_load_dwordx4 v[{XA + 8}:{XA + 11}], v1, s[{SX}:{SX + 3}], 0 offen offset:128
    buffer_load_dwordx2 v[{XA + 12}:{XA + 13}], v22, s[{SX}:{SX + 3}], 0 offen offset:192
    s_barrier
    """)
    srd(SWS, 18, 19, WS_BYTES)
    srd(SOUT, 14, 15, 896)
    nlater = 0
    if qa and qwarm:
        a(f"""
        s_add_u32 s52, s{SQP}, {W_QA}
        s_mov_b64 exec, 0xf
        buffer_load_dwordx4 v[176:179], v{VOG}, s[{SWS}:{SWS + 3}], s52 offen
        s_mov_b64 exec, -1
        """)
        nlater += 1
    if warm == 2:
        a(f"buffer_store_dwordx4 v[{VZ}:{VZ + 3}], v{VOP}, s[{SWS}:{SWS + 3}], s{SOSP} offen")
        nlater += 1
    if pretouch:
        a(f"""
        s_add_u32 s52, s8, s68
        s_addc_u32 s53, s9, 0
        s_lshl_b32 s54, s{SH}, 9
        s_lshl_b32 s55, s{SRB}, 5
        s_add_u32 s54, s54, s55
        s_mul_i32 s54, s54, 896
        s_add_u32 s54, s12, s54
        s_addc_u32 s55, s13, 0
        s_cmp_eq_u32 s{SW}, 1
        s_cselect_b32 s{SV}, s52, s14
        s_cselect_b32 s{SV + 1}, s53, s15
        s_cmp_eq_u32 s{SW}, 2
        s_cselect_b32 s{SV}, s54, s{SV}
        s_cselect_b32 s{SV + 1}, s55, s{SV + 1}
        s_and_b32 s{SV + 1}, s{SV + 1}, 0xffff
        s_mov_b32 s{SV + 2}, 4
        s_mov_b32 s{SV + 3}, 0x20000
        s_mov_b64 exec, 1
        buffer_load_dword v176, v{VZ}, s[{SV}:{SV + 3}], 0 offen nt
        s_mov_b64 exec, -1
        """)
        nlater += 1
    a(f"""
    s_mov_b32 s{MODD}, 0xffff0000
    s_mov_b32 s{MODD + 1}, 0xffff0000
    s_mov_b32 s{MHI}, 0
    s_mov_b32 s{MHI + 1}, -1
    s_mov_b32 s{MAA}, 0xaaaaaaaa
    s_mov_b32 s{MAA + 1}, 0xaaaaaaaa
    v_and_b32 v1, 3, v0
    v_lshlrev_b32 v1, 2, v1
    v_add_u32 v{VPRA}, {F_PROG}, v1
    v_add_u32 v{VFQA}, {F_Q}, v1
    v_add_u32 v{VFSA}, {F_M}, v1
    """)
    VWA, VWA2 = 24, 25
    a(f"""
    v_lshrrev_b32 v1, 2, v{VN}
    v_and_b32 v27, 3, v{VN}
    v_lshl_add_u32 v22, v{VG}, 3, v1
    v_lshlrev_b32 v22, 7, v22
    v_lshl_add_u32 v22, v27, 3, v22
    v_lshrrev_b32 v23, 1, v1
    v_and_b32 v26, 1, v{VG}
    v_lshl_add_u32 v26, v26, 1, v23
    v_xor_b32 v26, s{SW}, v26
    v_lshl_add_u32 v22, v26, 5, v22
    v_add_u32 v{VWA}, {L_WQ}, v22
    v_lshl_add_u32 v22, v{VG}, 2, v1
    v_lshlrev_b32 v22, 7, v22
    v_lshl_add_u32 v22, v27, 3, v22
    v_lshrrev_b32 v26, 1, v{VG}
    v_lshl_add_u32 v26, v26, 1, v23
    v_xor_b32 v26, s{SW}, v26
    v_lshl_add_u32 v22, v26, 5, v22
    v_add_u32 v{VWA2}, {L_WQ + 96 * 128}, v22
    s_lshl_b32 s52, s{SH}, 13
    s_lshl_b32 s53, s{SW}, 9
    s_add_u32 s52, s52, s53
    s_add_u32 s68, s52, {W_QA if qa else W_QB}
    s_add_u32 s69, s68, 4096
    v_lshrrev_b32 v1, 5, v0
    v_and_b32 v22, 31, v0
    v_lshlrev_b32 v22, 4, v22
    v_lshl_add_u32 v186, v1, 11, v22
    v_and_b32 v22, 3, v0
    v_lshrrev_b32 v187, v22, s{SXCC}
    v_and_b32 v187, 1, v187
    v_lshlrev_b32 v187, 8, v187
    s_mov_b32 s24, 0x05030201
    s_mov_b32 s25, 0x06050302
    s_mov_b32 s26, 0x07060503
    s_mov_b32 s27, 0xfffffe00
    s_lshl_b32 s52, s{SH}, 17
    s_lshl_b32 s53, s{SRB}, 14
    s_add_u32 s52, s52, s53
    s_lshl_b32 s53, s{SW}, 12
    s_add_u32 s52, s52, s53
    s_add_u32 s{SOG}, s52, {W_OS}
    """)
    lds_wait(VPRA, 1, "v_cmp_le_u32 vcc, 4, v1", "wq")
    stamp('e')
    WB = 28
    for t in range(3):
        for u in range(2):
            r = WB + 4 * t + 2 * u
            a(f"ds_read_b64_tr_b16 v[{r}:{r + 1}], v{VWA} offset:{t * 4096 + u * 512}")
    a(f"ds_read_b64_tr_b16 v[{WB + 12}:{WB + 13}], v{VWA2}")
    QC, QC2 = 44, 48
    a(f"s_waitcnt vmcnt({nlater}) lgkmcnt(0)")
    a(f"v_mfma_f32_16x16x16_bf16 v[{QC2}:{QC2 + 3}], v[{XA + 12}:{XA + 13}], v[{WB + 12}:{WB + 13}], 0")
    for t in range(3):
        cin = "0" if t == 0 else f"v[{QC}:{QC + 3}]"
        a(f"v_mfma_f32_16x16x32_bf16 v[{QC}:{QC + 3}], v[{XA + 4 * t}:{XA + 4 * t + 3}], v[{WB + 4 * t}:{WB + 4 * t + 3}], {cin}")
    a(f"""
    s_add_u32 s{STAG}, s{STAG}, {TAG_INC:#x}
    s_or_b32 s{STAG}, s{STAG}, 1
    s_add_u32 s52, s{SQP}, {W_QA}
    s_add_u32 s53, s{SQP}, {W_QB}
    s_nop 4
    v_add_f32 v56, v{QC}, v{QC2}
    v_add_u32 v56, 0x100, v56
    v_and_or_b32 v56, v56, s27, v187
    v_mov_b32 v51, s{STAG}
    s_nop 0
    v_mov_b32_dpp v52, v56 quad_perm:[0,0,0,0] {DPPM}
    v_mov_b32_dpp v53, v56 quad_perm:[1,1,1,1] {DPPM}
    v_mov_b32_dpp v54, v56 quad_perm:[2,2,2,2] {DPPM}
    v_mov_b32_dpp v55, v56 quad_perm:[3,3,3,3] {DPPM}
    v_perm_b32 v48, v53, v52, s24
    v_perm_b32 v49, v54, v53, s25
    v_perm_b32 v50, v55, v54, s26
    s_mov_b64 exec, 0x1111
    """)
    if qa:
        a(f"buffer_store_dwordx4 v[48:51], v{VQPO}, s[{SWS}:{SWS + 3}], s52 offen")
    a(f"""
    buffer_store_dwordx4 v[48:51], v{VQPO}, s[{SWS}:{SWS + 3}], s53 offen sc1
    s_mov_b64 exec, -1
    """)
    if qack or not qa:
        a("s_waitcnt vmcnt(0)")
    if qprog:
        lds_wait(VPRA, 1, f"v_cmp_le_u32 vcc, {qprog}, v1", "qp")
    stamp('e')
    QG = 52
    VQA, VKA, VVA = 26, 28, 36
    VPW, VMW, VMR, VPA = 32, 33, 35, 27
    VQ, VKB, VC = 72, 104, 168
    VVB = 192
    VP, VONE, VO, VLA, VOUT = 52, 40, 144, 160, 124
    SBG, STHR = 73, 72
    M2 = 30
    def late_warm():
        pol = ["", " sc1", " nt", " sc1 nt"][wpol]
        a(f"""
        s_lshl_b32 s52, s{SCB}, 10
        s_add_u32 s52, s52, s{SOG}
        buffer_load_dwordx4 v[176:179], v{VOG}, s[{SWS}:{SWS + 3}], s52 offen{pol}
        """)
    def addr_setup():
        a(f"""
        v_and_b32 v1, 1, v{VN}
        v_lshlrev_b32 v22, 9, v1
        v_lshl_add_u32 v22, v{VG}, 4, v22
        v_add_u32 v{VQA}, {L_Q}, v22
        v_lshlrev_b32 v22, 8, v1
        v_lshl_add_u32 v22, v{VG}, 4, v22
        v_add_u32 v{VPA}, {L_P}, v22
        v_xor_b32 v1, v{VG}, v{VN}
        v_lshlrev_b32 v1, 4, v1
        v_lshl_add_u32 v1, v{VN}, 9, v1
        s_lshl_b32 s52, s{SW}, 14
        v_add_u32 v{VKA}, s52, v1
        """)
        for t in range(1, 4):
            a(f"v_xor_b32 v{VKA + t}, {t << 6}, v{VKA}")
        a(f"""
        v_lshrrev_b32 v1, 2, v{VN}
        v_and_b32 v22, 3, v{VN}
        v_lshl_add_u32 v23, v{VG}, 3, v1
        v_lshlrev_b32 v23, 9, v23
        v_lshl_add_u32 v23, v22, 3, v23
        v_and_b32 v22, 1, v{VG}
        v_lshl_add_u32 v1, v22, 2, v1
        s_lshl_b32 s52, s{SW}, 2
        v_xor_b32 v1, s52, v1
        v_lshl_add_u32 v23, v1, 5, v23
        v_add_u32 v{VVA}, {L_V}, v23
        """)
        for b in range(1, 4):
            a(f"v_xor_b32 v{VVA + b}, {b << 5}, v{VVA}")
        a(f"""
        v_lshrrev_b32 v1, 5, v0
        v_and_b32 v22, 31, v0
        v_lshlrev_b32 v23, 8, v1
        v_lshl_add_u32 v23, v22, 1, v23
        s_lshl_b32 s52, s{SW}, 6
        s_add_u32 s52, s52, {L_P}
        v_add_u32 v{VPW}, s52, v23
        s_lshl_b32 s52, s{SW}, 2
        s_add_u32 s52, s52, {L_MX}
        v_lshl_add_u32 v{VMW}, v1, 4, s52
        v_mov_b32 v{VMR}, {L_MX}
        s_lshl_b32 s52, s{SW}, 11
        s_add_u32 s52, s52, {L_WO}
        v_lshl_add_u32 v34, v0, 2, s52
        s_mov_b32 s{M2}, 0xcccccccc
        s_mov_b32 s{M2 + 1}, 0xcccccccc
        """)
        for r in range(4):
            a(f"v_mov_b32 v{VONE + r}, 0x3f803f80")
    def task(kk):
        if kk == 0:
            for blk in range(2):
                for t in range(8):
                    r = VKB + blk * 32 + 4 * t
                    a(f"ds_read_b128 v[{r}:{r + 3}], v{VKA + (t & 3)} offset:{blk * 8192 + (t >> 2) * 256}")
                if blk == 0:
                    a("s_waitcnt lgkmcnt(4)")
        else:
            j = kk - 1
            for b in range(4):
                for u in range(2):
                    r = VVB + 16 * j + 4 * b + 2 * u
                    a(f"ds_read_b64_tr_b16 v[{r}:{r + 1}], v{VVA + b} offset:{j * 16384 + u * 2048}")
        a(f"s_mov_b32 s{SBG}, {kk + 1}")
        a(f"s_mov_b32 s{STHR}, {24 + 4 * kk}")
    def bg(loop):
        lb = a.label("bg")
        a(f"""
        {lb}:
        s_cmp_ge_u32 s{SBG}, 5
        s_cbranch_scc1 {lb}_x
        ds_read_b32 v1, v{VPRA}
        s_waitcnt lgkmcnt(0)
        v_cmp_le_u32 vcc, s{STHR}, v1
        s_cmp_eq_u64 vcc, -1
        s_cbranch_scc0 {lb}_x
        """)
        for kk in range(5):
            if kk < 4:
                a(f"s_cmp_lg_u32 s{SBG}, {kk}\ns_cbranch_scc1 {lb}_t{kk}")
            task(kk)
            a(f"s_branch {lb if loop else lb + '_x'}")
            if kk < 4:
                a(f"{lb}_t{kk}:")
        a(f"{lb}_x:")
    def ensure(kk, slp=None):
        lb = a.label("ens")
        a(f"s_cmp_gt_u32 s{SBG}, {kk}\ns_cbranch_scc1 {lb}")
        lds_wait(VPRA, 1, f"v_cmp_le_u32 vcc, s{STHR}, v1", "e", slp=slp)
        task(kk)
        a(f"{lb}:")

    a(f"""
    s_mov_b32 s{SSPIN}, {SPIN}
    s_mov_b32 s24, 0
    s_mov_b32 s{SBG}, 0
    s_lshl_b32 s{STHR}, s{SW}, 2
    s_add_u32 s{STHR}, s{STHR}, 8
    """)
    def qloads():
        for qi, sr_ in enumerate((68, 69)):
            a(f"buffer_load_dwordx4 v[{QG + 4 * qi}:{QG + 4 * qi + 3}], v186, s[{SWS}:{SWS + 3}], s{sr_} offen sc1")
    qloads()
    addr_setup()
    a("s_branch L_pollq_issued")
    a("L_pollq:")
    qloads()
    a("L_pollq_issued:")
    if bgon:
        bg(True)
    a(f"""
    s_sub_u32 s{SSPIN}, s{SSPIN}, 1
    s_cbranch_scc1 L_pollq_done
    s_waitcnt vmcnt(0)
    v_cmp_eq_u32 s[54:55], s{STAG}, v{QG + 3}
    v_cmp_eq_u32 vcc, s{STAG}, v{QG + 7}
    s_and_b64 s[54:55], s[54:55], vcc
    """)
    a("s_cmp_eq_u64 s[54:55], -1")
    if qa:
        a(f"""
        s_cbranch_scc1 L_pollq_done
        s_add_u32 s24, s24, 1
        s_cmp_lg_u32 s24, {NA}
        s_cbranch_scc1 L_pollq
        s_add_u32 s68, s68, {W_QB - W_QA}
        s_add_u32 s69, s69, {W_QB - W_QA}
        s_branch L_pollq
        """)
    else:
        a("s_cbranch_scc0 L_pollq")
    a(f"""
    L_pollq_done:
    s_waitcnt vmcnt(0)
    """)
    if cnt:
        a(f"s_mov_b32 s36, s{SSPIN}")
    a(f"""
    s_mov_b32 s52, 0x0504030c
    s_mov_b32 s53, 0x0403020c
    v_lshlrev_b32 v60, 8, v{QG}
    v_perm_b32 v61, v{QG + 1}, v{QG}, s52
    v_perm_b32 v62, v{QG + 2}, v{QG + 1}, s53
    v_and_b32 v63, 0xffffff00, v{QG + 2}
    v_lshlrev_b32 v64, 8, v{QG + 4}
    v_perm_b32 v65, v{QG + 5}, v{QG + 4}, s52
    v_perm_b32 v66, v{QG + 6}, v{QG + 5}, s53
    v_and_b32 v67, 0xffffff00, v{QG + 6}
    v_add_f32 v60, v60, v64
    v_add_f32 v61, v61, v65
    v_add_f32 v62, v62, v66
    v_add_f32 v63, v63, v67
    v_lshrrev_b32 v1, 5, v0
    v_and_b32 v22, 31, v0
    v_permlane32_swap_b32 v60, v61
    v_permlane32_swap_b32 v62, v63
    v_lshlrev_b32 v22, 3, v22
    v_add_f32 v60, v60, v61
    v_add_f32 v62, v62, v63
    v_lshl_add_u32 v22, v1, 1, v22
    s_lshl_b32 s55, s{SW}, 8
    s_add_u32 s55, s55, {L_Q}
    v_cvt_pk_bf16_f32 v60, v60, v62
    v_add_u32 v22, s55, v22
    s_lshl_b32 s55, s{SW}, 2
    s_add_u32 s55, s55, {F_Q}
    v_mov_b32 v1, s55
    v_mov_b32 v23, 1
    ds_write_b16 v22, v60
    ds_write_b16_d16_hi v22, v60 offset:4
    s_mov_b64 exec, 1
    ds_write_b32 v1, v23
    s_mov_b64 exec, -1
    s_and_b32 s52, s{SXCC}, 1
    s_lshr_b32 s53, s{SXCC}, 1
    s_and_b32 s53, s53, 1
    s_lshl_b32 s53, s53, 24
    s_or_b32 s52, s52, s53
    s_lshr_b32 s53, s{SXCC}, 2
    s_and_b32 s53, s53, 1
    s_lshl_b32 s53, s53, 16
    s_lshr_b32 s54, s{SXCC}, 3
    s_and_b32 s54, s54, 1
    s_lshl_b32 s54, s54, 8
    v_xor_b32 v60, s52, v{QG}
    v_xor_b32 v61, s52, v{QG + 4}
    v_xor_b32 v62, s53, v{QG + 1}
    v_xor_b32 v63, s53, v{QG + 5}
    v_xor_b32 v64, s54, v{QG + 2}
    v_xor_b32 v65, s54, v{QG + 6}
    v_or_b32 v60, v60, v61
    v_or_b32 v62, v62, v63
    v_or_b32 v64, v64, v65
    v_and_b32 v60, 0x01000001, v60
    v_and_b32 v62, 0x00010000, v62
    v_and_b32 v64, 0x00000100, v64
    v_or3_b32 v60, v60, v62, v64
    v_cmp_eq_u32 vcc, 0, v60
    v_add_u32 v1, {F_L - F_Q}, v1
    s_cmp_eq_u64 vcc, -1
    s_cselect_b32 s54, 3, 1
    v_mov_b32 v23, s54
    s_mov_b64 exec, 1
    ds_write_b32 v1, v23
    s_mov_b64 exec, -1
    """)
    if warm == 1:
        for kk in range(4):
            a(f"buffer_load_dwordx4 v[{QG + 4 * kk}:{QG + 4 * kk + 3}], v{VOG}, s[{SWS}:{SWS + 3}], s{SOG} offen offset:{kk * 1024} sc1")
    a(f"""
    L_fqw:
    ds_read_b32 v22, v{VFQA}
    s_waitcnt lgkmcnt(0)
    v_cmp_ne_u32 vcc, 0, v22
    s_cmp_eq_u64 vcc, -1
    s_cbranch_scc1 L_fqw_ok
    """)
    if bgon:
        bg(False)
    a(f"""
    s_branch L_fqw
    L_fqw_ok:
    """)
    for t in range(8):
        a(f"ds_read_b128 v[{VQ + 4 * t}:{VQ + 4 * t + 3}], v{VQA} offset:{t * 64}")
    stamp('e')
    if warm == 3 and wpos == 3:
        late_warm()
    ensure(0)
    a("s_waitcnt lgkmcnt(0)")
    for t in range(8):
        for blk in range(2):
            c = VC + 4 * blk
            r = VKB + blk * 32 + 4 * t
            cin = "0" if t == 0 else f"v[{c}:{c + 3}]"
            a(f"v_mfma_f32_16x16x32_bf16 v[{c}:{c + 3}], v[{VQ + 4 * t}:{VQ + 4 * t + 3}], v[{r}:{r + 3}], {cin}")
    C = 1.4426950408889634 / 16.0
    a(f"""
    s_mov_b32 s52, {f2u(C):#x}
    s_mov_b32 s54, 1
    s_mov_b32 s55, 1
    s_lshl_b32 s53, s{SW}, 2
    s_add_u32 s53, s53, {F_M}
    v_mov_b32 v1, s53
    v_mov_b32 v72, 1
    s_nop 0
    v_cndmask_b32 v22, v{VC}, v{VC + 1}, s[{MHI}:{MHI + 1}]
    v_cndmask_b32 v23, v{VC + 4}, v{VC + 5}, s[{MHI}:{MHI + 1}]
    v_cndmask_b32 v22, v22, v23, s[{MODD}:{MODD + 1}]
    s_nop 1
    v_max_f32_dpp v23, v22, v22 quad_perm:[1,0,3,2] {DPPM}
    s_nop 1
    v_max_f32_dpp v23, v23, v23 quad_perm:[2,3,0,1] {DPPM}
    s_nop 1
    v_max_f32_dpp v23, v23, v23 row_half_mirror {DPPM}
    s_nop 1
    v_max_f32_dpp v23, v23, v23 row_mirror {DPPM}
    v_mov_b32 v73, v23
    s_nop 1
    v_permlane16_swap_b32 v23, v73
    s_nop 0
    v_max_f32 v23, v23, v73
    s_mov_b64 exec, s[54:55]
    ds_write_b32 v{VMW}, v23
    s_mov_b64 exec, 1
    ds_write_b32 v1, v72
    s_mov_b64 exec, -1
    """)
    stamp('e')
    a(f"""
    L_mw:
    ds_read_b32 v73, v{VFSA}
    ds_read_b128 v[76:79], v{VMR}
    ds_read_b128 v[80:83], v{VMR} offset:16
    s_waitcnt lgkmcnt(0)
    v_cmp_ne_u32 vcc, 0, v73
    s_cmp_eq_u64 vcc, -1
    s_cbranch_scc0 L_mw
    v_max3_f32 v76, v76, v77, v78
    v_max3_f32 v80, v80, v81, v82
    v_max_f32 v76, v76, v79
    v_max_f32 v80, v80, v83
    v_mul_f32 v76, s52, v76
    v_mul_f32 v80, s52, v80
    v_cndmask_b32 v77, v76, v80, s[{MHI}:{MHI + 1}]
    v_fma_f32 v22, v22, s52, -v77
    v_exp_f32 v22, v22
    v_add_u32 v1, 16, v1
    v_cndmask_b32 v{VOUT + 2}, v76, v80, s[{M2}:{M2 + 1}]
    v_cvt_pk_bf16_f32 v22, v22, v22
    ds_write_b16 v{VPW}, v22
    s_mov_b64 exec, 1
    ds_write_b32 v1, v72
    s_mov_b64 exec, -1
    v_mov_b32 v{VOUT + 3}, s{STAG}
    """)
    stamp('e')
    a(f"""
    L_pw:
    ds_read_b32 v73, v{VFSA} offset:16
    """)
    for j in range(4):
        a(f"ds_read_b128 v[{VP + 4 * j}:{VP + 4 * j + 3}], v{VPA} offset:{j * 64}")
    a(f"""
    s_waitcnt lgkmcnt(0)
    v_cmp_ne_u32 vcc, 0, v73
    s_cmp_eq_u64 vcc, -1
    s_cbranch_scc0 L_pw
    """)
    stamp()
    lds_wait(VFQA, 1, "v_cmp_ne_u32 vcc, 0, v1", "loc", slp=0, off=F_L - F_Q)
    a(f"""
    v_cmp_eq_u32 vcc, 3, v1
    s_cmp_eq_u64 vcc, -1
    s_cselect_b32 s{SLOC}, 1, 0
    """)
    if force_remote:
        a(f"s_mov_b32 s{SLOC}, 0")
    if warm == 3 and wpos == 6:
        late_warm()
    for j in range(4):
        if j == 3 and specv:
            lb = a.label("v3")
            a(f"""
            s_cmp_gt_u32 s{SBG}, 4
            s_cbranch_scc1 {lb}_ok
            {lb}:
            ds_read_b32 v1, v{VPRA}
            """)
            for b in range(4):
                for u in range(2):
                    r = VVB + 48 + 4 * b + 2 * u
                    a(f"ds_read_b64_tr_b16 v[{r}:{r + 1}], v{VVA + b} offset:{3 * 16384 + u * 2048}")
            a(f"""
            s_waitcnt lgkmcnt(0)
            v_cmp_le_u32 vcc, 36, v1
            s_cmp_eq_u64 vcc, -1
            s_cbranch_scc0 {lb}
            {lb}_ok:
            """)
        else:
            ensure(j + 1, slp=(0 if j == 3 else None))
        a("s_waitcnt lgkmcnt(0)")
        if j == 3:
            stamp('t')
        cin = "0" if j == 0 else f"v[{VLA}:{VLA + 3}]"
        a(f"v_mfma_f32_16x16x32_bf16 v[{VLA}:{VLA + 3}], v[{VP + 4 * j}:{VP + 4 * j + 3}], v[{VONE}:{VONE + 3}], {cin}")
        for b in range(4):
            c = VO + 4 * b
            r = VVB + 16 * j + 4 * b
            cin = "0" if j == 0 else f"v[{c}:{c + 3}]"
            a(f"v_mfma_f32_16x16x32_bf16 v[{c}:{c + 3}], v[{VP + 4 * j}:{VP + 4 * j + 3}], v[{r}:{r + 3}], {cin}")
    a(f"""
    s_nop 3
    v_cndmask_b32 v1, v{VLA}, v{VLA + 1}, s[{M2}:{M2 + 1}]
    v_cndmask_b32 v{VOUT + 2}, v{VOUT + 2}, v1, s[{MAA}:{MAA + 1}]
    """)
    for hd in range(2):
        a(f"v_cndmask_b32 v{22 + hd}, v{VO + hd}, v{VO + 4 + hd}, s[{MODD}:{MODD + 1}]")
    for hd in range(2):
        a(f"v_cndmask_b32 v{72 + hd}, v{VO + 8 + hd}, v{VO + 12 + hd}, s[{MODD}:{MODD + 1}]")
    for hd in range(2):
        a(f"v_cndmask_b32 v{VOUT + hd}, v{22 + hd}, v{72 + hd}, s[{MHI}:{MHI + 1}]")
    a(f"""
    s_cmp_eq_u32 s{SLOC}, 0
    s_cbranch_scc1 L_pub_remote
    buffer_store_dwordx4 v[{VOUT}:{VOUT + 3}], v{VOP}, s[{SWS}:{SWS + 3}], s{SOSP} offen
    s_branch L_pub_done
    L_pub_remote:
    buffer_store_dwordx4 v[{VOUT}:{VOUT + 3}], v{VOP}, s[{SWS}:{SWS + 3}], s{SOSP} offen sc1
    L_pub_done:
    """)
    stamp()
    VW = 72
    VRW, VRF, VFSP = 104, 105, 106
    a(f"""
    s_mov_b32 s54, 0x05040100
    s_mov_b32 s55, 0x07060302
    s_lshl_b32 s52, s{SW}, 9
    s_add_u32 s52, s52, {L_RED}
    v_lshl_add_u32 v{VRW}, v0, 3, s52
    v_and_b32 v1, 3, v0
    v_max_u32 v1, 1, v1
    v_lshlrev_b32 v1, 2, v1
    v_add_u32 v{VRF}, {F_R}, v1
    v_lshrrev_b32 v1, 3, v0
    v_lshlrev_b32 v1, 13, v1
    v_and_b32 v22, 7, v0
    v_lshl_add_u32 v{VFSP}, v22, 4, v1
    s_lshl_b32 s52, s{SCB}, 16
    s_lshl_b32 s53, s{SH}, 3
    s_add_u32 s53, s53, s{SRB}
    s_lshl_b32 s53, s53, 7
    s_add_u32 s52, s52, s53
    s_add_u32 s24, s52, {W_FS}
    s_cmp_eq_u32 s{SCB}, 3
    s_cselect_b32 s27, 0, -1
    s_mov_b32 s26, -1
    s_lshl_b32 s52, s{SH}, 3
    s_lshl_b64 s[28:29], 0xff, s52
    s_cmp_eq_u32 s{SLOC}, 0
    s_cselect_b64 s[28:29], 0, s[28:29]
    s_and_b64 s[28:29], s[28:29], s[26:27]
    v_mov_b32 v161, s{STAG}
    v_mov_b32 v163, s{STAG}
    s_lshl_b32 s52, s{SW}, 2
    s_add_u32 s52, s52, {F_R}
    v_mov_b32 v107, s52
    v_mov_b32 v108, 1
    """)
    G = 128
    MX, O0, O1, LA, T = 144, 145, 146, 147, 148
    E = 152
    def wo_prep():
        lds_wait(VPRA, 1, "v_cmp_le_u32 vcc, 40, v1", "wo", slp=0)
        for hd in range(2):
            for jj in range(4):
                r = VW + 8 * hd + 2 * jj
                a(f"ds_read2st64_b32 v[{r}:{r + 1}], v34 offset0:{hd * 32 + 2 * jj} offset1:{hd * 32 + 2 * jj + 1}")
        a("s_waitcnt lgkmcnt(0)")
        for hd in range(2):
            for i in range(4):
                lo, hi = VW + 8 * hd + 2 * i, VW + 8 * hd + 2 * i + 1
                a(f"v_perm_b32 v{88 + 8 * hd + 2 * i}, v{hi}, v{lo}, s54")
                a(f"v_perm_b32 v{89 + 8 * hd + 2 * i}, v{hi}, v{lo}, s55")
    def gloads():
        for kk in range(4):
            a(f"buffer_load_dwordx4 v[{G + 4 * kk}:{G + 4 * kk + 3}], v{VOG}, s[{SWS}:{SWS + 3}], s{SOG} offen offset:{kk * 1024} sc1")
    if wofirst:
        wo_prep()
    if ack1:
        a("s_waitcnt vmcnt(0)")
    else:
        a(f"s_cmp_lg_u32 s{SLOC}, 0\ns_cbranch_scc1 L_noack1\ns_waitcnt vmcnt(0)\nL_noack1:")
    a(f"s_mov_b32 s{SSPIN}, {SPIN}")
    if not wofirst:
        gloads()
        wo_prep()
        a("s_branch L_poll1_issued")
    a("L_poll1:")
    gloads()
    a("L_poll1_issued:")
    a(f"""
    s_sub_u32 s{SSPIN}, s{SSPIN}, 1
    s_cselect_b32 s25, 1, 0
    s_waitcnt vmcnt(0)
    v_max3_f32 v{MX}, v{G + 2}, v{G + 6}, v{G + 10}
    v_max_f32 v{MX}, v{MX}, v{G + 14}
    v_cmp_eq_u32 s[52:53], s{STAG}, v{G + 3}
    v_cmp_eq_u32 vcc, s{STAG}, v{G + 7}
    v_max_f32_dpp v{MX}, v{MX}, v{MX} row_ror:8 {DPPM}
    s_and_b64 s[52:53], s[52:53], vcc
    v_mov_b32 v{T}, v{MX}
    v_cmp_eq_u32 vcc, s{STAG}, v{G + 11}
    s_and_b64 s[52:53], s[52:53], vcc
    v_permlane16_swap_b32 v{MX}, v{T}
    v_cmp_eq_u32 vcc, s{STAG}, v{G + 15}
    v_max_f32 v{MX}, v{MX}, v{T}
    s_and_b64 s[52:53], s[52:53], vcc
    v_mov_b32 v{T}, v{MX}
    s_cmp_eq_u64 s[52:53], -1
    s_cbranch_scc1 L_poll1_done
    s_cmp_eq_u32 s25, 0
    s_cbranch_scc1 L_poll1
    L_poll1_done:
    v_permlane32_swap_b32 v{MX}, v{T}
    s_nop 0
    """)
    if cnt:
        a(f"s_mov_b32 s37, s{SSPIN}")
    stamp()
    a(f"v_max_f32 v{MX}, v{MX}, v{T}")
    for kk in range(4):
        a(f"v_sub_f32 v{E + kk}, v{G + 4 * kk + 2}, v{MX}")
    for kk in range(4):
        a(f"v_exp_f32 v{E + kk}, v{E + kk}")
    a("s_nop 0")
    for kk in range(4):
        op = "v_mul_f32_dpp" if kk == 0 else "v_fmac_f32_dpp"
        a(f"{op} v{O0}, v{E + kk}, v{G + 4 * kk} quad_perm:[0,0,0,0] {DPPM}")
        a(f"{op} v{O1}, v{E + kk}, v{G + 4 * kk + 1} quad_perm:[2,2,2,2] {DPPM}")
        a(f"{op} v{LA}, v{E + kk}, v{G + 4 * kk + 2} quad_perm:[0,0,2,2] {DPPM}")
    a(f"""
    v_mov_b32 v{T}, v{LA}
    s_nop 0
    v_permlane32_swap_b32 v{O0}, v{O1}
    v_permlane32_swap_b32 v{LA}, v{T}
    v_add_f32 v{O0}, v{O0}, v{O1}
    v_add_f32 v{LA}, v{LA}, v{T}
    s_nop 1
    v_permlane16_swap_b32 v{O0}, v{LA}
    s_nop 0
    v_add_f32 v{O0}, v{O0}, v{LA}
    s_nop 1
    v_add_f32_dpp v{O0}, v{O0}, v{O0} row_ror:8 {DPPM}
    s_nop 1
    v_mov_b32_dpp v{T}, v{O0} quad_perm:[1,1,3,3] {DPPM}
    v_rcp_f32 v{LA}, v{O0}
    v_cvt_pk_bf16_f32 v{O1}, v{O0}, v{T}
    s_nop 0
    """)
    for i in range(4):
        a(f"v_readlane_b32 s{SP + i}, v{O1}, {2 * i}")
        a(f"v_readlane_b32 s{SP + 4 + i}, v{O1}, {32 + 2 * i}")
    a(f"v_readlane_b32 s52, v{LA}, 17")
    a(f"v_readlane_b32 s53, v{LA}, 19")
    for i in range(4):
        for hd in range(2):
            for hf in range(2):
                acc = 152 + 2 * hd + hf
                src2 = "0" if i == 0 else f"v{acc}"
                a(f"v_dot2_f32_bf16 v{acc}, s{SP + 4 * hd + i}, v{88 + 8 * hd + 2 * i + hf}, {src2}")
    stamp('t')
    a(f"""
    s_nop 0
    v_mul_f32 v156, s52, v152
    v_mul_f32 v157, s52, v153
    s_nop 0
    v_fmac_f32 v156, s53, v154
    v_fmac_f32 v157, s53, v155
    s_cmp_eq_u32 s{SW}, 0
    s_cbranch_scc1 L_red0
    ds_write_b64 v{VRW}, v[156:157]
    s_mov_b64 exec, 1
    ds_write_b32 v107, v108
    s_mov_b64 exec, -1
    s_cmp_ge_u32 s2, 28
    s_cbranch_scc1 L_fin
    s_branch L_final
    L_red0:
    v_lshlrev_b32 v1, 3, v0
    L_redw:
    ds_read_b32 v22, v{VRF}
    ds_read_b64 v[152:153], v1 offset:{L_RED + 512}
    ds_read_b64 v[154:155], v1 offset:{L_RED + 1024}
    ds_read_b64 v[158:159], v1 offset:{L_RED + 1536}
    s_waitcnt lgkmcnt(0)
    v_cmp_ne_u32 vcc, 0, v22
    s_cmp_eq_u64 vcc, -1
    s_cbranch_scc0 L_redw
    """)
    stamp('t')
    a(f"""
    v_add_f32 v156, v156, v152
    v_add_f32 v157, v157, v153
    v_add_f32 v154, v154, v158
    v_add_f32 v155, v155, v159
    v_add_f32 v160, v156, v154
    v_add_f32 v162, v157, v155
    """)
    if floc:
        a(f"""
        s_andn2_b64 exec, s[26:27], s[28:29]
        buffer_store_dwordx4 v[160:163], v{VFSP}, s[{SWS}:{SWS + 3}], s24 offen sc1
        s_mov_b64 exec, s[28:29]
        s_cbranch_execz L_noloc
        buffer_store_dwordx4 v[160:163], v{VFSP}, s[{SWS}:{SWS + 3}], s24 offen
        L_noloc:
        s_mov_b64 exec, -1
        """)
    else:
        a(f"""
        s_mov_b64 exec, s[26:27]
        buffer_store_dwordx4 v[160:163], v{VFSP}, s[{SWS}:{SWS + 3}], s24 offen sc1
        s_mov_b64 exec, -1
        """)
    stamp('t')
    a(f"""
    s_cmp_ge_u32 s2, 28
    s_cbranch_scc1 L_fin
    """)
    if fdelay:
        a(f"s_sleep {fdelay}")
    elif ack2:
        a("s_waitcnt vmcnt(0)")
    a(f"""
    L_final:
    s_lshl_b32 s52, s2, 13
    s_lshl_b32 s53, s{SW}, 11
    s_add_u32 s52, s52, s53
    s_add_u32 s52, s52, {W_FS}
    v_and_b32 v1, 7, v0
    v_lshlrev_b32 v1, 3, v1
    v_lshrrev_b32 v22, 5, v0
    v_lshl_add_u32 v23, v22, 2, v1
    s_lshl_b32 s53, s{SW}, 6
    s_add_u32 s53, s53, {L_RED + 4096}
    v_add_u32 v23, s53, v23
    v_add_u32 v107, {F_R2 - F_R}, v107
    v_add_u32 v{VRF}, {F_R2 - F_R}, v{VRF}
    s_mov_b32 s54, 0xff
    s_mov_b32 s55, 0xff
    s_mov_b32 s{SSPIN}, {SPIN}
    {"s_barrier" if ack2 else ""}
    L_poll2:
    buffer_load_dwordx4 v[128:131], v{VOG}, s[{SWS}:{SWS + 3}], s52 offen sc1
    buffer_load_dwordx4 v[132:135], v{VOG}, s[{SWS}:{SWS + 3}], s52 offen offset:1024 sc1
    s_sub_u32 s{SSPIN}, s{SSPIN}, 1
    s_cbranch_scc1 L_poll2_done
    s_waitcnt vmcnt(0)
    v_cmp_eq_u32 s[24:25], s{STAG}, v129
    v_cmp_eq_u32 vcc, s{STAG}, v131
    s_and_b64 s[24:25], s[24:25], vcc
    v_cmp_eq_u32 vcc, s{STAG}, v133
    s_and_b64 s[24:25], s[24:25], vcc
    v_cmp_eq_u32 vcc, s{STAG}, v135
    s_and_b64 s[24:25], s[24:25], vcc
    s_cmp_eq_u64 s[24:25], -1
    s_cbranch_scc1 L_poll2_done
    {f"s_sleep {psleep}" if psleep else ""}
    s_branch L_poll2
    L_poll2_done:
    s_waitcnt vmcnt(0)
    """)
    stamp()
    a(f"""
    v_add_f32 v140, v128, v132
    v_add_f32 v141, v130, v134
    s_nop 1
    v_permlane32_swap_b32 v140, v141
    s_nop 0
    v_add_f32 v140, v140, v141
    s_nop 0
    v_mov_b32 v141, v140
    s_nop 1
    v_permlane16_swap_b32 v140, v141
    s_nop 0
    v_add_f32 v140, v140, v141
    s_nop 1
    v_add_f32_dpp v140, v140, v140 row_ror:8 {DPPM}
    s_mov_b64 exec, s[54:55]
    ds_write_b32 v23, v140
    s_cmp_eq_u32 s{SW}, 0
    s_cbranch_scc1 L_fin0
    s_mov_b64 exec, 1
    ds_write_b32 v107, v108
    s_branch L_fin
    L_fin0:
    s_mov_b64 exec, -1
    s_lshl_b32 s52, s2, 5
    v_lshlrev_b32 v22, 2, v0
    L_finw:
    ds_read_b32 v23, v{VRF}
    ds_read_b64 v[140:141], v1 offset:{L_RED + 4096}
    ds_read_b64 v[142:143], v1 offset:{L_RED + 4096 + 64}
    ds_read_b64 v[144:145], v1 offset:{L_RED + 4096 + 128}
    ds_read_b64 v[146:147], v1 offset:{L_RED + 4096 + 192}
    s_waitcnt lgkmcnt(0)
    v_cmp_ne_u32 vcc, 0, v23
    s_cmp_eq_u64 vcc, -1
    s_cbranch_scc0 L_finw
    """)
    stamp('t')
    a(f"""
    v_add_f32 v140, v140, v142
    v_add_f32 v141, v141, v143
    v_add_f32 v144, v144, v146
    v_add_f32 v145, v145, v147
    v_add_f32 v140, v140, v144
    v_add_f32 v141, v141, v145
    v_cvt_pk_bf16_f32 v140, v140, v141
    s_mov_b64 exec, 0xff
    buffer_store_dword v140, v22, s[{SOUT}:{SOUT + 3}], s52 offen
    s_cmp_lg_u32 s2, 0
    s_cbranch_scc1 L_fin
    s_mov_b64 exec, 1
    v_mov_b32 v2, 0
    v_mov_b32 v3, s{STAG}
    buffer_store_dword v3, v2, s[{SWS}:{SWS + 3}], 0 offen sc1
    L_fin:
    s_mov_b64 exec, -1
    """)
    stamp()
    if cnt and stamps:
        a(f"""
        s_waitcnt lgkmcnt(0)
        s_sub_u32 s52, {SPIN}, s36
        s_add_u32 s{STS + 8}, s{STS}, s52
        s_mov_b32 s{STS + 9}, s{STS + 1}
        s_sub_u32 s52, {SPIN}, s37
        s_add_u32 s{STS + 10}, s{STS}, s52
        s_mov_b32 s{STS + 11}, s{STS + 1}
        """)
    flush_stamps(200, 0, 11, 0)
    a("s_endpgm")

    nst[0] = 1
    SJ, SOF = 66, 67
    VK0, VK1, VV0, VV1, VWQ, VWO, VPA, VPV, VFQ = 4, 5, 6, 7, 8, 9, 10, 11, 12
    a(f"""
    L_loader:
    s_setprio {lprio}
    s_sub_u32 s{SJ}, s{SW}, 4
    v_lshrrev_b32 v1, 3, v0
    v_lshlrev_b32 v2, 13, v1
    v_and_b32 v3, 7, v0
    v_lshrrev_b32 v13, 4, v0
    v_and_b32 v13, 1, v13
    v_lshlrev_b32 v13, 1, v13
    v_xor_b32 v3, v3, v13
    s_and_b32 s52, s{SJ}, 1
    s_lshl_b32 s52, s52, 2
    v_xor_b32 v3, s52, v3
    v_lshl_add_u32 v{VWQ}, v3, 4, v2
    s_lshr_b32 s53, s{SS}, 3
    s_mul_i32 s53, s53, {112 * 8192}
    s_lshl_b32 s54, s{SH}, 10
    s_add_u32 s53, s53, s54
    s_and_b32 s54, s{SS}, 7
    s_lshl_b32 s54, s54, 7
    s_add_u32 s53, s53, s54
    s_lshl_b32 s54, s{SJ}, 16
    s_add_u32 s{SOF}, s53, s54
    s_lshl_b32 s56, s{SJ}, 10
    s_add_u32 s57, s56, {L_WQ}
    s_mov_b32 m0, s57
    v_lshrrev_b32 v1, 5, v0
    v_and_b32 v2, 31, v0
    v_xor_b32 v3, v2, v1
    s_lshl_b32 s52, s{SJ}, 1
    v_xor_b32 v3, s52, v3
    v_lshlrev_b32 v3, 4, v3
    v_lshl_add_u32 v{VK0}, v1, 9, v3
    v_xor_b32 v{VK1}, 128, v{VK0}
    s_waitcnt lgkmcnt(0)
    """)
    srd(SWQ, 10, 11, 3670016)
    n = [0]
    written = [0]
    NTOT = 40
    def depth():
        return D if n[0] < 20 + D else D2
    def prog(cnt):
        a(f"""
        v_mov_b32 v{VPV}, {cnt}
        s_mov_b64 exec, 1
        ds_write_b32 v{VPA}, v{VPV}
        s_mov_b64 exec, -1
        """)
        written[0] = cnt
    landed = [0]
    def lwarm_setup():
        srd(SWS, 18, 19, WS_BYTES)
        a(f"""
        s_lshl_b32 s52, s{SH}, 17
        s_lshl_b32 s53, s{SRB}, 14
        s_add_u32 s52, s52, s53
        s_lshl_b32 s53, s{SJ}, 12
        s_add_u32 s52, s52, s53
        s_lshl_b32 s53, s{SCB}, 10
        s_add_u32 s52, s52, s53
        s_add_u32 s72, s52, {W_OS}
        v_lshlrev_b32 v13, 4, v0
        s_lshl_b32 s53, s2, 13
        s_lshl_b32 s54, s{SH}, 10
        s_add_u32 s53, s53, s54
        s_add_u32 s73, s53, {W_FS}
        s_cmp_lt_u32 s2, 28
        s_cselect_b32 s73, s73, {OOB:#x}
        s_cmp_eq_u32 s{SJ}, 0
        s_cselect_b32 s73, s73, {OOB:#x}
        """)
    def lwarm():
        a(f"buffer_load_dwordx4 v[16:19], v13, s[{SWS}:{SWS + 3}], s72 offen")
        if floc:
            a(f"buffer_load_dwordx4 v[24:27], v13, s[{SWS}:{SWS + 3}], s73 offen")
    def throttle(d):
        if n[0] - landed[0] >= d:
            a(f"s_waitcnt vmcnt({d - 1})")
            landed[0] = n[0] - d + 1
            c4 = landed[0] // 4 * 4
            if c4 > written[0]:
                prog(c4)
    for i in range(4):
        if i == 3:
            a(f"s_cmp_lt_u32 s{SJ}, 2\ns_cselect_b32 s{SOF}, s{SOF}, {OOB:#x}")
        throttle(D)
        a(f"buffer_load_dwordx4 v{VWQ}, s[{SWQ}:{SWQ + 3}], s{SOF} offen nt lds")
        n[0] += 1
        if i < 3:
            a(f"s_add_u32 m0, m0, 4096\ns_add_u32 s{SOF}, s{SOF}, 262144")
        if i == 0:
            srd_off(SK, 6, 7, 68, KVN)
    def setup_rest():
        srd_off(SV, 8, 9, 68, KVN)
        srd(SWO, 12, 13, 3670016)
        a(f"""
        v_lshrrev_b32 v1, 5, v0
        v_and_b32 v2, 31, v0
        v_lshlrev_b32 v3, 1, v1
        v_xor_b32 v3, v3, v2
        s_and_b32 s52, s{SJ}, 1
        s_lshl_b32 s52, s52, 2
        v_xor_b32 v3, s52, v3
        v_lshlrev_b32 v3, 4, v3
        v_lshl_add_u32 v{VV0}, v1, 9, v3
        v_xor_b32 v{VV1}, 128, v{VV0}
        v_lshrrev_b32 v1, 4, v0
        v_mul_u32_u24 v1, 896, v1
        v_and_b32 v2, 15, v0
        v_lshl_add_u32 v{VWO}, v2, 4, v1
        v_cmp_le_u32 vcc, 8, v2
        s_cmp_eq_u32 s{SCB}, 3
        s_cselect_b64 s[52:53], vcc, 0
        v_mov_b32 v1, {OOB:#x}
        v_cndmask_b32 v{VWO}, v{VWO}, v1, s[52:53]
        s_lshl_b32 s52, s{SJ}, 2
        s_add_u32 s52, s52, {F_PROG}
        v_mov_b32 v{VPA}, s52
        v_and_b32 v1, 3, v0
        v_lshlrev_b32 v1, 2, v1
        v_add_u32 v{VFQ}, {F_Q}, v1
        """)
        lwarm_setup()
    if bar4:
        a("s_barrier")
    def kv_first():
        if rho:
            a(f"s_mov_b32 s70, s{SS}")
            if phase:
                a(f"s_mul_i32 s71, s{SH}, {phase * 131072}\ns_and_b32 s71, s71, 0x1fffff\ns_add_u32 s71, s71, s56")
            else:
                a("s_mov_b32 s71, s56")
            a(f"s_lshl_b32 s{SOF}, s70, 12\ns_add_u32 s{SOF}, s{SOF}, s71")
        else:
            a(f"s_mov_b32 s{SOF}, s56")
    def kv_next():
        if rho:
            a(f"""
            s_add_u32 s70, s70, {rho}
            s_and_b32 s70, s70, 31
            s_add_u32 s71, s71, 131072
            {"s_and_b32 s71, s71, 0x1fffff" if phase else ""}
            s_lshl_b32 s{SOF}, s70, 12
            s_add_u32 s{SOF}, s{SOF}, s71
            """)
        else:
            a(f"s_add_u32 s{SOF}, s{SOF}, {KVSTEP}")
    a("s_mov_b32 m0, s56")
    kv_first()
    for i in range(16):
        throttle(D)
        a(f"buffer_load_dwordx4 v{VK0 + (i & 1)}, s[{SK}:{SK + 3}], s{SOF} offen nt lds")
        n[0] += 1
        a("s_add_u32 m0, m0, 4096")
        kv_next()
        if n[0] == D:
            setup_rest()
            if not bar4:
                a("s_barrier")
            stamp()
            if early4:
                a(f"s_waitcnt vmcnt({D - 4})")
                landed[0] = 4
                prog(4)
        else:
            a("s_nop 0")
    a(f"s_add_u32 m0, s56, {L_V}")
    kv_first()
    for i in range(16):
        throttle(D2)
        a(f"buffer_load_dwordx4 v{VV0 + (i & 1)}, s[{SV}:{SV + 3}], s{SOF} offen nt lds")
        n[0] += 1
        a("s_add_u32 m0, m0, 4096")
        kv_next()
    stamp()
    a(f"""
    s_lshl_b32 s52, s{SH}, 9
    s_lshl_b32 s53, s{SRB}, 5
    s_add_u32 s52, s52, s53
    s_lshl_b32 s53, s{SJ}, 2
    s_add_u32 s52, s52, s53
    s_mul_i32 s52, s52, 896
    s_lshl_b32 s53, s{SCB}, 8
    s_add_u32 s{SOF}, s52, s53
    s_add_u32 m0, s56, {L_WO}
    """)
    lds_wait(VFQ, 1, "v_cmp_ne_u32 vcc, 0, v1", "lfq")
    for i in range(4):
        throttle(D2)
        a(f"buffer_load_dwordx4 v{VWO}, s[{SWO}:{SWO + 3}], s{SOF} offen nt lds")
        n[0] += 1
        if i < 3:
            step = 16 * 896 if i != 1 else 256 * 896 - 16 * 896
            a(f"s_add_u32 m0, m0, 4096\ns_add_u32 s{SOF}, s{SOF}, {step}")
    extra = 0
    if warm == 4:
        lwarm()
        extra = 2 if floc else 1
    stamp()
    thr = written[0] + 4
    a("s_setprio 3\ns_mov_b64 exec, 1")
    while thr <= NTOT:
        rv = VPV if (thr // 4) & 1 else 14
        a(f"v_mov_b32 v{rv}, {thr}")
        a(f"s_waitcnt vmcnt({NTOT - thr + extra})")
        a(f"ds_write_b32 v{VPA}, v{rv}")
        if thr == 36 and tail:
            stamp()
        thr += 4
    a("s_mov_b64 exec, -1")
    stamp()
    if dirty:
        srd(SWS, 18, 19, WS_BYTES)
        a(f"""
        s_lshl_b32 s52, s2, 2
        s_add_u32 s52, s52, s{SJ}
        s_mul_i32 s52, s52, {dirty * 1024}
        s_add_u32 s52, s52, {5 << 20}
        v_lshlrev_b32 v13, 4, v0
        """)
        for i in range(dirty):
            a(f"buffer_store_dwordx4 v[16:19], v13, s[{SWS}:{SWS + 3}], s52 offen")
            a("s_add_u32 s52, s52, 1024")
    flush_stamps(20, 11, 4, 4)
    a("s_endpgm")
    a("L_end:")
    a("s_endpgm")
    a('.section .rodata,"a"')
    a(".p2align 6")
    out = HEADER + f"; @launch grid=(256,1,1) block=(512,1,1) lds={LDS_BYTES}\n" + a.text() + kernel_desc(k, 256, 102)
    return out

if __name__ == "__main__":
    kw = {}
    for x in sys.argv[2:]:
        key, val = x.lstrip("-").split("=") if "=" in x else (x.lstrip("-"), "1")
        kw[key] = int(val)
    open(sys.argv[1], "w").write(gen(**kw))
```

```python
import struct, sys
from asmlib import *

def f2u(x):
    return struct.unpack("<I", struct.pack("<f", x))[0]

L_K, L_V, L_WQ, L_Q, L_S, L_FL = 0, 65536, 131072, 147456, 148480, 149504
L_WO = L_WQ
L_RED = 0
LDS_BYTES = 149760
F_PROG, F_Q, F_M, F_P, F_R, L_TAG, F_R2, F_L = L_FL, L_FL + 16, L_FL + 32, L_FL + 48, L_FL + 64, L_FL + 80, L_FL + 96, L_FL + 112
L_P, L_MX = L_S, L_S + 512
W_QA, W_OS, W_FS, W_QB, W_TS = 65536, 262144, 1310720, 1572864, 4 << 20
WS_BYTES = 8 << 20
TAG_INC = 0x9E3779B1
SPIN = 200000
OOB = 0x40000000

OVERVIEW = """;
;           workgroups of a head as 16-byte granules {4 x 24-bit value, tag}.  Copy A is stored plainly (read through
;   o:      granules {o head0, o head1, max or sum, tag}; consumer (rb = s >> 2, wave) merges the 32 partial results of
;
"""

def gen(stamps=False, D=8, force_remote=False, warm=4, sleep=1, dbg=-1, qa=1, NA=3, qack=0, pretouch=0, ack2=1, D2=8, qprog=0, early4=1, cnt=0, xq=0, bar4=1, lprio=0, cprio=3, bgon=1, qjunk=1, ack1=1, wpol=0, wpos=6, tail=0, specv=1, rsleep=0, fdelay=0, wat=40, wofirst=0, dirty=0, ilv=1, phase=0, floc=1, qwarm=1, psleep=0, remap=0, rho=11, pad=0, align=0, ffuse=1, locmerge=1):
    assert 5 <= D <= 20
    D2 = D2 or D
    KVN = (2097152 if rho else 1970176) if ilv else 65536
    KVSTEP = 131072 if ilv else 4096
    a = Asm()
    k = NAME + "_kernel"
    SH, SS, SW, STAG = 20, 21, 22, 23
    SK, SV, SWQ, SX, SWO, SWS, SOUT = 24, 28, 32, 36, 40, 44, 48
    MODD, MHI, MAA = 58, 60, 62
    SXCC, SLOC = 64, 65
    SP = 66
    SSPIN, SRB, SCB = 74, 75, 76
    SOG = 77
    STS = 78
    SOSP, SQP = (56, 57)
    nst = [0]
    def stamp(kind="n"):
        if kind == "e" and tail:
            return
        if kind == "t" and not tail:
            return
        if stamps:
            a(f"s_memrealtime s[{STS + 2 * nst[0]}:{STS + 2 * nst[0] + 1}]")
            nst[0] += 1
    def flush_stamps(vtmp, base=0, cnt=12, wave=0):
        if not stamps:
            return
        if dbg >= 0:
            lb = a.label("dbg")
            a(f"""
            s_waitcnt lgkmcnt(0)
            s_cmp_lg_u32 s2, {dbg}
            s_cbranch_scc1 {lb}
            s_cmp_lg_u32 s{SW}, {wave}
            s_cbranch_scc1 {lb}
            s_mov_b32 s52, s16
            s_and_b32 s53, s17, 0xffff
            s_mov_b32 s54, 256
            s_mov_b32 s55, 0x20000
            s_mov_b64 exec, 1
            """)
            for i in range(cnt):
                a(f"s_sub_u32 s56, s{STS + 2 * (i + 1)}, s{STS}")
                a(f"v_mov_b32 v{vtmp}, s56")
                a(f"v_mov_b32 v{vtmp + 2}, {4 * (base + i)}")
                a(f"buffer_store_dword v{vtmp}, v{vtmp + 2}, s[52:55], 0 offen")
                a("s_nop 1")
            a(f"{lb}:")
            a("s_mov_b64 exec, -1")
            return
        a(f"""
        s_waitcnt lgkmcnt(0)
        s_mov_b32 s{SWS}, s18
        s_and_b32 s{SWS + 1}, s19, 0xffff
        s_mov_b32 s{SWS + 2}, {WS_BYTES}
        s_mov_b32 s{SWS + 3}, 0x20000
        s_lshl_b32 s52, s2, 3
        s_add_u32 s52, s52, s{SW}
        s_lshl_b32 s52, s52, 7
        s_add_u32 s52, s52, {W_TS}
        s_mov_b64 exec, 1
        """)
        for i in range(12):
            a(f"v_mov_b32 v{vtmp}, s{STS + 2 * i}")
            a(f"v_mov_b32 v{vtmp + 1}, s{STS + 2 * i + 1}")
            a(f"v_mov_b32 v{vtmp + 2}, {8 * i}")
            a(f"buffer_store_dwordx2 v[{vtmp}:{vtmp + 1}], v{vtmp + 2}, s[{SWS}:{SWS + 3}], s52 offen")
            a("s_nop 1")
        a("s_mov_b64 exec, -1")
    def lds_wait(addr_v, tmp, cmp, name, slp=None, off=0):
        slp = sleep if slp is None else slp
        lb = a.label(name)
        a(f"""
        {lb}:
        ds_read_b32 v{tmp}, v{addr_v} offset:{off}
        s_waitcnt lgkmcnt(0)
        {cmp}
        s_cmp_eq_u64 vcc, -1
        """)
        if slp:
            a(f"""
            s_cbranch_scc1 {lb}_ok
            s_sleep {slp}
            s_branch {lb}
            {lb}_ok:
            """)
        else:
            a(f"s_cbranch_scc0 {lb}")
    def srd(reg, lo, hi, size):
        a(f"""
        s_mov_b32 s{reg}, s{lo}
        s_and_b32 s{reg + 1}, s{hi}, 0xffff
        s_mov_b32 s{reg + 2}, {size}
        s_mov_b32 s{reg + 3}, 0x20000
        """)
    def srd_off(reg, lo, hi, off, size):
        a(f"""
        s_add_u32 s{reg}, s{lo}, s{off}
        s_addc_u32 s{reg + 1}, s{hi}, 0
        s_and_b32 s{reg + 1}, s{reg + 1}, 0xffff
        s_mov_b32 s{reg + 2}, {size}
        s_mov_b32 s{reg + 3}, 0x20000
        """)
    def swapb(op, reg, tmp, kinds):
        for kind in kinds:
            a(f"v_mov_b32 v{tmp}, v{reg}")
            a("s_nop 1")
            a(f"v_permlane{kind}_swap_b32 v{reg}, v{tmp}")
            a("s_nop 0")
            a(f"{op} v{reg}, v{reg}, v{tmp}")
    DPPM = "row_mask:0xf bank_mask:0xf"

    a(f"""
    .amdgcn_target "amdgcn-amd-amdhsa--gfx950"
    .text
    .globl {k}
    .p2align 8
    .type {k},@function
    {k}:
    s_cmp_ge_u32 s2, 256
    s_cbranch_scc1 L_end
    s_load_dwordx16 s[4:19], s[0:1], 0
    """)
    for _ in range(pad):
        a("s_nop 0")
    if stamps:
        for i in range(78, 102):
            a(f"s_mov_b32 s{i}, 0")
    stamp()
    a(f"""
    v_lshrrev_b32 v1, 6, v0
    {"s_lshr_b32" if remap else "s_and_b32"} s{SH}, s2, {5 if remap else 7}
    {"s_and_b32" if remap else "s_lshr_b32"} s{SS}, s2, {31 if remap else 3}
    v_readfirstlane_b32 s{SW}, v1
    v_and_b32 v0, 63, v0
    s_lshr_b32 s{SRB}, s{SS}, 2
    s_and_b32 s{SCB}, s{SS}, 3
    s_lshl_b32 s52, s{SH}, 25
    s_add_u32 s68, s52, 31457280
    s_cmp_ge_u32 s{SW}, 4
    s_cbranch_scc1 L_loader
    """)

    VN, VG = 2, 3
    VPRA, VFQA, VFSA, VOG = 4, 5, 6, 7
    XA = 8
    VZ = 180
    VOP, VQPO = 184, 185
    a(f"""
    s_setprio {cprio}
    s_getreg_b32 s{SXCC}, hwreg(HW_REG_XCC_ID, 0, 4)
    v_and_b32 v{VN}, 15, v0
    v_lshrrev_b32 v{VG}, 4, v0
    s_lshr_b32 s52, s{SS}, 3
    s_mul_i32 s52, s52, 224
    v_lshl_add_u32 v1, v{VG}, 4, s52
    v_lshl_add_u32 v22, v{VG}, 3, s52
    v_mov_b32 v{VZ}, 0
    v_lshrrev_b32 v23, 3, v0
    v_lshlrev_b32 v23, 12, v23
    v_and_b32 v26, 7, v0
    v_lshl_add_u32 v{VOP}, v26, 4, v23
    v_lshlrev_b32 v{VQPO}, 2, v0
    v_lshlrev_b32 v{VOG}, 4, v0
    s_lshl_b32 s53, s{SH}, 17
    s_lshl_b32 s54, s{SW}, 15
    s_add_u32 s53, s53, s54
    s_lshl_b32 s54, s{SS}, 7
    s_add_u32 s53, s53, s54
    s_add_u32 s{SOSP}, s53, {W_OS}
    s_lshl_b32 s53, s{SH}, 13
    s_lshr_b32 s54, s{SS}, 3
    s_lshl_b32 s54, s54, 11
    s_add_u32 s53, s53, s54
    s_and_b32 s54, s{SS}, 7
    s_lshl_b32 s54, s54, 8
    s_add_u32 s53, s53, s54
    s_lshl_b32 s54, s{SW}, 6
    s_add_u32 s{SQP}, s53, s54
    s_cmp_lg_u32 s{SW}, 0
    s_cbranch_scc1 L_noinit
    v_lshlrev_b32 v27, 2, v0
    v_add_u32 v27, {L_FL}, v27
    s_mov_b64 exec, 0xffffffff
    ds_write_b32 v27, v{VZ}
    s_mov_b64 exec, -1
    L_noinit:
    s_waitcnt lgkmcnt(0)
    """)
    srd(SX, 4, 5, 896)
    a(f"""
    s_load_dword s{STAG}, s[18:19], 0
    buffer_load_dwordx4 v[{XA}:{XA + 3}], v1, s[{SX}:{SX + 3}], 0 offen
    buffer_load_dwordx4 v[{XA + 4}:{XA + 7}], v1, s[{SX}:{SX + 3}], 0 offen offset:64
    buffer_load_dwordx4 v[{XA + 8}:{XA + 11}], v1, s[{SX}:{SX + 3}], 0 offen offset:128
    buffer_load_dwordx2 v[{XA + 12}:{XA + 13}], v22, s[{SX}:{SX + 3}], 0 offen offset:192
    s_barrier
    """)
    srd(SWS, 18, 19, WS_BYTES)
    srd(SOUT, 14, 15, 896)
    nlater = 0
    if qa and qwarm:
        a(f"""
        s_add_u32 s52, s{SQP}, {W_QA}
        s_mov_b64 exec, 0xf
        buffer_load_dwordx4 v[176:179], v{VOG}, s[{SWS}:{SWS + 3}], s52 offen
        s_mov_b64 exec, -1
        """)
        nlater += 1
    if warm == 2:
        a(f"buffer_store_dwordx4 v[{VZ}:{VZ + 3}], v{VOP}, s[{SWS}:{SWS + 3}], s{SOSP} offen")
        nlater += 1
    if pretouch:
        a(f"""
        s_add_u32 s52, s8, s68
        s_addc_u32 s53, s9, 0
        s_lshl_b32 s54, s{SH}, 9
        s_lshl_b32 s55, s{SRB}, 5
        s_add_u32 s54, s54, s55
        s_mul_i32 s54, s54, 896
        s_add_u32 s54, s12, s54
        s_addc_u32 s55, s13, 0
        s_cmp_eq_u32 s{SW}, 1
        s_cselect_b32 s{SV}, s52, s14
        s_cselect_b32 s{SV + 1}, s53, s15
        s_cmp_eq_u32 s{SW}, 2
        s_cselect_b32 s{SV}, s54, s{SV}
        s_cselect_b32 s{SV + 1}, s55, s{SV + 1}
        s_and_b32 s{SV + 1}, s{SV + 1}, 0xffff
        s_mov_b32 s{SV + 2}, 4
        s_mov_b32 s{SV + 3}, 0x20000
        s_mov_b64 exec, 1
        buffer_load_dword v176, v{VZ}, s[{SV}:{SV + 3}], 0 offen nt
        s_mov_b64 exec, -1
        """)
        nlater += 1
    a(f"""
    s_mov_b32 s{MODD}, 0xffff0000
    s_mov_b32 s{MODD + 1}, 0xffff0000
    s_mov_b32 s{MHI}, 0
    s_mov_b32 s{MHI + 1}, -1
    s_mov_b32 s{MAA}, 0xaaaaaaaa
    s_mov_b32 s{MAA + 1}, 0xaaaaaaaa
    v_and_b32 v1, 3, v0
    v_lshlrev_b32 v1, 2, v1
    v_add_u32 v{VPRA}, {F_PROG}, v1
    v_add_u32 v{VFQA}, {F_Q}, v1
    v_add_u32 v{VFSA}, {F_M}, v1
    """)
    VWA, VWA2 = 24, 25
    a(f"""
    v_lshrrev_b32 v1, 2, v{VN}
    v_and_b32 v27, 3, v{VN}
    v_lshl_add_u32 v22, v{VG}, 3, v1
    v_lshlrev_b32 v22, 7, v22
    v_lshl_add_u32 v22, v27, 3, v22
    v_lshrrev_b32 v23, 1, v1
    v_and_b32 v26, 1, v{VG}
    v_lshl_add_u32 v26, v26, 1, v23
    v_xor_b32 v26, s{SW}, v26
    v_lshl_add_u32 v22, v26, 5, v22
    v_add_u32 v{VWA}, {L_WQ}, v22
    v_lshl_add_u32 v22, v{VG}, 2, v1
    v_lshlrev_b32 v22, 7, v22
    v_lshl_add_u32 v22, v27, 3, v22
    v_lshrrev_b32 v26, 1, v{VG}
    v_lshl_add_u32 v26, v26, 1, v23
    v_xor_b32 v26, s{SW}, v26
    v_lshl_add_u32 v22, v26, 5, v22
    v_add_u32 v{VWA2}, {L_WQ + 96 * 128}, v22
    s_lshl_b32 s52, s{SH}, 13
    s_lshl_b32 s53, s{SW}, 9
    s_add_u32 s52, s52, s53
    s_add_u32 s68, s52, {W_QA if qa else W_QB}
    s_add_u32 s69, s68, 4096
    v_lshrrev_b32 v1, 5, v0
    v_and_b32 v22, 31, v0
    v_lshlrev_b32 v22, 4, v22
    v_lshl_add_u32 v186, v1, 11, v22
    v_and_b32 v22, 3, v0
    v_lshrrev_b32 v187, v22, s{SXCC}
    v_and_b32 v187, 1, v187
    v_lshlrev_b32 v187, 8, v187
    s_mov_b32 s24, 0x05030201
    s_mov_b32 s25, 0x06050302
    s_mov_b32 s26, 0x07060503
    s_mov_b32 s27, 0xfffffe00
    s_lshl_b32 s52, s{SH}, 17
    s_lshl_b32 s53, s{SRB}, 14
    s_add_u32 s52, s52, s53
    s_lshl_b32 s53, s{SW}, 12
    s_add_u32 s52, s52, s53
    s_add_u32 s{SOG}, s52, {W_OS}
    """)
    lds_wait(VPRA, 1, "v_cmp_le_u32 vcc, 4, v1", "wq")
    stamp('e')
    WB = 28
    for t in range(3):
        for u in range(2):
            r = WB + 4 * t + 2 * u
            a(f"ds_read_b64_tr_b16 v[{r}:{r + 1}], v{VWA} offset:{t * 4096 + u * 512}")
    a(f"ds_read_b64_tr_b16 v[{WB + 12}:{WB + 13}], v{VWA2}")
    QC, QC2 = 44, 48
    a(f"s_waitcnt vmcnt({nlater}) lgkmcnt(0)")
    a(f"v_mfma_f32_16x16x16_bf16 v[{QC2}:{QC2 + 3}], v[{XA + 12}:{XA + 13}], v[{WB + 12}:{WB + 13}], 0")
    for t in range(3):
        cin = "0" if t == 0 else f"v[{QC}:{QC + 3}]"
        a(f"v_mfma_f32_16x16x32_bf16 v[{QC}:{QC + 3}], v[{XA + 4 * t}:{XA + 4 * t + 3}], v[{WB + 4 * t}:{WB + 4 * t + 3}], {cin}")
    a(f"""
    s_add_u32 s{STAG}, s{STAG}, {TAG_INC:#x}
    s_or_b32 s{STAG}, s{STAG}, 1
    s_add_u32 s52, s{SQP}, {W_QA}
    s_add_u32 s53, s{SQP}, {W_QB}
    s_nop 4
    v_add_f32 v56, v{QC}, v{QC2}
    v_add_u32 v56, 0x100, v56
    v_and_or_b32 v56, v56, s27, v187
    v_mov_b32 v51, s{STAG}
    s_nop 0
    v_mov_b32_dpp v52, v56 quad_perm:[0,0,0,0] {DPPM}
    v_mov_b32_dpp v53, v56 quad_perm:[1,1,1,1] {DPPM}
    v_mov_b32_dpp v54, v56 quad_perm:[2,2,2,2] {DPPM}
    v_mov_b32_dpp v55, v56 quad_perm:[3,3,3,3] {DPPM}
    v_perm_b32 v48, v53, v52, s24
    v_perm_b32 v49, v54, v53, s25
    v_perm_b32 v50, v55, v54, s26
    s_mov_b64 exec, 0x1111
    """)
    if qa:
        a(f"buffer_store_dwordx4 v[48:51], v{VQPO}, s[{SWS}:{SWS + 3}], s52 offen")
    a(f"""
    buffer_store_dwordx4 v[48:51], v{VQPO}, s[{SWS}:{SWS + 3}], s53 offen sc1
    s_mov_b64 exec, -1
    """)
    if qack or not qa:
        a("s_waitcnt vmcnt(0)")
    if qprog:
        lds_wait(VPRA, 1, f"v_cmp_le_u32 vcc, {qprog}, v1", "qp")
    stamp('e')
    QG = 52
    VQA, VKA, VVA = 26, 28, 36
    VPW, VMW, VMR, VPA = 32, 33, 35, 27
    VQ, VKB, VC = 72, 104, 168
    VVB = 192
    VP, VONE, VO, VLA, VOUT = 52, 40, 144, 160, 124
    SBG, STHR = 73, 72
    M2 = 30
    def late_warm():
        pol = ["", " sc1", " nt", " sc1 nt"][wpol]
        a(f"""
        s_lshl_b32 s52, s{SCB}, 10
        s_add_u32 s52, s52, s{SOG}
        buffer_load_dwordx4 v[176:179], v{VOG}, s[{SWS}:{SWS + 3}], s52 offen{pol}
        """)
    def addr_setup():
        a(f"""
        v_and_b32 v1, 1, v{VN}
        v_lshlrev_b32 v22, 9, v1
        v_lshl_add_u32 v22, v{VG}, 4, v22
        v_add_u32 v{VQA}, {L_Q}, v22
        v_lshlrev_b32 v22, 8, v1
        v_lshl_add_u32 v22, v{VG}, 4, v22
        v_add_u32 v{VPA}, {L_P}, v22
        v_xor_b32 v1, v{VG}, v{VN}
        v_lshlrev_b32 v1, 4, v1
        v_lshl_add_u32 v1, v{VN}, 9, v1
        s_lshl_b32 s52, s{SW}, 14
        v_add_u32 v{VKA}, s52, v1
        """)
        for t in range(1, 4):
            a(f"v_xor_b32 v{VKA + t}, {t << 6}, v{VKA}")
        a(f"""
        v_lshrrev_b32 v1, 2, v{VN}
        v_and_b32 v22, 3, v{VN}
        v_lshl_add_u32 v23, v{VG}, 3, v1
        v_lshlrev_b32 v23, 9, v23
        v_lshl_add_u32 v23, v22, 3, v23
        v_and_b32 v22, 1, v{VG}
        v_lshl_add_u32 v1, v22, 2, v1
        s_lshl_b32 s52, s{SW}, 2
        v_xor_b32 v1, s52, v1
        v_lshl_add_u32 v23, v1, 5, v23
        v_add_u32 v{VVA}, {L_V}, v23
        """)
        for b in range(1, 4):
            a(f"v_xor_b32 v{VVA + b}, {b << 5}, v{VVA}")
        a(f"""
        v_lshrrev_b32 v1, 5, v0
        v_and_b32 v22, 31, v0
        v_lshlrev_b32 v23, 8, v1
        v_lshl_add_u32 v23, v22, 1, v23
        s_lshl_b32 s52, s{SW}, 6
        s_add_u32 s52, s52, {L_P}
        v_add_u32 v{VPW}, s52, v23
        s_lshl_b32 s52, s{SW}, 2
        s_add_u32 s52, s52, {L_MX}
        v_lshl_add_u32 v{VMW}, v1, 4, s52
        v_mov_b32 v{VMR}, {L_MX}
        s_lshl_b32 s52, s{SW}, 11
        s_add_u32 s52, s52, {L_WO}
        v_lshl_add_u32 v34, v0, 2, s52
        s_mov_b32 s{M2}, 0xcccccccc
        s_mov_b32 s{M2 + 1}, 0xcccccccc
        """)
        for r in range(4):
            a(f"v_mov_b32 v{VONE + r}, 0x3f803f80")
    def task(kk):
        if kk == 0:
            for blk in range(2):
                for t in range(8):
                    r = VKB + blk * 32 + 4 * t
                    a(f"ds_read_b128 v[{r}:{r + 3}], v{VKA + (t & 3)} offset:{blk * 8192 + (t >> 2) * 256}")
                if blk == 0:
                    a("s_waitcnt lgkmcnt(4)")
        else:
            j = kk - 1
            for b in range(4):
                for u in range(2):
                    r = VVB + 16 * j + 4 * b + 2 * u
                    a(f"ds_read_b64_tr_b16 v[{r}:{r + 1}], v{VVA + b} offset:{j * 16384 + u * 2048}")
        a(f"s_mov_b32 s{SBG}, {kk + 1}")
        a(f"s_mov_b32 s{STHR}, {24 + 4 * kk}")
    def bg(loop):
        lb = a.label("bg")
        a(f"""
        {lb}:
        s_cmp_ge_u32 s{SBG}, 5
        s_cbranch_scc1 {lb}_x
        ds_read_b32 v1, v{VPRA}
        s_waitcnt lgkmcnt(0)
        v_cmp_le_u32 vcc, s{STHR}, v1
        s_cmp_eq_u64 vcc, -1
        s_cbranch_scc0 {lb}_x
        """)
        for kk in range(5):
            if kk < 4:
                a(f"s_cmp_lg_u32 s{SBG}, {kk}\ns_cbranch_scc1 {lb}_t{kk}")
            task(kk)
            a(f"s_branch {lb if loop else lb + '_x'}")
            if kk < 4:
                a(f"{lb}_t{kk}:")
        a(f"{lb}_x:")
    def ensure(kk, slp=None):
        lb = a.label("ens")
        a(f"s_cmp_gt_u32 s{SBG}, {kk}\ns_cbranch_scc1 {lb}")
        lds_wait(VPRA, 1, f"v_cmp_le_u32 vcc, s{STHR}, v1", "e", slp=slp)
        task(kk)
        a(f"{lb}:")

    a(f"""
    s_mov_b32 s{SSPIN}, {SPIN}
    s_mov_b32 s24, 0
    s_mov_b32 s{SBG}, 0
    s_lshl_b32 s{STHR}, s{SW}, 2
    s_add_u32 s{STHR}, s{STHR}, 8
    """)
    def qloads():
        for qi, sr_ in enumerate((68, 69)):
            a(f"buffer_load_dwordx4 v[{QG + 4 * qi}:{QG + 4 * qi + 3}], v186, s[{SWS}:{SWS + 3}], s{sr_} offen sc1")
    qloads()
    addr_setup()
    a("s_branch L_pollq_issued")
    a("L_pollq:")
    qloads()
    a("L_pollq_issued:")
    if bgon:
        bg(True)
    a(f"""
    s_sub_u32 s{SSPIN}, s{SSPIN}, 1
    s_cbranch_scc1 L_pollq_done
    s_waitcnt vmcnt(0)
    v_cmp_eq_u32 s[54:55], s{STAG}, v{QG + 3}
    v_cmp_eq_u32 vcc, s{STAG}, v{QG + 7}
    s_and_b64 s[54:55], s[54:55], vcc
    """)
    a("s_cmp_eq_u64 s[54:55], -1")
    if qa:
        a(f"""
        s_cbranch_scc1 L_pollq_done
        s_add_u32 s24, s24, 1
        s_cmp_lg_u32 s24, {NA}
        s_cbranch_scc1 L_pollq
        s_add_u32 s68, s68, {W_QB - W_QA}
        s_add_u32 s69, s69, {W_QB - W_QA}
        s_branch L_pollq
        """)
    else:
        a("s_cbranch_scc0 L_pollq")
    a(f"""
    L_pollq_done:
    s_waitcnt vmcnt(0)
    """)
    if cnt:
        a(f"s_mov_b32 s36, s{SSPIN}")
    a(f"""
    s_mov_b32 s52, 0x0504030c
    s_mov_b32 s53, 0x0403020c
    v_lshlrev_b32 v60, 8, v{QG}
    v_perm_b32 v61, v{QG + 1}, v{QG}, s52
    v_perm_b32 v62, v{QG + 2}, v{QG + 1}, s53
    v_and_b32 v63, 0xffffff00, v{QG + 2}
    v_lshlrev_b32 v64, 8, v{QG + 4}
    v_perm_b32 v65, v{QG + 5}, v{QG + 4}, s52
    v_perm_b32 v66, v{QG + 6}, v{QG + 5}, s53
    v_and_b32 v67, 0xffffff00, v{QG + 6}
    v_add_f32 v60, v60, v64
    v_add_f32 v61, v61, v65
    v_add_f32 v62, v62, v66
    v_add_f32 v63, v63, v67
    v_lshrrev_b32 v1, 5, v0
    v_and_b32 v22, 31, v0
    v_permlane32_swap_b32 v60, v61
    v_permlane32_swap_b32 v62, v63
    v_lshlrev_b32 v22, 3, v22
    v_add_f32 v60, v60, v61
    v_add_f32 v62, v62, v63
    v_lshl_add_u32 v22, v1, 1, v22
    s_lshl_b32 s55, s{SW}, 8
    s_add_u32 s55, s55, {L_Q}
    v_cvt_pk_bf16_f32 v60, v60, v62
    v_add_u32 v22, s55, v22
    s_lshl_b32 s55, s{SW}, 2
    s_add_u32 s55, s55, {F_Q}
    v_mov_b32 v1, s55
    v_mov_b32 v23, 1
    ds_write_b16 v22, v60
    ds_write_b16_d16_hi v22, v60 offset:4
    s_mov_b64 exec, 1
    ds_write_b32 v1, v23
    s_mov_b64 exec, -1
    s_and_b32 s52, s{SXCC}, 1
    s_lshr_b32 s53, s{SXCC}, 1
    s_and_b32 s53, s53, 1
    s_lshl_b32 s53, s53, 24
    s_or_b32 s52, s52, s53
    s_lshr_b32 s53, s{SXCC}, 2
    s_and_b32 s53, s53, 1
    s_lshl_b32 s53, s53, 16
    s_lshr_b32 s54, s{SXCC}, 3
    s_and_b32 s54, s54, 1
    s_lshl_b32 s54, s54, 8
    v_xor_b32 v60, s52, v{QG}
    v_xor_b32 v61, s52, v{QG + 4}
    v_xor_b32 v62, s53, v{QG + 1}
    v_xor_b32 v63, s53, v{QG + 5}
    v_xor_b32 v64, s54, v{QG + 2}
    v_xor_b32 v65, s54, v{QG + 6}
    v_or_b32 v60, v60, v61
    v_or_b32 v62, v62, v63
    v_or_b32 v64, v64, v65
    v_and_b32 v60, 0x01000001, v60
    v_and_b32 v62, 0x00010000, v62
    v_and_b32 v64, 0x00000100, v64
    v_or3_b32 v60, v60, v62, v64
    v_cmp_eq_u32 vcc, 0, v60
    v_add_u32 v1, {F_L - F_Q}, v1
    s_cmp_eq_u64 vcc, -1
    s_cselect_b32 s54, 3, 1
    v_mov_b32 v23, s54
    s_mov_b64 exec, 1
    ds_write_b32 v1, v23
    s_mov_b64 exec, -1
    """)
    if warm == 1:
        for kk in range(4):
            a(f"buffer_load_dwordx4 v[{QG + 4 * kk}:{QG + 4 * kk + 3}], v{VOG}, s[{SWS}:{SWS + 3}], s{SOG} offen offset:{kk * 1024} sc1")
    a(f"""
    L_fqw:
    ds_read_b32 v22, v{VFQA}
    s_waitcnt lgkmcnt(0)
    v_cmp_ne_u32 vcc, 0, v22
    s_cmp_eq_u64 vcc, -1
    s_cbranch_scc1 L_fqw_ok
    """)
    if bgon:
        bg(False)
    a(f"""
    s_branch L_fqw
    L_fqw_ok:
    """)
    for t in range(8):
        a(f"ds_read_b128 v[{VQ + 4 * t}:{VQ + 4 * t + 3}], v{VQA} offset:{t * 64}")
    stamp('e')
    if warm == 3 and wpos == 3:
        late_warm()
    ensure(0)
    a("s_waitcnt lgkmcnt(0)")
    for t in range(8):
        for blk in range(2):
            c = VC + 4 * blk
            r = VKB + blk * 32 + 4 * t
            cin = "0" if t == 0 else f"v[{c}:{c + 3}]"
            a(f"v_mfma_f32_16x16x32_bf16 v[{c}:{c + 3}], v[{VQ + 4 * t}:{VQ + 4 * t + 3}], v[{r}:{r + 3}], {cin}")
    C = 1.4426950408889634 / 16.0
    a(f"""
    s_mov_b32 s52, {f2u(C):#x}
    s_mov_b32 s54, 1
    s_mov_b32 s55, 1
    s_lshl_b32 s53, s{SW}, 2
    s_add_u32 s53, s53, {F_M}
    v_mov_b32 v1, s53
    v_mov_b32 v72, 1
    s_nop 0
    v_cndmask_b32 v22, v{VC}, v{VC + 1}, s[{MHI}:{MHI + 1}]
    v_cndmask_b32 v23, v{VC + 4}, v{VC + 5}, s[{MHI}:{MHI + 1}]
    v_cndmask_b32 v22, v22, v23, s[{MODD}:{MODD + 1}]
    s_nop 1
    v_max_f32_dpp v23, v22, v22 quad_perm:[1,0,3,2] {DPPM}
    s_nop 1
    v_max_f32_dpp v23, v23, v23 quad_perm:[2,3,0,1] {DPPM}
    s_nop 1
    v_max_f32_dpp v23, v23, v23 row_half_mirror {DPPM}
    s_nop 1
    v_max_f32_dpp v23, v23, v23 row_mirror {DPPM}
    v_mov_b32 v73, v23
    s_nop 1
    v_permlane16_swap_b32 v23, v73
    s_nop 0
    v_max_f32 v23, v23, v73
    s_mov_b64 exec, s[54:55]
    ds_write_b32 v{VMW}, v23
    s_mov_b64 exec, 1
    ds_write_b32 v1, v72
    s_mov_b64 exec, -1
    """)
    stamp('e')
    a(f"""
    L_mw:
    ds_read_b32 v73, v{VFSA}
    ds_read_b128 v[76:79], v{VMR}
    ds_read_b128 v[80:83], v{VMR} offset:16
    s_waitcnt lgkmcnt(0)
    v_cmp_ne_u32 vcc, 0, v73
    s_cmp_eq_u64 vcc, -1
    s_cbranch_scc0 L_mw
    v_max3_f32 v76, v76, v77, v78
    v_max3_f32 v80, v80, v81, v82
    v_max_f32 v76, v76, v79
    v_max_f32 v80, v80, v83
    v_mul_f32 v76, s52, v76
    v_mul_f32 v80, s52, v80
    v_cndmask_b32 v77, v76, v80, s[{MHI}:{MHI + 1}]
    v_fma_f32 v22, v22, s52, -v77
    v_exp_f32 v22, v22
    v_add_u32 v1, 16, v1
    v_cndmask_b32 v{VOUT + 2}, v76, v80, s[{M2}:{M2 + 1}]
    v_cvt_pk_bf16_f32 v22, v22, v22
    ds_write_b16 v{VPW}, v22
    s_mov_b64 exec, 1
    ds_write_b32 v1, v72
    s_mov_b64 exec, -1
    v_mov_b32 v{VOUT + 3}, s{STAG}
    """)
    stamp('e')
    a(f"""
    L_pw:
    ds_read_b32 v73, v{VFSA} offset:16
    ds_read_b32 v74, v{VFQA} offset:{F_L - F_Q}
    """)
    for j in range(4):
        a(f"ds_read_b128 v[{VP + 4 * j}:{VP + 4 * j + 3}], v{VPA} offset:{j * 64}")
    a(f"""
    s_waitcnt lgkmcnt(0)
    v_min_u32 v75, v73, v74
    v_cmp_ne_u32 vcc, 0, v75
    s_cmp_eq_u64 vcc, -1
    s_cbranch_scc0 L_pw
    v_cmp_eq_u32 vcc, 3, v74
    s_cmp_eq_u64 vcc, -1
    s_cselect_b32 s{SLOC}, 1, 0
    """)
    stamp()
    if force_remote:
        a(f"s_mov_b32 s{SLOC}, 0")
    if warm == 3 and wpos == 6:
        late_warm()
    for j in range(4):
        if j == 3 and specv:
            lb = a.label("v3")
            a(f"""
            s_cmp_gt_u32 s{SBG}, 4
            s_cbranch_scc1 {lb}_ok
            {lb}:
            ds_read_b32 v1, v{VPRA}
            """)
            for b in range(4):
                for u in range(2):
                    r = VVB + 48 + 4 * b + 2 * u
                    a(f"ds_read_b64_tr_b16 v[{r}:{r + 1}], v{VVA + b} offset:{3 * 16384 + u * 2048}")
            a(f"""
            s_waitcnt lgkmcnt(0)
            v_cmp_le_u32 vcc, 36, v1
            s_cmp_eq_u64 vcc, -1
            s_cbranch_scc0 {lb}
            {lb}_ok:
            """)
        else:
            ensure(j + 1, slp=(0 if j == 3 else None))
        a("s_waitcnt lgkmcnt(0)")
        if j == 3:
            stamp('t')
        cin = "0" if j == 0 else f"v[{VLA}:{VLA + 3}]"
        a(f"v_mfma_f32_16x16x32_bf16 v[{VLA}:{VLA + 3}], v[{VP + 4 * j}:{VP + 4 * j + 3}], v[{VONE}:{VONE + 3}], {cin}")
        for b in range(4):
            c = VO + 4 * b
            r = VVB + 16 * j + 4 * b
            cin = "0" if j == 0 else f"v[{c}:{c + 3}]"
            a(f"v_mfma_f32_16x16x32_bf16 v[{c}:{c + 3}], v[{VP + 4 * j}:{VP + 4 * j + 3}], v[{r}:{r + 3}], {cin}")
    a(f"""
    s_nop 3
    v_cndmask_b32 v1, v{VLA}, v{VLA + 1}, s[{M2}:{M2 + 1}]
    v_cndmask_b32 v{VOUT + 2}, v{VOUT + 2}, v1, s[{MAA}:{MAA + 1}]
    """)
    for hd in range(2):
        a(f"v_cndmask_b32 v{22 + hd}, v{VO + hd}, v{VO + 4 + hd}, s[{MODD}:{MODD + 1}]")
    for hd in range(2):
        a(f"v_cndmask_b32 v{72 + hd}, v{VO + 8 + hd}, v{VO + 12 + hd}, s[{MODD}:{MODD + 1}]")
    for hd in range(2):
        a(f"v_cndmask_b32 v{VOUT + hd}, v{22 + hd}, v{72 + hd}, s[{MHI}:{MHI + 1}]")
    a(f"""
    s_cmp_eq_u32 s{SLOC}, 0
    s_cbranch_scc1 L_pub_remote
    buffer_store_dwordx4 v[{VOUT}:{VOUT + 3}], v{VOP}, s[{SWS}:{SWS + 3}], s{SOSP} offen
    s_branch L_pub_done
    L_pub_remote:
    buffer_store_dwordx4 v[{VOUT}:{VOUT + 3}], v{VOP}, s[{SWS}:{SWS + 3}], s{SOSP} offen sc1
    L_pub_done:
    """)
    stamp()
    VW = 72
    VRW, VRF, VFSP = 104, 105, 106
    a(f"""
    s_mov_b32 s54, 0x05040100
    s_mov_b32 s55, 0x07060302
    s_lshl_b32 s52, s{SW}, 9
    s_add_u32 s52, s52, {L_RED}
    v_lshl_add_u32 v{VRW}, v0, 3, s52
    v_and_b32 v1, 3, v0
    v_max_u32 v1, 1, v1
    v_lshlrev_b32 v1, 2, v1
    v_add_u32 v{VRF}, {F_R}, v1
    v_lshrrev_b32 v1, 3, v0
    v_lshlrev_b32 v1, 13, v1
    v_and_b32 v22, 7, v0
    v_lshl_add_u32 v{VFSP}, v22, 4, v1
    s_lshl_b32 s52, s{SCB}, 16
    s_lshl_b32 s53, s{SH}, 3
    s_add_u32 s53, s53, s{SRB}
    s_lshl_b32 s53, s53, 7
    s_add_u32 s52, s52, s53
    s_add_u32 s24, s52, {W_FS}
    s_cmp_eq_u32 s{SCB}, 3
    s_cselect_b32 s27, 0, -1
    s_mov_b32 s26, -1
    s_lshl_b32 s52, s{SH}, 3
    s_lshl_b64 s[28:29], 0xff, s52
    s_cmp_eq_u32 s{SLOC}, 0
    s_cselect_b64 s[28:29], 0, s[28:29]
    s_and_b64 s[28:29], s[28:29], s[26:27]
    v_mov_b32 v161, s{STAG}
    v_mov_b32 v163, s{STAG}
    s_lshl_b32 s52, s{SW}, 2
    s_add_u32 s52, s52, {F_R}
    v_mov_b32 v107, s52
    v_mov_b32 v108, 1
    """)
    G = 128
    MX, O0, O1, LA, T = 144, 145, 146, 147, 148
    E = 152
    def wo_prep():
        lds_wait(VPRA, 1, "v_cmp_le_u32 vcc, 40, v1", "wo", slp=0)
        for hd in range(2):
            for jj in range(4):
                r = VW + 8 * hd + 2 * jj
                a(f"ds_read2st64_b32 v[{r}:{r + 1}], v34 offset0:{hd * 32 + 2 * jj} offset1:{hd * 32 + 2 * jj + 1}")
        a("s_waitcnt lgkmcnt(0)")
        for hd in range(2):
            for i in range(4):
                lo, hi = VW + 8 * hd + 2 * i, VW + 8 * hd + 2 * i + 1
                a(f"v_perm_b32 v{88 + 8 * hd + 2 * i}, v{hi}, v{lo}, s54")
                a(f"v_perm_b32 v{89 + 8 * hd + 2 * i}, v{hi}, v{lo}, s55")
    def gloads():
        for kk in range(4):
            a(f"buffer_load_dwordx4 v[{G + 4 * kk}:{G + 4 * kk + 3}], v{VOG}, s[{SWS}:{SWS + 3}], s{SOG} offen offset:{kk * 1024} sc1")
    if wofirst:
        wo_prep()
    if ack1:
        a("s_waitcnt vmcnt(0)")
    else:
        a(f"s_cmp_lg_u32 s{SLOC}, 0\ns_cbranch_scc1 L_noack1\ns_waitcnt vmcnt(0)\nL_noack1:")
    a(f"s_mov_b32 s{SSPIN}, {SPIN}")
    if not wofirst:
        gloads()
        wo_prep()
        a("s_branch L_poll1_issued")
    a("L_poll1:")
    gloads()
    a("L_poll1_issued:")
    a(f"""
    s_sub_u32 s{SSPIN}, s{SSPIN}, 1
    s_cselect_b32 s25, 1, 0
    s_waitcnt vmcnt(0)
    v_max3_f32 v{MX}, v{G + 2}, v{G + 6}, v{G + 10}
    v_max_f32 v{MX}, v{MX}, v{G + 14}
    v_cmp_eq_u32 s[52:53], s{STAG}, v{G + 3}
    v_cmp_eq_u32 vcc, s{STAG}, v{G + 7}
    v_max_f32_dpp v{MX}, v{MX}, v{MX} row_ror:8 {DPPM}
    s_and_b64 s[52:53], s[52:53], vcc
    v_mov_b32 v{T}, v{MX}
    v_cmp_eq_u32 vcc, s{STAG}, v{G + 11}
    s_and_b64 s[52:53], s[52:53], vcc
    v_permlane16_swap_b32 v{MX}, v{T}
    v_cmp_eq_u32 vcc, s{STAG}, v{G + 15}
    v_max_f32 v{MX}, v{MX}, v{T}
    s_and_b64 s[52:53], s[52:53], vcc
    v_mov_b32 v{T}, v{MX}
    s_cmp_eq_u64 s[52:53], -1
    s_cbranch_scc1 L_poll1_done
    s_cmp_eq_u32 s25, 0
    s_cbranch_scc1 L_poll1
    L_poll1_done:
    v_permlane32_swap_b32 v{MX}, v{T}
    s_nop 0
    """)
    if cnt:
        a(f"s_mov_b32 s37, s{SSPIN}")
    stamp()
    a(f"v_max_f32 v{MX}, v{MX}, v{T}")
    for kk in range(4):
        a(f"v_sub_f32 v{E + kk}, v{G + 4 * kk + 2}, v{MX}")
    for kk in range(4):
        a(f"v_exp_f32 v{E + kk}, v{E + kk}")
    a("s_nop 0")
    for kk in range(4):
        op = "v_mul_f32_dpp" if kk == 0 else "v_fmac_f32_dpp"
        a(f"{op} v{O0}, v{E + kk}, v{G + 4 * kk} quad_perm:[0,0,0,0] {DPPM}")
        a(f"{op} v{O1}, v{E + kk}, v{G + 4 * kk + 1} quad_perm:[2,2,2,2] {DPPM}")
        a(f"{op} v{LA}, v{E + kk}, v{G + 4 * kk + 2} quad_perm:[0,0,2,2] {DPPM}")
    a(f"""
    v_mov_b32 v{T}, v{LA}
    s_nop 0
    v_permlane32_swap_b32 v{O0}, v{O1}
    v_permlane32_swap_b32 v{LA}, v{T}
    v_add_f32 v{O0}, v{O0}, v{O1}
    v_add_f32 v{LA}, v{LA}, v{T}
    s_nop 1
    v_permlane16_swap_b32 v{O0}, v{LA}
    s_nop 0
    v_add_f32 v{O0}, v{O0}, v{LA}
    s_nop 1
    v_add_f32_dpp v{O0}, v{O0}, v{O0} row_ror:8 {DPPM}
    s_nop 1
    v_mov_b32_dpp v{T}, v{O0} quad_perm:[1,1,3,3] {DPPM}
    v_rcp_f32 v{LA}, v{O0}
    v_cvt_pk_bf16_f32 v{O1}, v{O0}, v{T}
    s_nop 0
    """)
    for i in range(4):
        a(f"v_readlane_b32 s{SP + i}, v{O1}, {2 * i}")
        a(f"v_readlane_b32 s{SP + 4 + i}, v{O1}, {32 + 2 * i}")
    a(f"v_readlane_b32 s52, v{LA}, 17")
    a(f"v_readlane_b32 s53, v{LA}, 19")
    for i in range(4):
        for hd in range(2):
            for hf in range(2):
                acc = 152 + 2 * hd + hf
                src2 = "0" if i == 0 else f"v{acc}"
                a(f"v_dot2_f32_bf16 v{acc}, s{SP + 4 * hd + i}, v{88 + 8 * hd + 2 * i + hf}, {src2}")
    stamp('t')
    a(f"""
    s_nop 0
    v_mul_f32 v156, s52, v152
    v_mul_f32 v157, s52, v153
    s_nop 0
    v_fmac_f32 v156, s53, v154
    v_fmac_f32 v157, s53, v155
    s_cmp_eq_u32 s{SW}, 0
    s_cbranch_scc1 L_red0
    ds_write_b64 v{VRW}, v[156:157]
    s_mov_b64 exec, 1
    ds_write_b32 v107, v108
    s_mov_b64 exec, -1
    s_cmp_ge_u32 s2, 28
    s_cbranch_scc1 L_fin
    s_branch L_final
    L_red0:
    v_lshlrev_b32 v1, 3, v0
    L_redw:
    ds_read_b32 v22, v{VRF}
    ds_read_b64 v[152:153], v1 offset:{L_RED + 512}
    ds_read_b64 v[154:155], v1 offset:{L_RED + 1024}
    ds_read_b64 v[158:159], v1 offset:{L_RED + 1536}
    s_waitcnt lgkmcnt(0)
    v_cmp_ne_u32 vcc, 0, v22
    s_cmp_eq_u64 vcc, -1
    s_cbranch_scc0 L_redw
    """)
    stamp('t')
    a(f"""
    v_add_f32 v156, v156, v152
    v_add_f32 v157, v157, v153
    v_add_f32 v154, v154, v158
    v_add_f32 v155, v155, v159
    v_add_f32 v160, v156, v154
    v_add_f32 v162, v157, v155
    """)
    if floc:
        a(f"""
        s_andn2_b64 exec, s[26:27], s[28:29]
        buffer_store_dwordx4 v[160:163], v{VFSP}, s[{SWS}:{SWS + 3}], s24 offen sc1
        s_mov_b64 exec, s[28:29]
        s_cbranch_execz L_noloc
        buffer_store_dwordx4 v[160:163], v{VFSP}, s[{SWS}:{SWS + 3}], s24 offen
        L_noloc:
        s_mov_b64 exec, -1
        """)
    else:
        a(f"""
        s_mov_b64 exec, s[26:27]
        buffer_store_dwordx4 v[160:163], v{VFSP}, s[{SWS}:{SWS + 3}], s24 offen sc1
        s_mov_b64 exec, -1
        """)
    stamp('t')
    a(f"""
    s_cmp_ge_u32 s2, 28
    s_cbranch_scc1 L_fin
    """)
    a(f"""
    L_final:
    s_lshl_b32 s52, s2, 13
    s_lshl_b32 s53, s{SW}, 11
    s_add_u32 s52, s52, s53
    s_add_u32 s52, s52, {W_FS}
    v_and_b32 v1, 7, v0
    v_lshlrev_b32 v1, 3, v1
    v_lshrrev_b32 v22, 5, v0
    v_lshl_add_u32 v23, v22, 2, v1
    s_lshl_b32 s53, s{SW}, 6
    s_add_u32 s53, s53, {L_RED + 4096}
    v_add_u32 v23, s53, v23
    v_add_u32 v107, {F_R2 - F_R}, v107
    v_add_u32 v{VRF}, {F_R2 - F_R}, v{VRF}
    s_mov_b32 s54, 0xff
    s_mov_b32 s55, 0xff
    s_mov_b32 s{SSPIN}, {SPIN}
    s_waitcnt vmcnt(0)
    s_barrier
    L_poll2:
    buffer_load_dwordx4 v[128:131], v{VOG}, s[{SWS}:{SWS + 3}], s52 offen sc1
    buffer_load_dwordx4 v[132:135], v{VOG}, s[{SWS}:{SWS + 3}], s52 offen offset:1024 sc1
    s_sub_u32 s{SSPIN}, s{SSPIN}, 1
    s_cselect_b32 s25, 1, 0
    s_waitcnt vmcnt(0)
    v_add_f32 v140, v128, v132
    v_add_f32 v141, v130, v134
    v_cmp_eq_u32 s[26:27], s{STAG}, v129
    v_cmp_eq_u32 vcc, s{STAG}, v131
    v_permlane32_swap_b32 v140, v141
    s_and_b64 s[26:27], s[26:27], vcc
    v_add_f32 v140, v140, v141
    v_cmp_eq_u32 vcc, s{STAG}, v133
    v_mov_b32 v141, v140
    s_and_b64 s[26:27], s[26:27], vcc
    v_cmp_eq_u32 vcc, s{STAG}, v135
    v_permlane16_swap_b32 v140, v141
    s_and_b64 s[26:27], s[26:27], vcc
    v_add_f32 v140, v140, v141
    s_cmp_eq_u64 s[26:27], -1
    s_cbranch_scc1 L_poll2_done
    s_cmp_eq_u32 s25, 0
    s_cbranch_scc1 L_poll2
    L_poll2_done:
    """)
    stamp()
    a(f"""
    v_add_f32_dpp v140, v140, v140 row_ror:8 {DPPM}
    s_mov_b64 exec, s[54:55]
    ds_write_b32 v23, v140
    s_cmp_eq_u32 s{SW}, 0
    s_cbranch_scc1 L_fin0
    s_mov_b64 exec, 1
    ds_write_b32 v107, v108
    s_branch L_fin
    L_fin0:
    s_mov_b64 exec, -1
    s_lshl_b32 s52, s2, 5
    v_lshlrev_b32 v22, 2, v0
    L_finw:
    ds_read_b32 v23, v{VRF}
    ds_read_b64 v[140:141], v1 offset:{L_RED + 4096}
    ds_read_b64 v[142:143], v1 offset:{L_RED + 4096 + 64}
    ds_read_b64 v[144:145], v1 offset:{L_RED + 4096 + 128}
    ds_read_b64 v[146:147], v1 offset:{L_RED + 4096 + 192}
    s_waitcnt lgkmcnt(0)
    v_cmp_ne_u32 vcc, 0, v23
    s_cmp_eq_u64 vcc, -1
    s_cbranch_scc0 L_finw
    """)
    stamp('t')
    a(f"""
    v_add_f32 v140, v140, v142
    v_add_f32 v141, v141, v143
    v_add_f32 v144, v144, v146
    v_add_f32 v145, v145, v147
    v_add_f32 v140, v140, v144
    v_add_f32 v141, v141, v145
    v_cvt_pk_bf16_f32 v140, v140, v141
    s_mov_b64 exec, 0xff
    buffer_store_dword v140, v22, s[{SOUT}:{SOUT + 3}], s52 offen
    s_cmp_lg_u32 s2, 0
    s_cbranch_scc1 L_fin
    s_mov_b64 exec, 1
    v_mov_b32 v2, 0
    v_mov_b32 v3, s{STAG}
    buffer_store_dword v3, v2, s[{SWS}:{SWS + 3}], 0 offen sc1
    L_fin:
    s_mov_b64 exec, -1
    """)
    stamp()
    if cnt and stamps:
        a(f"""
        s_waitcnt lgkmcnt(0)
        s_sub_u32 s52, {SPIN}, s36
        s_add_u32 s{STS + 8}, s{STS}, s52
        s_mov_b32 s{STS + 9}, s{STS + 1}
        s_sub_u32 s52, {SPIN}, s37
        s_add_u32 s{STS + 10}, s{STS}, s52
        s_mov_b32 s{STS + 11}, s{STS + 1}
        """)
    flush_stamps(200, 0, 11, 0)
    a("s_endpgm")

    nst[0] = 1
    SJ, SOF = 66, 67
    VK0, VK1, VV0, VV1, VWQ, VWO, VPA, VPV, VFQ = 4, 5, 6, 7, 8, 9, 10, 11, 12
    a(f"""
    L_loader:
    s_setprio {lprio}
    s_sub_u32 s{SJ}, s{SW}, 4
    v_lshrrev_b32 v1, 3, v0
    v_lshlrev_b32 v2, 13, v1
    v_and_b32 v3, 7, v0
    v_lshrrev_b32 v13, 4, v0
    v_and_b32 v13, 1, v13
    v_lshlrev_b32 v13, 1, v13
    v_xor_b32 v3, v3, v13
    s_and_b32 s52, s{SJ}, 1
    s_lshl_b32 s52, s52, 2
    v_xor_b32 v3, s52, v3
    v_lshl_add_u32 v{VWQ}, v3, 4, v2
    s_lshr_b32 s53, s{SS}, 3
    s_mul_i32 s53, s53, {112 * 8192}
    s_lshl_b32 s54, s{SH}, 10
    s_add_u32 s53, s53, s54
    s_and_b32 s54, s{SS}, 7
    s_lshl_b32 s54, s54, 7
    s_add_u32 s53, s53, s54
    s_lshl_b32 s54, s{SJ}, 16
    s_add_u32 s{SOF}, s53, s54
    s_lshl_b32 s56, s{SJ}, 10
    s_add_u32 s57, s56, {L_WQ}
    s_mov_b32 m0, s57
    v_lshrrev_b32 v1, 5, v0
    v_and_b32 v2, 31, v0
    v_xor_b32 v3, v2, v1
    s_lshl_b32 s52, s{SJ}, 1
    v_xor_b32 v3, s52, v3
    v_lshlrev_b32 v3, 4, v3
    v_lshl_add_u32 v{VK0}, v1, 9, v3
    v_xor_b32 v{VK1}, 128, v{VK0}
    s_waitcnt lgkmcnt(0)
    """)
    srd(SWQ, 10, 11, 3670016)
    n = [0]
    written = [0]
    NTOT = 40
    def depth():
        return D if n[0] < 20 + D else D2
    def prog(cnt):
        a(f"""
        v_mov_b32 v{VPV}, {cnt}
        s_mov_b64 exec, 1
        ds_write_b32 v{VPA}, v{VPV}
        s_mov_b64 exec, -1
        """)
        written[0] = cnt
    landed = [0]
    def lwarm_setup():
        srd(SWS, 18, 19, WS_BYTES)
        a(f"""
        s_lshl_b32 s52, s{SH}, 17
        s_lshl_b32 s53, s{SRB}, 14
        s_add_u32 s52, s52, s53
        s_lshl_b32 s53, s{SJ}, 12
        s_add_u32 s52, s52, s53
        s_lshl_b32 s53, s{SCB}, 10
        s_add_u32 s52, s52, s53
        s_add_u32 s72, s52, {W_OS}
        v_lshlrev_b32 v13, 4, v0
        s_lshl_b32 s53, s2, 13
        s_lshl_b32 s54, s{SH}, 10
        s_add_u32 s53, s53, s54
        s_add_u32 s73, s53, {W_FS}
        s_cmp_lt_u32 s2, 28
        s_cselect_b32 s73, s73, {OOB:#x}
        s_cmp_eq_u32 s{SJ}, 0
        s_cselect_b32 s73, s73, {OOB:#x}
        """)
    def lwarm():
        a(f"buffer_load_dwordx4 v[16:19], v13, s[{SWS}:{SWS + 3}], s72 offen")
        if floc:
            a(f"buffer_load_dwordx4 v[24:27], v13, s[{SWS}:{SWS + 3}], s73 offen")
    def throttle(d):
        if n[0] - landed[0] >= d:
            a(f"s_waitcnt vmcnt({d - 1})")
            landed[0] = n[0] - d + 1
            c4 = landed[0] // 4 * 4
            if c4 > written[0]:
                prog(c4)
    for i in range(4):
        if i == 3:
            a(f"s_cmp_lt_u32 s{SJ}, 2\ns_cselect_b32 s{SOF}, s{SOF}, {OOB:#x}")
        throttle(D)
        a(f"buffer_load_dwordx4 v{VWQ}, s[{SWQ}:{SWQ + 3}], s{SOF} offen nt lds")
        n[0] += 1
        if i < 3:
            a(f"s_add_u32 m0, m0, 4096\ns_add_u32 s{SOF}, s{SOF}, 262144")
        if i == 0:
            srd_off(SK, 6, 7, 68, KVN)
    def setup_rest():
        srd_off(SV, 8, 9, 68, KVN)
        srd(SWO, 12, 13, 3670016)
        a(f"""
        v_lshrrev_b32 v1, 5, v0
        v_and_b32 v2, 31, v0
        v_lshlrev_b32 v3, 1, v1
        v_xor_b32 v3, v3, v2
        s_and_b32 s52, s{SJ}, 1
        s_lshl_b32 s52, s52, 2
        v_xor_b32 v3, s52, v3
        v_lshlrev_b32 v3, 4, v3
        v_lshl_add_u32 v{VV0}, v1, 9, v3
        v_xor_b32 v{VV1}, 128, v{VV0}
        v_lshrrev_b32 v1, 4, v0
        v_mul_u32_u24 v1, 896, v1
        v_and_b32 v2, 15, v0
        v_lshl_add_u32 v{VWO}, v2, 4, v1
        v_cmp_le_u32 vcc, 8, v2
        s_cmp_eq_u32 s{SCB}, 3
        s_cselect_b64 s[52:53], vcc, 0
        v_mov_b32 v1, {OOB:#x}
        v_cndmask_b32 v{VWO}, v{VWO}, v1, s[52:53]
        s_lshl_b32 s52, s{SJ}, 2
        s_add_u32 s52, s52, {F_PROG}
        v_mov_b32 v{VPA}, s52
        v_and_b32 v1, 3, v0
        v_lshlrev_b32 v1, 2, v1
        v_add_u32 v{VFQ}, {F_Q}, v1
        """)
        lwarm_setup()
    if bar4:
        a("s_barrier")
    def kv_first():
        if rho:
            a(f"s_mov_b32 s70, s{SS}")
            if phase:
                a(f"s_mul_i32 s71, s{SH}, {phase * 131072}\ns_and_b32 s71, s71, 0x1fffff\ns_add_u32 s71, s71, s56")
            else:
                a("s_mov_b32 s71, s56")
            a(f"s_lshl_b32 s{SOF}, s70, 12\ns_add_u32 s{SOF}, s{SOF}, s71")
        else:
            a(f"s_mov_b32 s{SOF}, s56")
    def kv_next():
        if rho:
            a(f"""
            s_add_u32 s70, s70, {rho}
            s_and_b32 s70, s70, 31
            s_add_u32 s71, s71, 131072
            {"s_and_b32 s71, s71, 0x1fffff" if phase else ""}
            s_lshl_b32 s{SOF}, s70, 12
            s_add_u32 s{SOF}, s{SOF}, s71
            """)
        else:
            a(f"s_add_u32 s{SOF}, s{SOF}, {KVSTEP}")
    a("s_mov_b32 m0, s56")
    kv_first()
    for i in range(16):
        throttle(D)
        a(f"buffer_load_dwordx4 v{VK0 + (i & 1)}, s[{SK}:{SK + 3}], s{SOF} offen nt lds")
        n[0] += 1
        a("s_add_u32 m0, m0, 4096")
        kv_next()
        if n[0] == D:
            setup_rest()
            if not bar4:
                a("s_barrier")
            stamp()
            if early4:
                a(f"s_waitcnt vmcnt({D - 4})")
                landed[0] = 4
                prog(4)
    a(f"s_add_u32 m0, s56, {L_V}")
    kv_first()
    for i in range(16):
        throttle(D2)
        a(f"buffer_load_dwordx4 v{VV0 + (i & 1)}, s[{SV}:{SV + 3}], s{SOF} offen nt lds")
        n[0] += 1
        a("s_add_u32 m0, m0, 4096")
        kv_next()
    stamp()
    a(f"""
    s_lshl_b32 s52, s{SH}, 9
    s_lshl_b32 s53, s{SRB}, 5
    s_add_u32 s52, s52, s53
    s_lshl_b32 s53, s{SJ}, 2
    s_add_u32 s52, s52, s53
    s_mul_i32 s52, s52, 896
    s_lshl_b32 s53, s{SCB}, 8
    s_add_u32 s{SOF}, s52, s53
    s_add_u32 m0, s56, {L_WO}
    """)
    lds_wait(VFQ, 1, "v_cmp_ne_u32 vcc, 0, v1", "lfq")
    for i in range(4):
        throttle(D2)
        a(f"buffer_load_dwordx4 v{VWO}, s[{SWO}:{SWO + 3}], s{SOF} offen nt lds")
        n[0] += 1
        if i < 3:
            step = 16 * 896 if i != 1 else 256 * 896 - 16 * 896
            a(f"s_add_u32 m0, m0, 4096\ns_add_u32 s{SOF}, s{SOF}, {step}")
    extra = 0
    if warm == 4:
        lwarm()
        extra = 2 if floc else 1
    stamp()
    thr = written[0] + 4
    a("s_setprio 3\ns_mov_b64 exec, 1")
    while thr <= NTOT:
        rv = VPV if (thr // 4) & 1 else 14
        a(f"v_mov_b32 v{rv}, {thr}")
        a(f"s_waitcnt vmcnt({NTOT - thr + extra})")
        a(f"ds_write_b32 v{VPA}, v{rv}")
        if thr == 36 and tail:
            stamp()
        thr += 4
    a("s_mov_b64 exec, -1")
    stamp()
    if dirty:
        srd(SWS, 18, 19, WS_BYTES)
        a(f"""
        s_lshl_b32 s52, s2, 2
        s_add_u32 s52, s52, s{SJ}
        s_mul_i32 s52, s52, {dirty * 1024}
        s_add_u32 s52, s52, {5 << 20}
        v_lshlrev_b32 v13, 4, v0
        """)
        for i in range(dirty):
            a(f"buffer_store_dwordx4 v[16:19], v13, s[{SWS}:{SWS + 3}], s52 offen")
            a("s_add_u32 s52, s52, 1024")
    flush_stamps(20, 11, 4, 4)
    a("s_endpgm")
    a("L_end:")
    a("s_endpgm")
    a('.section .rodata,"a"')
    a(".p2align 6")
    out = HEADER + f"; @launch grid=(256,1,1) block=(512,1,1) lds={LDS_BYTES}\n" + OVERVIEW + a.text() + kernel_desc(k, 256, 102)
    return out

if __name__ == "__main__":
    kw = {}
    for x in sys.argv[2:]:
        key, val = x.lstrip("-").split("=") if "=" in x else (x.lstrip("-"), "1")
        kw[key] = int(val)
    open(sys.argv[1], "w").write(gen(**kw))
```

```python
import struct, sys
from asmlib import *

def f2u(x):
    return struct.unpack("<I", struct.pack("<f", x))[0]

L_K, L_V, L_WQ, L_Q, L_S, L_FL = 0, 65536, 131072, 147456, 148480, 149504
L_WO = L_WQ
L_RED = 0
LDS_BYTES = 149760
F_PROG, F_Q, F_M, F_P, F_R, L_TAG, F_R2, F_L = L_FL, L_FL + 16, L_FL + 32, L_FL + 48, L_FL + 64, L_FL + 80, L_FL + 96, L_FL + 112
L_P, L_MX = L_S, L_S + 512
W_QA, W_OS, W_FS, W_QB, W_TS = 65536, 262144, 1310720, 1572864, 4 << 20
WS_BYTES = 8 << 20
TAG_INC = 0x9E3779B1
SPIN = 200000
OOB = 0x40000000

OVERVIEW = """;
;           workgroups of a head as 16-byte granules {4 x 24-bit value, tag}.  Copy A is stored plainly (read through
;   o:      granules {o head0, o head1, max or sum, tag}; consumer (rb = s >> 2, wave) merges the 32 partial results of
;
"""

def gen(stamps=False, D=8, force_remote=False, warm=4, sleep=1, dbg=-1, qa=1, NA=3, qack=0, pretouch=0, ack2=1, D2=8, qprog=0, early4=1, cnt=0, xq=0, bar4=1, lprio=0, cprio=3, bgon=1, qjunk=1, ack1=1, wpol=0, wpos=6, tail=0, specv=1, rsleep=0, fdelay=0, wat=40, wofirst=0, dirty=0, ilv=1, phase=0, floc=1, qwarm=1, psleep=0, remap=0, rho=11, pad=0, align=0, ffuse=1, locmerge=1, fqsleep=0, mwsleep=0, sround=1):
    assert 5 <= D <= 20
    D2 = D2 or D
    KVN = (2097152 if rho else 1970176) if ilv else 65536
    KVSTEP = 131072 if ilv else 4096
    a = Asm()
    k = NAME + "_kernel"
    SH, SS, SW, STAG = 20, 21, 22, 23
    SK, SV, SWQ, SX, SWO, SWS, SOUT = 24, 28, 32, 36, 40, 44, 48
    MODD, MHI, MAA = 58, 60, 62
    SXCC, SLOC = 64, 65
    SP = 66
    SSPIN, SRB, SCB = 74, 75, 76
    SOG = 77
    STS = 78
    SOSP, SQP = (56, 57)
    nst = [0]
    def stamp(kind="n"):
        if kind == "e" and tail:
            return
        if kind == "t" and not tail:
            return
        if stamps:
            a(f"s_memrealtime s[{STS + 2 * nst[0]}:{STS + 2 * nst[0] + 1}]")
            nst[0] += 1
    def flush_stamps(vtmp, base=0, cnt=12, wave=0):
        if not stamps:
            return
        if dbg >= 0:
            lb = a.label("dbg")
            a(f"""
            s_waitcnt lgkmcnt(0)
            s_cmp_lg_u32 s2, {dbg}
            s_cbranch_scc1 {lb}
            s_cmp_lg_u32 s{SW}, {wave}
            s_cbranch_scc1 {lb}
            s_mov_b32 s52, s16
            s_and_b32 s53, s17, 0xffff
            s_mov_b32 s54, 256
            s_mov_b32 s55, 0x20000
            s_mov_b64 exec, 1
            """)
            for i in range(cnt):
                a(f"s_sub_u32 s56, s{STS + 2 * (i + 1)}, s{STS}")
                a(f"v_mov_b32 v{vtmp}, s56")
                a(f"v_mov_b32 v{vtmp + 2}, {4 * (base + i)}")
                a(f"buffer_store_dword v{vtmp}, v{vtmp + 2}, s[52:55], 0 offen")
                a("s_nop 1")
            a(f"{lb}:")
            a("s_mov_b64 exec, -1")
            return
        a(f"""
        s_waitcnt lgkmcnt(0)
        s_mov_b32 s{SWS}, s18
        s_and_b32 s{SWS + 1}, s19, 0xffff
        s_mov_b32 s{SWS + 2}, {WS_BYTES}
        s_mov_b32 s{SWS + 3}, 0x20000
        s_lshl_b32 s52, s2, 3
        s_add_u32 s52, s52, s{SW}
        s_lshl_b32 s52, s52, 7
        s_add_u32 s52, s52, {W_TS}
        s_mov_b64 exec, 1
        """)
        for i in range(12):
            a(f"v_mov_b32 v{vtmp}, s{STS + 2 * i}")
            a(f"v_mov_b32 v{vtmp + 1}, s{STS + 2 * i + 1}")
            a(f"v_mov_b32 v{vtmp + 2}, {8 * i}")
            a(f"buffer_store_dwordx2 v[{vtmp}:{vtmp + 1}], v{vtmp + 2}, s[{SWS}:{SWS + 3}], s52 offen")
            a("s_nop 1")
        a("s_mov_b64 exec, -1")
    def lds_wait(addr_v, tmp, cmp, name, slp=None, off=0):
        slp = sleep if slp is None else slp
        lb = a.label(name)
        a(f"""
        {lb}:
        ds_read_b32 v{tmp}, v{addr_v} offset:{off}
        s_waitcnt lgkmcnt(0)
        {cmp}
        s_cmp_eq_u64 vcc, -1
        """)
        if slp:
            a(f"""
            s_cbranch_scc1 {lb}_ok
            s_sleep {slp}
            s_branch {lb}
            {lb}_ok:
            """)
        else:
            a(f"s_cbranch_scc0 {lb}")
    def srd(reg, lo, hi, size):
        a(f"""
        s_mov_b32 s{reg}, s{lo}
        s_and_b32 s{reg + 1}, s{hi}, 0xffff
        s_mov_b32 s{reg + 2}, {size}
        s_mov_b32 s{reg + 3}, 0x20000
        """)
    def srd_off(reg, lo, hi, off, size):
        a(f"""
        s_add_u32 s{reg}, s{lo}, s{off}
        s_addc_u32 s{reg + 1}, s{hi}, 0
        s_and_b32 s{reg + 1}, s{reg + 1}, 0xffff
        s_mov_b32 s{reg + 2}, {size}
        s_mov_b32 s{reg + 3}, 0x20000
        """)
    def swapb(op, reg, tmp, kinds):
        for kind in kinds:
            a(f"v_mov_b32 v{tmp}, v{reg}")
            a("s_nop 1")
            a(f"v_permlane{kind}_swap_b32 v{reg}, v{tmp}")
            a("s_nop 0")
            a(f"{op} v{reg}, v{reg}, v{tmp}")
    DPPM = "row_mask:0xf bank_mask:0xf"

    a(f"""
    .amdgcn_target "amdgcn-amd-amdhsa--gfx950"
    .text
    .globl {k}
    .p2align 8
    .type {k},@function
    {k}:
    s_cmp_ge_u32 s2, 256
    s_cbranch_scc1 L_end
    s_load_dwordx16 s[4:19], s[0:1], 0
    """)
    for _ in range(pad):
        a("s_nop 0")
    if stamps:
        for i in range(78, 102):
            a(f"s_mov_b32 s{i}, 0")
    stamp()
    a(f"""
    v_lshrrev_b32 v1, 6, v0
    {"s_lshr_b32" if remap else "s_and_b32"} s{SH}, s2, {5 if remap else 7}
    {"s_and_b32" if remap else "s_lshr_b32"} s{SS}, s2, {31 if remap else 3}
    v_readfirstlane_b32 s{SW}, v1
    v_and_b32 v0, 63, v0
    s_lshr_b32 s{SRB}, s{SS}, 2
    s_and_b32 s{SCB}, s{SS}, 3
    s_lshl_b32 s52, s{SH}, 25
    s_add_u32 s68, s52, 31457280
    s_cmp_ge_u32 s{SW}, 4
    s_cbranch_scc1 L_loader
    """)

    VN, VG = 2, 3
    VPRA, VFQA, VFSA, VOG = 4, 5, 6, 7
    XA = 8
    VZ = 180
    VOP, VQPO = 184, 185
    a(f"""
    s_setprio {cprio}
    s_getreg_b32 s{SXCC}, hwreg(HW_REG_XCC_ID, 0, 4)
    v_and_b32 v{VN}, 15, v0
    v_lshrrev_b32 v{VG}, 4, v0
    s_lshr_b32 s52, s{SS}, 3
    s_mul_i32 s52, s52, 224
    v_lshl_add_u32 v1, v{VG}, 4, s52
    v_lshl_add_u32 v22, v{VG}, 3, s52
    v_mov_b32 v{VZ}, 0
    v_lshrrev_b32 v23, 3, v0
    v_lshlrev_b32 v23, 12, v23
    v_and_b32 v26, 7, v0
    v_lshl_add_u32 v{VOP}, v26, 4, v23
    v_lshlrev_b32 v{VQPO}, 2, v0
    v_lshlrev_b32 v{VOG}, 4, v0
    s_lshl_b32 s53, s{SH}, 17
    s_lshl_b32 s54, s{SW}, 15
    s_add_u32 s53, s53, s54
    s_lshl_b32 s54, s{SS}, 7
    s_add_u32 s53, s53, s54
    s_add_u32 s{SOSP}, s53, {W_OS}
    s_lshl_b32 s53, s{SH}, 13
    s_lshr_b32 s54, s{SS}, 3
    s_lshl_b32 s54, s54, 11
    s_add_u32 s53, s53, s54
    s_and_b32 s54, s{SS}, 7
    s_lshl_b32 s54, s54, 8
    s_add_u32 s53, s53, s54
    s_lshl_b32 s54, s{SW}, 6
    s_add_u32 s{SQP}, s53, s54
    s_cmp_lg_u32 s{SW}, 0
    s_cbranch_scc1 L_noinit
    v_lshlrev_b32 v27, 2, v0
    v_add_u32 v27, {L_FL}, v27
    s_mov_b64 exec, 0xffffffff
    ds_write_b32 v27, v{VZ}
    s_mov_b64 exec, -1
    L_noinit:
    s_waitcnt lgkmcnt(0)
    """)
    srd(SX, 4, 5, 896)
    a(f"""
    s_load_dword s{STAG}, s[18:19], 0
    buffer_load_dwordx4 v[{XA}:{XA + 3}], v1, s[{SX}:{SX + 3}], 0 offen
    buffer_load_dwordx4 v[{XA + 4}:{XA + 7}], v1, s[{SX}:{SX + 3}], 0 offen offset:64
    buffer_load_dwordx4 v[{XA + 8}:{XA + 11}], v1, s[{SX}:{SX + 3}], 0 offen offset:128
    buffer_load_dwordx2 v[{XA + 12}:{XA + 13}], v22, s[{SX}:{SX + 3}], 0 offen offset:192
    s_barrier
    """)
    srd(SWS, 18, 19, WS_BYTES)
    srd(SOUT, 14, 15, 896)
    nlater = 0
    if qa and qwarm:
        a(f"""
        s_add_u32 s52, s{SQP}, {W_QA}
        s_mov_b64 exec, 0xf
        buffer_load_dwordx4 v[176:179], v{VOG}, s[{SWS}:{SWS + 3}], s52 offen
        s_mov_b64 exec, -1
        """)
        nlater += 1
    if warm == 2:
        a(f"buffer_store_dwordx4 v[{VZ}:{VZ + 3}], v{VOP}, s[{SWS}:{SWS + 3}], s{SOSP} offen")
        nlater += 1
    if pretouch:
        a(f"""
        s_add_u32 s52, s8, s68
        s_addc_u32 s53, s9, 0
        s_lshl_b32 s54, s{SH}, 9
        s_lshl_b32 s55, s{SRB}, 5
        s_add_u32 s54, s54, s55
        s_mul_i32 s54, s54, 896
        s_add_u32 s54, s12, s54
        s_addc_u32 s55, s13, 0
        s_cmp_eq_u32 s{SW}, 1
        s_cselect_b32 s{SV}, s52, s14
        s_cselect_b32 s{SV + 1}, s53, s15
        s_cmp_eq_u32 s{SW}, 2
        s_cselect_b32 s{SV}, s54, s{SV}
        s_cselect_b32 s{SV + 1}, s55, s{SV + 1}
        s_and_b32 s{SV + 1}, s{SV + 1}, 0xffff
        s_mov_b32 s{SV + 2}, 4
        s_mov_b32 s{SV + 3}, 0x20000
        s_mov_b64 exec, 1
        buffer_load_dword v176, v{VZ}, s[{SV}:{SV + 3}], 0 offen nt
        s_mov_b64 exec, -1
        """)
        nlater += 1
    a(f"""
    s_mov_b32 s{MODD}, 0xffff0000
    s_mov_b32 s{MODD + 1}, 0xffff0000
    s_mov_b32 s{MHI}, 0
    s_mov_b32 s{MHI + 1}, -1
    s_mov_b32 s{MAA}, 0xaaaaaaaa
    s_mov_b32 s{MAA + 1}, 0xaaaaaaaa
    v_and_b32 v1, 3, v0
    v_lshlrev_b32 v1, 2, v1
    v_add_u32 v{VPRA}, {F_PROG}, v1
    v_add_u32 v{VFQA}, {F_Q}, v1
    v_add_u32 v{VFSA}, {F_M}, v1
    """)
    VWA, VWA2 = 24, 25
    a(f"""
    v_lshrrev_b32 v1, 2, v{VN}
    v_and_b32 v27, 3, v{VN}
    v_lshl_add_u32 v22, v{VG}, 3, v1
    v_lshlrev_b32 v22, 7, v22
    v_lshl_add_u32 v22, v27, 3, v22
    v_lshrrev_b32 v23, 1, v1
    v_and_b32 v26, 1, v{VG}
    v_lshl_add_u32 v26, v26, 1, v23
    v_xor_b32 v26, s{SW}, v26
    v_lshl_add_u32 v22, v26, 5, v22
    v_add_u32 v{VWA}, {L_WQ}, v22
    v_lshl_add_u32 v22, v{VG}, 2, v1
    v_lshlrev_b32 v22, 7, v22
    v_lshl_add_u32 v22, v27, 3, v22
    v_lshrrev_b32 v26, 1, v{VG}
    v_lshl_add_u32 v26, v26, 1, v23
    v_xor_b32 v26, s{SW}, v26
    v_lshl_add_u32 v22, v26, 5, v22
    v_add_u32 v{VWA2}, {L_WQ + 96 * 128}, v22
    s_lshl_b32 s52, s{SH}, 13
    s_lshl_b32 s53, s{SW}, 9
    s_add_u32 s52, s52, s53
    s_add_u32 s68, s52, {W_QA if qa else W_QB}
    s_add_u32 s69, s68, 4096
    v_lshrrev_b32 v1, 5, v0
    v_and_b32 v22, 31, v0
    v_lshlrev_b32 v22, 4, v22
    v_lshl_add_u32 v186, v1, 11, v22
    v_and_b32 v22, 3, v0
    v_lshrrev_b32 v187, v22, s{SXCC}
    v_and_b32 v187, 1, v187
    v_lshlrev_b32 v187, 8, v187
    s_mov_b32 s24, 0x05030201
    s_mov_b32 s25, 0x06050302
    s_mov_b32 s26, 0x07060503
    s_mov_b32 s27, 0xfffffe00
    s_lshl_b32 s52, s{SH}, 17
    s_lshl_b32 s53, s{SRB}, 14
    s_add_u32 s52, s52, s53
    s_lshl_b32 s53, s{SW}, 12
    s_add_u32 s52, s52, s53
    s_add_u32 s{SOG}, s52, {W_OS}
    """)
    lds_wait(VPRA, 1, "v_cmp_le_u32 vcc, 4, v1", "wq")
    stamp('e')
    WB = 28
    for t in range(3):
        for u in range(2):
            r = WB + 4 * t + 2 * u
            a(f"ds_read_b64_tr_b16 v[{r}:{r + 1}], v{VWA} offset:{t * 4096 + u * 512}")
    a(f"ds_read_b64_tr_b16 v[{WB + 12}:{WB + 13}], v{VWA2}")
    QC, QC2 = 44, 48
    a(f"s_waitcnt vmcnt({nlater}) lgkmcnt(0)")
    a(f"v_mfma_f32_16x16x16_bf16 v[{QC2}:{QC2 + 3}], v[{XA + 12}:{XA + 13}], v[{WB + 12}:{WB + 13}], 0")
    for t in range(3):
        cin = "0" if t == 0 else f"v[{QC}:{QC + 3}]"
        a(f"v_mfma_f32_16x16x32_bf16 v[{QC}:{QC + 3}], v[{XA + 4 * t}:{XA + 4 * t + 3}], v[{WB + 4 * t}:{WB + 4 * t + 3}], {cin}")
    a(f"""
    s_add_u32 s{STAG}, s{STAG}, {TAG_INC:#x}
    s_or_b32 s{STAG}, s{STAG}, 1
    s_add_u32 s52, s{SQP}, {W_QA}
    s_add_u32 s53, s{SQP}, {W_QB}
    s_nop 4
    v_add_f32 v56, v{QC}, v{QC2}
    v_add_u32 v56, 0x100, v56
    v_and_or_b32 v56, v56, s27, v187
    v_mov_b32 v51, s{STAG}
    s_nop 0
    v_mov_b32_dpp v52, v56 quad_perm:[0,0,0,0] {DPPM}
    v_mov_b32_dpp v53, v56 quad_perm:[1,1,1,1] {DPPM}
    v_mov_b32_dpp v54, v56 quad_perm:[2,2,2,2] {DPPM}
    v_mov_b32_dpp v55, v56 quad_perm:[3,3,3,3] {DPPM}
    v_perm_b32 v48, v53, v52, s24
    v_perm_b32 v49, v54, v53, s25
    v_perm_b32 v50, v55, v54, s26
    s_mov_b64 exec, 0x1111
    """)
    if qa:
        a(f"buffer_store_dwordx4 v[48:51], v{VQPO}, s[{SWS}:{SWS + 3}], s52 offen")
    a(f"""
    buffer_store_dwordx4 v[48:51], v{VQPO}, s[{SWS}:{SWS + 3}], s53 offen sc1
    s_mov_b64 exec, -1
    """)
    if qack or not qa:
        a("s_waitcnt vmcnt(0)")
    if qprog:
        lds_wait(VPRA, 1, f"v_cmp_le_u32 vcc, {qprog}, v1", "qp")
    stamp('e')
    QG = 52
    VQA, VKA, VVA = 26, 28, 36
    VPW, VMW, VMR, VPA = 32, 33, 35, 27
    VQ, VKB, VC = 72, 104, 168
    VVB = 192
    VP, VONE, VO, VLA, VOUT = 52, 40, 144, 160, 124
    SBG, STHR = 73, 72
    M2 = 30
    def late_warm():
        pol = ["", " sc1", " nt", " sc1 nt"][wpol]
        a(f"""
        s_lshl_b32 s52, s{SCB}, 10
        s_add_u32 s52, s52, s{SOG}
        buffer_load_dwordx4 v[176:179], v{VOG}, s[{SWS}:{SWS + 3}], s52 offen{pol}
        """)
    def addr_setup():
        a(f"""
        v_and_b32 v1, 1, v{VN}
        v_lshlrev_b32 v22, 9, v1
        v_lshl_add_u32 v22, v{VG}, 4, v22
        v_add_u32 v{VQA}, {L_Q}, v22
        v_lshlrev_b32 v22, 8, v1
        v_lshl_add_u32 v22, v{VG}, 4, v22
        v_add_u32 v{VPA}, {L_P}, v22
        v_xor_b32 v1, v{VG}, v{VN}
        v_lshlrev_b32 v1, 4, v1
        v_lshl_add_u32 v1, v{VN}, 9, v1
        s_lshl_b32 s52, s{SW}, 14
        v_add_u32 v{VKA}, s52, v1
        """)
        for t in range(1, 4):
            a(f"v_xor_b32 v{VKA + t}, {t << 6}, v{VKA}")
        a(f"""
        v_lshrrev_b32 v1, 2, v{VN}
        v_and_b32 v22, 3, v{VN}
        v_lshl_add_u32 v23, v{VG}, 3, v1
        v_lshlrev_b32 v23, 9, v23
        v_lshl_add_u32 v23, v22, 3, v23
        v_and_b32 v22, 1, v{VG}
        v_lshl_add_u32 v1, v22, 2, v1
        s_lshl_b32 s52, s{SW}, 2
        v_xor_b32 v1, s52, v1
        v_lshl_add_u32 v23, v1, 5, v23
        v_add_u32 v{VVA}, {L_V}, v23
        """)
        for b in range(1, 4):
            a(f"v_xor_b32 v{VVA + b}, {b << 5}, v{VVA}")
        a(f"""
        v_lshrrev_b32 v1, 5, v0
        v_and_b32 v22, 31, v0
        v_lshlrev_b32 v23, 8, v1
        v_lshl_add_u32 v23, v22, 1, v23
        s_lshl_b32 s52, s{SW}, 6
        s_add_u32 s52, s52, {L_P}
        v_add_u32 v{VPW}, s52, v23
        s_lshl_b32 s52, s{SW}, 2
        s_add_u32 s52, s52, {L_MX}
        v_lshl_add_u32 v{VMW}, v1, 4, s52
        v_mov_b32 v{VMR}, {L_MX}
        s_lshl_b32 s52, s{SW}, 11
        s_add_u32 s52, s52, {L_WO}
        v_lshl_add_u32 v34, v0, 2, s52
        s_mov_b32 s{M2}, 0xcccccccc
        s_mov_b32 s{M2 + 1}, 0xcccccccc
        """)
        for r in range(4):
            a(f"v_mov_b32 v{VONE + r}, 0x3f803f80")
    def task(kk):
        if kk == 0:
            for blk in range(2):
                for t in range(8):
                    r = VKB + blk * 32 + 4 * t
                    a(f"ds_read_b128 v[{r}:{r + 3}], v{VKA + (t & 3)} offset:{blk * 8192 + (t >> 2) * 256}")
                if blk == 0:
                    a("s_waitcnt lgkmcnt(4)")
        else:
            j = kk - 1
            for b in range(4):
                for u in range(2):
                    r = VVB + 16 * j + 4 * b + 2 * u
                    a(f"ds_read_b64_tr_b16 v[{r}:{r + 1}], v{VVA + b} offset:{j * 16384 + u * 2048}")
        a(f"s_mov_b32 s{SBG}, {kk + 1}")
        a(f"s_mov_b32 s{STHR}, {24 + 4 * kk}")
    def bg(loop):
        lb = a.label("bg")
        a(f"""
        {lb}:
        s_cmp_ge_u32 s{SBG}, 5
        s_cbranch_scc1 {lb}_x
        ds_read_b32 v1, v{VPRA}
        s_waitcnt lgkmcnt(0)
        v_cmp_le_u32 vcc, s{STHR}, v1
        s_cmp_eq_u64 vcc, -1
        s_cbranch_scc0 {lb}_x
        """)
        for kk in range(5):
            if kk < 4:
                a(f"s_cmp_lg_u32 s{SBG}, {kk}\ns_cbranch_scc1 {lb}_t{kk}")
            task(kk)
            a(f"s_branch {lb if loop else lb + '_x'}")
            if kk < 4:
                a(f"{lb}_t{kk}:")
        a(f"{lb}_x:")
    def ensure(kk, slp=None):
        lb = a.label("ens")
        a(f"s_cmp_gt_u32 s{SBG}, {kk}\ns_cbranch_scc1 {lb}")
        lds_wait(VPRA, 1, f"v_cmp_le_u32 vcc, s{STHR}, v1", "e", slp=slp)
        task(kk)
        a(f"{lb}:")

    a(f"""
    s_mov_b32 s{SSPIN}, {SPIN}
    s_mov_b32 s24, 0
    s_mov_b32 s{SBG}, 0
    s_lshl_b32 s{STHR}, s{SW}, 2
    s_add_u32 s{STHR}, s{STHR}, 8
    """)
    def qloads():
        for qi, sr_ in enumerate((68, 69)):
            a(f"buffer_load_dwordx4 v[{QG + 4 * qi}:{QG + 4 * qi + 3}], v186, s[{SWS}:{SWS + 3}], s{sr_} offen sc1")
    qloads()
    addr_setup()
    a("s_branch L_pollq_issued")
    a("L_pollq:")
    qloads()
    a("L_pollq_issued:")
    if bgon:
        bg(True)
    a(f"""
    s_sub_u32 s{SSPIN}, s{SSPIN}, 1
    s_cbranch_scc1 L_pollq_done
    s_waitcnt vmcnt(0)
    v_cmp_eq_u32 s[54:55], s{STAG}, v{QG + 3}
    v_cmp_eq_u32 vcc, s{STAG}, v{QG + 7}
    s_and_b64 s[54:55], s[54:55], vcc
    """)
    a("s_cmp_eq_u64 s[54:55], -1")
    if qa:
        a(f"""
        s_cbranch_scc1 L_pollq_done
        s_add_u32 s24, s24, 1
        s_cmp_lg_u32 s24, {NA}
        s_cbranch_scc1 L_pollq
        s_add_u32 s68, s68, {W_QB - W_QA}
        s_add_u32 s69, s69, {W_QB - W_QA}
        s_branch L_pollq
        """)
    else:
        a("s_cbranch_scc0 L_pollq")
    a(f"""
    L_pollq_done:
    s_waitcnt vmcnt(0)
    """)
    if cnt:
        a(f"s_mov_b32 s36, s{SSPIN}")
    a(f"""
    s_mov_b32 s52, 0x0504030c
    s_mov_b32 s53, 0x0403020c
    v_lshlrev_b32 v60, 8, v{QG}
    v_perm_b32 v61, v{QG + 1}, v{QG}, s52
    v_perm_b32 v62, v{QG + 2}, v{QG + 1}, s53
    v_and_b32 v63, 0xffffff00, v{QG + 2}
    v_lshlrev_b32 v64, 8, v{QG + 4}
    v_perm_b32 v65, v{QG + 5}, v{QG + 4}, s52
    v_perm_b32 v66, v{QG + 6}, v{QG + 5}, s53
    v_and_b32 v67, 0xffffff00, v{QG + 6}
    v_add_f32 v60, v60, v64
    v_add_f32 v61, v61, v65
    v_add_f32 v62, v62, v66
    v_add_f32 v63, v63, v67
    v_lshrrev_b32 v1, 5, v0
    v_and_b32 v22, 31, v0
    v_permlane32_swap_b32 v60, v61
    v_permlane32_swap_b32 v62, v63
    v_lshlrev_b32 v22, 3, v22
    v_add_f32 v60, v60, v61
    v_add_f32 v62, v62, v63
    v_lshl_add_u32 v22, v1, 1, v22
    s_lshl_b32 s55, s{SW}, 8
    s_add_u32 s55, s55, {L_Q}
    v_cvt_pk_bf16_f32 v60, v60, v62
    v_add_u32 v22, s55, v22
    s_lshl_b32 s55, s{SW}, 2
    s_add_u32 s55, s55, {F_Q}
    v_mov_b32 v1, s55
    v_mov_b32 v23, 1
    ds_write_b16 v22, v60
    ds_write_b16_d16_hi v22, v60 offset:4
    s_mov_b64 exec, 1
    ds_write_b32 v1, v23
    s_mov_b64 exec, -1
    s_and_b32 s52, s{SXCC}, 1
    s_lshr_b32 s53, s{SXCC}, 1
    s_and_b32 s53, s53, 1
    s_lshl_b32 s53, s53, 24
    s_or_b32 s52, s52, s53
    s_lshr_b32 s53, s{SXCC}, 2
    s_and_b32 s53, s53, 1
    s_lshl_b32 s53, s53, 16
    s_lshr_b32 s54, s{SXCC}, 3
    s_and_b32 s54, s54, 1
    s_lshl_b32 s54, s54, 8
    v_xor_b32 v60, s52, v{QG}
    v_xor_b32 v61, s52, v{QG + 4}
    v_xor_b32 v62, s53, v{QG + 1}
    v_xor_b32 v63, s53, v{QG + 5}
    v_xor_b32 v64, s54, v{QG + 2}
    v_xor_b32 v65, s54, v{QG + 6}
    v_or_b32 v60, v60, v61
    v_or_b32 v62, v62, v63
    v_or_b32 v64, v64, v65
    v_and_b32 v60, 0x01000001, v60
    v_and_b32 v62, 0x00010000, v62
    v_and_b32 v64, 0x00000100, v64
    v_or3_b32 v60, v60, v62, v64
    v_cmp_eq_u32 vcc, 0, v60
    v_add_u32 v1, {F_L - F_Q}, v1
    s_cmp_eq_u64 vcc, -1
    s_cselect_b32 s54, 3, 1
    v_mov_b32 v23, s54
    s_mov_b64 exec, 1
    ds_write_b32 v1, v23
    s_mov_b64 exec, -1
    """)
    if warm == 1:
        for kk in range(4):
            a(f"buffer_load_dwordx4 v[{QG + 4 * kk}:{QG + 4 * kk + 3}], v{VOG}, s[{SWS}:{SWS + 3}], s{SOG} offen offset:{kk * 1024} sc1")
    a(f"""
    L_fqw:
    ds_read_b32 v22, v{VFQA}
    s_waitcnt lgkmcnt(0)
    v_cmp_ne_u32 vcc, 0, v22
    s_cmp_eq_u64 vcc, -1
    s_cbranch_scc1 L_fqw_ok
    """)
    if bgon:
        bg(False)
    a(f"""
    {f"s_sleep {fqsleep}" if fqsleep else ""}
    s_branch L_fqw
    L_fqw_ok:
    """)
    for t in range(8):
        a(f"ds_read_b128 v[{VQ + 4 * t}:{VQ + 4 * t + 3}], v{VQA} offset:{t * 64}")
    stamp('e')
    if warm == 3 and wpos == 3:
        late_warm()
    ensure(0)
    a("s_waitcnt lgkmcnt(0)")
    for t in range(8):
        for blk in range(2):
            c = VC + 4 * blk
            r = VKB + blk * 32 + 4 * t
            cin = "0" if t == 0 else f"v[{c}:{c + 3}]"
            a(f"v_mfma_f32_16x16x32_bf16 v[{c}:{c + 3}], v[{VQ + 4 * t}:{VQ + 4 * t + 3}], v[{r}:{r + 3}], {cin}")
    C = 1.4426950408889634 / 16.0
    a(f"""
    s_mov_b32 s52, {f2u(C):#x}
    s_mov_b32 s54, 1
    s_mov_b32 s55, 1
    s_lshl_b32 s53, s{SW}, 2
    s_add_u32 s53, s53, {F_M}
    v_mov_b32 v1, s53
    v_mov_b32 v72, 1
    s_nop 0
    v_cndmask_b32 v22, v{VC}, v{VC + 1}, s[{MHI}:{MHI + 1}]
    v_cndmask_b32 v23, v{VC + 4}, v{VC + 5}, s[{MHI}:{MHI + 1}]
    v_cndmask_b32 v22, v22, v23, s[{MODD}:{MODD + 1}]
    {"v_cvt_pk_bf16_f32 v22, v22, v22" if sround else ""}
    {"v_lshlrev_b32 v22, 16, v22" if sround else ""}
    s_nop 1
    v_max_f32_dpp v23, v22, v22 quad_perm:[1,0,3,2] {DPPM}
    s_nop 1
    v_max_f32_dpp v23, v23, v23 quad_perm:[2,3,0,1] {DPPM}
    s_nop 1
    v_max_f32_dpp v23, v23, v23 row_half_mirror {DPPM}
    s_nop 1
    v_max_f32_dpp v23, v23, v23 row_mirror {DPPM}
    v_mov_b32 v73, v23
    s_nop 1
    v_permlane16_swap_b32 v23, v73
    s_nop 0
    v_max_f32 v23, v23, v73
    s_mov_b64 exec, s[54:55]
    ds_write_b32 v{VMW}, v23
    s_mov_b64 exec, 1
    ds_write_b32 v1, v72
    s_mov_b64 exec, -1
    """)
    stamp('e')
    a(f"""
    L_mw:
    ds_read_b32 v73, v{VFSA}
    ds_read_b128 v[76:79], v{VMR}
    ds_read_b128 v[80:83], v{VMR} offset:16
    s_waitcnt lgkmcnt(0)
    v_cmp_ne_u32 vcc, 0, v73
    s_cmp_eq_u64 vcc, -1
    s_cbranch_scc0 L_mw
    v_max3_f32 v76, v76, v77, v78
    v_max3_f32 v80, v80, v81, v82
    v_max_f32 v76, v76, v79
    v_max_f32 v80, v80, v83
    v_mul_f32 v76, s52, v76
    v_mul_f32 v80, s52, v80
    v_cndmask_b32 v77, v76, v80, s[{MHI}:{MHI + 1}]
    v_fma_f32 v22, v22, s52, -v77
    v_exp_f32 v22, v22
    v_add_u32 v1, 16, v1
    v_cndmask_b32 v{VOUT + 2}, v76, v80, s[{M2}:{M2 + 1}]
    v_cvt_pk_bf16_f32 v22, v22, v22
    ds_write_b16 v{VPW}, v22
    s_mov_b64 exec, 1
    ds_write_b32 v1, v72
    s_mov_b64 exec, -1
    v_mov_b32 v{VOUT + 3}, s{STAG}
    """)
    stamp('e')
    a(f"""
    L_pw:
    ds_read_b32 v73, v{VFSA} offset:16
    ds_read_b32 v74, v{VFQA} offset:{F_L - F_Q}
    """)
    for j in range(4):
        a(f"ds_read_b128 v[{VP + 4 * j}:{VP + 4 * j + 3}], v{VPA} offset:{j * 64}")
    a(f"""
    s_waitcnt lgkmcnt(0)
    v_min_u32 v75, v73, v74
    v_cmp_ne_u32 vcc, 0, v75
    s_cmp_eq_u64 vcc, -1
    s_cbranch_scc0 L_pw
    v_cmp_eq_u32 vcc, 3, v74
    s_cmp_eq_u64 vcc, -1
    s_cselect_b32 s{SLOC}, 1, 0
    """)
    stamp()
    if force_remote:
        a(f"s_mov_b32 s{SLOC}, 0")
    if warm == 3 and wpos == 6:
        late_warm()
    for j in range(4):
        if j == 3 and specv:
            lb = a.label("v3")
            a(f"""
            s_cmp_gt_u32 s{SBG}, 4
            s_cbranch_scc1 {lb}_ok
            {lb}:
            ds_read_b32 v1, v{VPRA}
            """)
            for b in range(4):
                for u in range(2):
                    r = VVB + 48 + 4 * b + 2 * u
                    a(f"ds_read_b64_tr_b16 v[{r}:{r + 1}], v{VVA + b} offset:{3 * 16384 + u * 2048}")
            a(f"""
            s_waitcnt lgkmcnt(0)
            v_cmp_le_u32 vcc, 36, v1
            s_cmp_eq_u64 vcc, -1
            s_cbranch_scc0 {lb}
            {lb}_ok:
            """)
        else:
            ensure(j + 1, slp=(0 if j == 3 else None))
        a("s_waitcnt lgkmcnt(0)")
        if j == 3:
            stamp('t')
        cin = "0" if j == 0 else f"v[{VLA}:{VLA + 3}]"
        a(f"v_mfma_f32_16x16x32_bf16 v[{VLA}:{VLA + 3}], v[{VP + 4 * j}:{VP + 4 * j + 3}], v[{VONE}:{VONE + 3}], {cin}")
        for b in range(4):
            c = VO + 4 * b
            r = VVB + 16 * j + 4 * b
            cin = "0" if j == 0 else f"v[{c}:{c + 3}]"
            a(f"v_mfma_f32_16x16x32_bf16 v[{c}:{c + 3}], v[{VP + 4 * j}:{VP + 4 * j + 3}], v[{r}:{r + 3}], {cin}")
    a(f"""
    s_nop 3
    v_cndmask_b32 v1, v{VLA}, v{VLA + 1}, s[{M2}:{M2 + 1}]
    v_cndmask_b32 v{VOUT + 2}, v{VOUT + 2}, v1, s[{MAA}:{MAA + 1}]
    """)
    for hd in range(2):
        a(f"v_cndmask_b32 v{22 + hd}, v{VO + hd}, v{VO + 4 + hd}, s[{MODD}:{MODD + 1}]")
    for hd in range(2):
        a(f"v_cndmask_b32 v{72 + hd}, v{VO + 8 + hd}, v{VO + 12 + hd}, s[{MODD}:{MODD + 1}]")
    for hd in range(2):
        a(f"v_cndmask_b32 v{VOUT + hd}, v{22 + hd}, v{72 + hd}, s[{MHI}:{MHI + 1}]")
    a(f"""
    s_cmp_eq_u32 s{SLOC}, 0
    s_cbranch_scc1 L_pub_remote
    buffer_store_dwordx4 v[{VOUT}:{VOUT + 3}], v{VOP}, s[{SWS}:{SWS + 3}], s{SOSP} offen
    s_branch L_pub_done
    L_pub_remote:
    buffer_store_dwordx4 v[{VOUT}:{VOUT + 3}], v{VOP}, s[{SWS}:{SWS + 3}], s{SOSP} offen sc1
    L_pub_done:
    """)
    stamp()
    VW = 72
    VRW, VRF, VFSP = 104, 105, 106
    a(f"""
    s_mov_b32 s54, 0x05040100
    s_mov_b32 s55, 0x07060302
    s_lshl_b32 s52, s{SW}, 9
    s_add_u32 s52, s52, {L_RED}
    v_lshl_add_u32 v{VRW}, v0, 3, s52
    v_and_b32 v1, 3, v0
    v_max_u32 v1, 1, v1
    v_lshlrev_b32 v1, 2, v1
    v_add_u32 v{VRF}, {F_R}, v1
    v_lshrrev_b32 v1, 3, v0
    v_lshlrev_b32 v1, 13, v1
    v_and_b32 v22, 7, v0
    v_lshl_add_u32 v{VFSP}, v22, 4, v1
    s_lshl_b32 s52, s{SCB}, 16
    s_lshl_b32 s53, s{SH}, 3
    s_add_u32 s53, s53, s{SRB}
    s_lshl_b32 s53, s53, 7
    s_add_u32 s52, s52, s53
    s_add_u32 s24, s52, {W_FS}
    s_cmp_eq_u32 s{SCB}, 3
    s_cselect_b32 s27, 0, -1
    s_mov_b32 s26, -1
    s_lshl_b32 s52, s{SH}, 3
    s_lshl_b64 s[28:29], 0xff, s52
    s_cmp_eq_u32 s{SLOC}, 0
    s_cselect_b64 s[28:29], 0, s[28:29]
    s_and_b64 s[28:29], s[28:29], s[26:27]
    v_mov_b32 v161, s{STAG}
    v_mov_b32 v163, s{STAG}
    s_lshl_b32 s52, s{SW}, 2
    s_add_u32 s52, s52, {F_R}
    v_mov_b32 v107, s52
    v_mov_b32 v108, 1
    """)
    G = 128
    MX, O0, O1, LA, T = 144, 145, 146, 147, 148
    E = 152
    def wo_prep():
        lds_wait(VPRA, 1, "v_cmp_le_u32 vcc, 40, v1", "wo", slp=0)
        for hd in range(2):
            for jj in range(4):
                r = VW + 8 * hd + 2 * jj
                a(f"ds_read2st64_b32 v[{r}:{r + 1}], v34 offset0:{hd * 32 + 2 * jj} offset1:{hd * 32 + 2 * jj + 1}")
        a("s_waitcnt lgkmcnt(0)")
        for hd in range(2):
            for i in range(4):
                lo, hi = VW + 8 * hd + 2 * i, VW + 8 * hd + 2 * i + 1
                a(f"v_perm_b32 v{88 + 8 * hd + 2 * i}, v{hi}, v{lo}, s54")
                a(f"v_perm_b32 v{89 + 8 * hd + 2 * i}, v{hi}, v{lo}, s55")
    def gloads():
        for kk in range(4):
            a(f"buffer_load_dwordx4 v[{G + 4 * kk}:{G + 4 * kk + 3}], v{VOG}, s[{SWS}:{SWS + 3}], s{SOG} offen offset:{kk * 1024} sc1")
    if wofirst:
        wo_prep()
    if ack1:
        a("s_waitcnt vmcnt(0)")
    else:
        a(f"s_cmp_lg_u32 s{SLOC}, 0\ns_cbranch_scc1 L_noack1\ns_waitcnt vmcnt(0)\nL_noack1:")
    a(f"s_mov_b32 s{SSPIN}, {SPIN}")
    if not wofirst:
        gloads()
        wo_prep()
        a("s_branch L_poll1_issued")
    a("L_poll1:")
    gloads()
    a("L_poll1_issued:")
    a(f"""
    s_sub_u32 s{SSPIN}, s{SSPIN}, 1
    s_cselect_b32 s25, 1, 0
    s_waitcnt vmcnt(0)
    v_max3_f32 v{MX}, v{G + 2}, v{G + 6}, v{G + 10}
    v_max_f32 v{MX}, v{MX}, v{G + 14}
    v_cmp_eq_u32 s[52:53], s{STAG}, v{G + 3}
    v_cmp_eq_u32 vcc, s{STAG}, v{G + 7}
    v_max_f32_dpp v{MX}, v{MX}, v{MX} row_ror:8 {DPPM}
    s_and_b64 s[52:53], s[52:53], vcc
    v_mov_b32 v{T}, v{MX}
    v_cmp_eq_u32 vcc, s{STAG}, v{G + 11}
    s_and_b64 s[52:53], s[52:53], vcc
    v_permlane16_swap_b32 v{MX}, v{T}
    v_cmp_eq_u32 vcc, s{STAG}, v{G + 15}
    v_max_f32 v{MX}, v{MX}, v{T}
    s_and_b64 s[52:53], s[52:53], vcc
    v_mov_b32 v{T}, v{MX}
    s_cmp_eq_u64 s[52:53], -1
    s_cbranch_scc1 L_poll1_done
    s_cmp_eq_u32 s25, 0
    s_cbranch_scc1 L_poll1
    L_poll1_done:
    v_permlane32_swap_b32 v{MX}, v{T}
    s_nop 0
    """)
    if cnt:
        a(f"s_mov_b32 s37, s{SSPIN}")
    stamp()
    a(f"v_max_f32 v{MX}, v{MX}, v{T}")
    for kk in range(4):
        a(f"v_sub_f32 v{E + kk}, v{G + 4 * kk + 2}, v{MX}")
    for kk in range(4):
        a(f"v_exp_f32 v{E + kk}, v{E + kk}")
    a("s_nop 0")
    for kk in range(4):
        op = "v_mul_f32_dpp" if kk == 0 else "v_fmac_f32_dpp"
        a(f"{op} v{O0}, v{E + kk}, v{G + 4 * kk} quad_perm:[0,0,0,0] {DPPM}")
        a(f"{op} v{O1}, v{E + kk}, v{G + 4 * kk + 1} quad_perm:[2,2,2,2] {DPPM}")
        a(f"{op} v{LA}, v{E + kk}, v{G + 4 * kk + 2} quad_perm:[0,0,2,2] {DPPM}")
    a(f"""
    v_mov_b32 v{T}, v{LA}
    s_nop 0
    v_permlane32_swap_b32 v{O0}, v{O1}
    v_permlane32_swap_b32 v{LA}, v{T}
    v_add_f32 v{O0}, v{O0}, v{O1}
    v_add_f32 v{LA}, v{LA}, v{T}
    s_nop 1
    v_permlane16_swap_b32 v{O0}, v{LA}
    s_nop 0
    v_add_f32 v{O0}, v{O0}, v{LA}
    s_nop 1
    v_add_f32_dpp v{O0}, v{O0}, v{O0} row_ror:8 {DPPM}
    s_nop 1
    v_mov_b32_dpp v{T}, v{O0} quad_perm:[1,1,3,3] {DPPM}
    v_rcp_f32 v{LA}, v{O0}
    v_cvt_pk_bf16_f32 v{O1}, v{O0}, v{T}
    s_nop 0
    """)
    for i in range(4):
        a(f"v_readlane_b32 s{SP + i}, v{O1}, {2 * i}")
        a(f"v_readlane_b32 s{SP + 4 + i}, v{O1}, {32 + 2 * i}")
    a(f"v_readlane_b32 s52, v{LA}, 17")
    a(f"v_readlane_b32 s53, v{LA}, 19")
    for i in range(4):
        for hd in range(2):
            for hf in range(2):
                acc = 152 + 2 * hd + hf
                src2 = "0" if i == 0 else f"v{acc}"
                a(f"v_dot2_f32_bf16 v{acc}, s{SP + 4 * hd + i}, v{88 + 8 * hd + 2 * i + hf}, {src2}")
    stamp('t')
    a(f"""
    s_nop 0
    v_mul_f32 v156, s52, v152
    v_mul_f32 v157, s52, v153
    s_nop 0
    v_fmac_f32 v156, s53, v154
    v_fmac_f32 v157, s53, v155
    s_cmp_eq_u32 s{SW}, 0
    s_cbranch_scc1 L_red0
    ds_write_b64 v{VRW}, v[156:157]
    s_mov_b64 exec, 1
    ds_write_b32 v107, v108
    s_mov_b64 exec, -1
    s_cmp_ge_u32 s2, 28
    s_cbranch_scc1 L_fin
    s_branch L_final
    L_red0:
    v_lshlrev_b32 v1, 3, v0
    L_redw:
    ds_read_b32 v22, v{VRF}
    ds_read_b64 v[152:153], v1 offset:{L_RED + 512}
    ds_read_b64 v[154:155], v1 offset:{L_RED + 1024}
    ds_read_b64 v[158:159], v1 offset:{L_RED + 1536}
    s_waitcnt lgkmcnt(0)
    v_cmp_ne_u32 vcc, 0, v22
    s_cmp_eq_u64 vcc, -1
    s_cbranch_scc0 L_redw
    """)
    stamp('t')
    a(f"""
    v_add_f32 v156, v156, v152
    v_add_f32 v157, v157, v153
    v_add_f32 v154, v154, v158
    v_add_f32 v155, v155, v159
    v_add_f32 v160, v156, v154
    v_add_f32 v162, v157, v155
    """)
    if floc:
        a(f"""
        s_andn2_b64 exec, s[26:27], s[28:29]
        buffer_store_dwordx4 v[160:163], v{VFSP}, s[{SWS}:{SWS + 3}], s24 offen sc1
        s_mov_b64 exec, s[28:29]
        s_cbranch_execz L_noloc
        buffer_store_dwordx4 v[160:163], v{VFSP}, s[{SWS}:{SWS + 3}], s24 offen
        L_noloc:
        s_mov_b64 exec, -1
        """)
    else:
        a(f"""
        s_mov_b64 exec, s[26:27]
        buffer_store_dwordx4 v[160:163], v{VFSP}, s[{SWS}:{SWS + 3}], s24 offen sc1
        s_mov_b64 exec, -1
        """)
    stamp('t')
    a(f"""
    s_cmp_ge_u32 s2, 28
    s_cbranch_scc1 L_fin
    """)
    a(f"""
    L_final:
    s_lshl_b32 s52, s2, 13
    s_lshl_b32 s53, s{SW}, 11
    s_add_u32 s52, s52, s53
    s_add_u32 s52, s52, {W_FS}
    v_and_b32 v1, 7, v0
    v_lshlrev_b32 v1, 3, v1
    v_lshrrev_b32 v22, 5, v0
    v_lshl_add_u32 v23, v22, 2, v1
    s_lshl_b32 s53, s{SW}, 6
    s_add_u32 s53, s53, {L_RED + 4096}
    v_add_u32 v23, s53, v23
    v_add_u32 v107, {F_R2 - F_R}, v107
    v_add_u32 v{VRF}, {F_R2 - F_R}, v{VRF}
    s_mov_b32 s54, 0xff
    s_mov_b32 s55, 0xff
    s_mov_b32 s{SSPIN}, {SPIN}
    s_waitcnt vmcnt(0)
    s_barrier
    L_poll2:
    buffer_load_dwordx4 v[128:131], v{VOG}, s[{SWS}:{SWS + 3}], s52 offen sc1
    buffer_load_dwordx4 v[132:135], v{VOG}, s[{SWS}:{SWS + 3}], s52 offen offset:1024 sc1
    s_sub_u32 s{SSPIN}, s{SSPIN}, 1
    s_cselect_b32 s25, 1, 0
    s_waitcnt vmcnt(0)
    v_add_f32 v140, v128, v132
    v_add_f32 v141, v130, v134
    v_cmp_eq_u32 s[26:27], s{STAG}, v129
    v_cmp_eq_u32 vcc, s{STAG}, v131
    v_permlane32_swap_b32 v140, v141
    s_and_b64 s[26:27], s[26:27], vcc
    v_add_f32 v140, v140, v141
    v_cmp_eq_u32 vcc, s{STAG}, v133
    v_mov_b32 v141, v140
    s_and_b64 s[26:27], s[26:27], vcc
    v_cmp_eq_u32 vcc, s{STAG}, v135
    v_permlane16_swap_b32 v140, v141
    s_and_b64 s[26:27], s[26:27], vcc
    v_add_f32 v140, v140, v141
    s_cmp_eq_u64 s[26:27], -1
    s_cbranch_scc1 L_poll2_done
    s_cmp_eq_u32 s25, 0
    s_cbranch_scc1 L_poll2
    L_poll2_done:
    """)
    stamp()
    a(f"""
    v_add_f32_dpp v140, v140, v140 row_ror:8 {DPPM}
    s_mov_b64 exec, s[54:55]
    ds_write_b32 v23, v140
    s_cmp_eq_u32 s{SW}, 0
    s_cbranch_scc1 L_fin0
    s_mov_b64 exec, 1
    ds_write_b32 v107, v108
    s_branch L_fin
    L_fin0:
    s_mov_b64 exec, -1
    s_lshl_b32 s52, s2, 5
    v_lshlrev_b32 v22, 2, v0
    L_finw:
    ds_read_b32 v23, v{VRF}
    ds_read_b64 v[140:141], v1 offset:{L_RED + 4096}
    ds_read_b64 v[142:143], v1 offset:{L_RED + 4096 + 64}
    ds_read_b64 v[144:145], v1 offset:{L_RED + 4096 + 128}
    ds_read_b64 v[146:147], v1 offset:{L_RED + 4096 + 192}
    s_waitcnt lgkmcnt(0)
    v_cmp_ne_u32 vcc, 0, v23
    s_cmp_eq_u64 vcc, -1
    s_cbranch_scc0 L_finw
    """)
    stamp('t')
    a(f"""
    v_add_f32 v140, v140, v142
    v_add_f32 v141, v141, v143
    v_add_f32 v144, v144, v146
    v_add_f32 v145, v145, v147
    v_add_f32 v140, v140, v144
    v_add_f32 v141, v141, v145
    v_cvt_pk_bf16_f32 v140, v140, v141
    s_mov_b64 exec, 0xff
    buffer_store_dword v140, v22, s[{SOUT}:{SOUT + 3}], s52 offen
    s_cmp_lg_u32 s2, 0
    s_cbranch_scc1 L_fin
    s_mov_b64 exec, 1
    v_mov_b32 v2, 0
    v_mov_b32 v3, s{STAG}
    buffer_store_dword v3, v2, s[{SWS}:{SWS + 3}], 0 offen sc1
    L_fin:
    s_mov_b64 exec, -1
    """)
    stamp()
    if cnt and stamps:
        a(f"""
        s_waitcnt lgkmcnt(0)
        s_sub_u32 s52, {SPIN}, s36
        s_add_u32 s{STS + 8}, s{STS}, s52
        s_mov_b32 s{STS + 9}, s{STS + 1}
        s_sub_u32 s52, {SPIN}, s37
        s_add_u32 s{STS + 10}, s{STS}, s52
        s_mov_b32 s{STS + 11}, s{STS + 1}
        """)
    flush_stamps(200, 0, 11, 0)
    a("s_endpgm")

    nst[0] = 1
    SJ, SOF = 66, 67
    VK0, VK1, VV0, VV1, VWQ, VWO, VPA, VPV, VFQ = 4, 5, 6, 7, 8, 9, 10, 11, 12
    a(f"""
    L_loader:
    s_setprio {lprio}
    s_sub_u32 s{SJ}, s{SW}, 4
    v_lshrrev_b32 v1, 3, v0
    v_lshlrev_b32 v2, 13, v1
    v_and_b32 v3, 7, v0
    v_lshrrev_b32 v13, 4, v0
    v_and_b32 v13, 1, v13
    v_lshlrev_b32 v13, 1, v13
    v_xor_b32 v3, v3, v13
    s_and_b32 s52, s{SJ}, 1
    s_lshl_b32 s52, s52, 2
    v_xor_b32 v3, s52, v3
    v_lshl_add_u32 v{VWQ}, v3, 4, v2
    s_lshr_b32 s53, s{SS}, 3
    s_mul_i32 s53, s53, {112 * 8192}
    s_lshl_b32 s54, s{SH}, 10
    s_add_u32 s53, s53, s54
    s_and_b32 s54, s{SS}, 7
    s_lshl_b32 s54, s54, 7
    s_add_u32 s53, s53, s54
    s_lshl_b32 s54, s{SJ}, 16
    s_add_u32 s{SOF}, s53, s54
    s_lshl_b32 s56, s{SJ}, 10
    s_add_u32 s57, s56, {L_WQ}
    s_mov_b32 m0, s57
    v_lshrrev_b32 v1, 5, v0
    v_and_b32 v2, 31, v0
    v_xor_b32 v3, v2, v1
    s_lshl_b32 s52, s{SJ}, 1
    v_xor_b32 v3, s52, v3
    v_lshlrev_b32 v3, 4, v3
    v_lshl_add_u32 v{VK0}, v1, 9, v3
    v_xor_b32 v{VK1}, 128, v{VK0}
    s_waitcnt lgkmcnt(0)
    """)
    srd(SWQ, 10, 11, 3670016)
    n = [0]
    written = [0]
    NTOT = 40
    def depth():
        return D if n[0] < 20 + D else D2
    def prog(cnt):
        a(f"""
        v_mov_b32 v{VPV}, {cnt}
        s_mov_b64 exec, 1
        ds_write_b32 v{VPA}, v{VPV}
        s_mov_b64 exec, -1
        """)
        written[0] = cnt
    landed = [0]
    def lwarm_setup():
        srd(SWS, 18, 19, WS_BYTES)
        a(f"""
        s_lshl_b32 s52, s{SH}, 17
        s_lshl_b32 s53, s{SRB}, 14
        s_add_u32 s52, s52, s53
        s_lshl_b32 s53, s{SJ}, 12
        s_add_u32 s52, s52, s53
        s_lshl_b32 s53, s{SCB}, 10
        s_add_u32 s52, s52, s53
        s_add_u32 s72, s52, {W_OS}
        v_lshlrev_b32 v13, 4, v0
        s_lshl_b32 s53, s2, 13
        s_lshl_b32 s54, s{SH}, 10
        s_add_u32 s53, s53, s54
        s_add_u32 s73, s53, {W_FS}
        s_cmp_lt_u32 s2, 28
        s_cselect_b32 s73, s73, {OOB:#x}
        s_cmp_eq_u32 s{SJ}, 0
        s_cselect_b32 s73, s73, {OOB:#x}
        """)
    def lwarm():
        a(f"buffer_load_dwordx4 v[16:19], v13, s[{SWS}:{SWS + 3}], s72 offen")
        if floc:
            a(f"buffer_load_dwordx4 v[24:27], v13, s[{SWS}:{SWS + 3}], s73 offen")
    def throttle(d):
        if n[0] - landed[0] >= d:
            a(f"s_waitcnt vmcnt({d - 1})")
            landed[0] = n[0] - d + 1
            c4 = landed[0] // 4 * 4
            if c4 > written[0]:
                prog(c4)
    for i in range(4):
        if i == 3:
            a(f"s_cmp_lt_u32 s{SJ}, 2\ns_cselect_b32 s{SOF}, s{SOF}, {OOB:#x}")
        throttle(D)
        a(f"buffer_load_dwordx4 v{VWQ}, s[{SWQ}:{SWQ + 3}], s{SOF} offen nt lds")
        n[0] += 1
        if i < 3:
            a(f"s_add_u32 m0, m0, 4096\ns_add_u32 s{SOF}, s{SOF}, 262144")
        if i == 0:
            srd_off(SK, 6, 7, 68, KVN)
    def setup_rest():
        srd_off(SV, 8, 9, 68, KVN)
        srd(SWO, 12, 13, 3670016)
        a(f"""
        v_lshrrev_b32 v1, 5, v0
        v_and_b32 v2, 31, v0
        v_lshlrev_b32 v3, 1, v1
        v_xor_b32 v3, v3, v2
        s_and_b32 s52, s{SJ}, 1
        s_lshl_b32 s52, s52, 2
        v_xor_b32 v3, s52, v3
        v_lshlrev_b32 v3, 4, v3
        v_lshl_add_u32 v{VV0}, v1, 9, v3
        v_xor_b32 v{VV1}, 128, v{VV0}
        v_lshrrev_b32 v1, 4, v0
        v_mul_u32_u24 v1, 896, v1
        v_and_b32 v2, 15, v0
        v_lshl_add_u32 v{VWO}, v2, 4, v1
        v_cmp_le_u32 vcc, 8, v2
        s_cmp_eq_u32 s{SCB}, 3
        s_cselect_b64 s[52:53], vcc, 0
        v_mov_b32 v1, {OOB:#x}
        v_cndmask_b32 v{VWO}, v{VWO}, v1, s[52:53]
        s_lshl_b32 s52, s{SJ}, 2
        s_add_u32 s52, s52, {F_PROG}
        v_mov_b32 v{VPA}, s52
        v_and_b32 v1, 3, v0
        v_lshlrev_b32 v1, 2, v1
        v_add_u32 v{VFQ}, {F_Q}, v1
        """)
        lwarm_setup()
    if bar4:
        a("s_barrier")
    def kv_first():
        if rho:
            a(f"s_mov_b32 s70, s{SS}")
            if phase:
                a(f"s_mul_i32 s71, s{SH}, {phase * 131072}\ns_and_b32 s71, s71, 0x1fffff\ns_add_u32 s71, s71, s56")
            else:
                a("s_mov_b32 s71, s56")
            a(f"s_lshl_b32 s{SOF}, s70, 12\ns_add_u32 s{SOF}, s{SOF}, s71")
        else:
            a(f"s_mov_b32 s{SOF}, s56")
    def kv_next():
        if rho:
            a(f"""
            s_add_u32 s70, s70, {rho}
            s_and_b32 s70, s70, 31
            s_add_u32 s71, s71, 131072
            {"s_and_b32 s71, s71, 0x1fffff" if phase else ""}
            s_lshl_b32 s{SOF}, s70, 12
            s_add_u32 s{SOF}, s{SOF}, s71
            """)
        else:
            a(f"s_add_u32 s{SOF}, s{SOF}, {KVSTEP}")
    a("s_mov_b32 m0, s56")
    kv_first()
    for i in range(16):
        throttle(D)
        a(f"buffer_load_dwordx4 v{VK0 + (i & 1)}, s[{SK}:{SK + 3}], s{SOF} offen nt lds")
        n[0] += 1
        a("s_add_u32 m0, m0, 4096")
        kv_next()
        if n[0] == D:
            setup_rest()
            if not bar4:
                a("s_barrier")
            stamp()
            if early4:
                a(f"s_waitcnt vmcnt({D - 4})")
                landed[0] = 4
                prog(4)
    a(f"s_add_u32 m0, s56, {L_V}")
    kv_first()
    for i in range(16):
        throttle(D2)
        a(f"buffer_load_dwordx4 v{VV0 + (i & 1)}, s[{SV}:{SV + 3}], s{SOF} offen nt lds")
        n[0] += 1
        a("s_add_u32 m0, m0, 4096")
        kv_next()
    stamp()
    a(f"""
    s_lshl_b32 s52, s{SH}, 9
    s_lshl_b32 s53, s{SRB}, 5
    s_add_u32 s52, s52, s53
    s_lshl_b32 s53, s{SJ}, 2
    s_add_u32 s52, s52, s53
    s_mul_i32 s52, s52, 896
    s_lshl_b32 s53, s{SCB}, 8
    s_add_u32 s{SOF}, s52, s53
    s_add_u32 m0, s56, {L_WO}
    """)
    lds_wait(VFQ, 1, "v_cmp_ne_u32 vcc, 0, v1", "lfq")
    for i in range(4):
        throttle(D2)
        a(f"buffer_load_dwordx4 v{VWO}, s[{SWO}:{SWO + 3}], s{SOF} offen nt lds")
        n[0] += 1
        if i < 3:
            step = 16 * 896 if i != 1 else 256 * 896 - 16 * 896
            a(f"s_add_u32 m0, m0, 4096\ns_add_u32 s{SOF}, s{SOF}, {step}")
    extra = 0
    if warm == 4:
        lwarm()
        extra = 2 if floc else 1
    stamp()
    thr = written[0] + 4
    a("s_setprio 3\ns_mov_b64 exec, 1")
    while thr <= NTOT:
        rv = VPV if (thr // 4) & 1 else 14
        a(f"v_mov_b32 v{rv}, {thr}")
        a(f"s_waitcnt vmcnt({NTOT - thr + extra})")
        a(f"ds_write_b32 v{VPA}, v{rv}")
        if thr == 36 and tail:
            stamp()
        thr += 4
    a("s_mov_b64 exec, -1")
    stamp()
    if dirty:
        srd(SWS, 18, 19, WS_BYTES)
        a(f"""
        s_lshl_b32 s52, s2, 2
        s_add_u32 s52, s52, s{SJ}
        s_mul_i32 s52, s52, {dirty * 1024}
        s_add_u32 s52, s52, {5 << 20}
        v_lshlrev_b32 v13, 4, v0
        """)
        for i in range(dirty):
            a(f"buffer_store_dwordx4 v[16:19], v13, s[{SWS}:{SWS + 3}], s52 offen")
            a("s_add_u32 s52, s52, 1024")
    flush_stamps(20, 11, 4, 4)
    a("s_endpgm")
    a("L_end:")
    a("s_endpgm")
    a('.section .rodata,"a"')
    a(".p2align 6")
    out = HEADER + f"; @launch grid=(256,1,1) block=(512,1,1) lds={LDS_BYTES}\n" + OVERVIEW + a.text() + kernel_desc(k, 256, 102)
    return out

if __name__ == "__main__":
    kw = {}
    for x in sys.argv[2:]:
        key, val = x.lstrip("-").split("=") if "=" in x else (x.lstrip("-"), "1")
        kw[key] = int(val)
    open(sys.argv[1], "w").write(gen(**kw))
```

```python
import struct, sys
from asmlib import *

def f2u(x):
    return struct.unpack("<I", struct.pack("<f", x))[0]

L_K, L_V, L_WQ, L_Q, L_S, L_FL = 0, 65536, 131072, 147456, 148480, 149504
L_WO = L_WQ
L_RED = 0
LDS_BYTES = 149760
F_PROG, F_Q, F_M, F_P, F_R, L_TAG, F_R2, F_L = L_FL, L_FL + 16, L_FL + 32, L_FL + 48, L_FL + 64, L_FL + 80, L_FL + 96, L_FL + 112
L_P, L_MX = L_S, L_S + 512
W_QA, W_OS, W_FS, W_QB, W_TS = 65536, 262144, 1310720, 1572864, 4 << 20
WS_BYTES = 8 << 20
TAG_INC = 0x9E3779B1
SPIN = 200000
OOB = 0x40000000

OVERVIEW = """;
;           workgroups of a head as 16-byte granules {4 x 24-bit value, tag}.  Copy A is stored plainly (read through
;   o:      granules {o head0, o head1, max or sum, tag}; consumer (rb = s >> 2, wave) merges the 32 partial results of
;
"""

def gen(stamps=False, D=8, force_remote=False, warm=4, sleep=1, dbg=-1, qa=1, NA=3, qack=0, pretouch=0, ack2=1, D2=8, qprog=0, early4=1, cnt=0, xq=0, bar4=1, lprio=0, cprio=3, bgon=1, qjunk=1, ack1=1, wpol=0, wpos=6, tail=0, specv=1, rsleep=0, fdelay=0, wat=40, wofirst=0, dirty=0, ilv=1, phase=0, floc=1, qwarm=1, psleep=0, remap=0, rho=11, pad=0, align=0, ffuse=1, locmerge=1, fqsleep=0, mwsleep=0, sround=1, vbar=1, wobg=1, wearly=0):
    assert 5 <= D <= 20
    D2 = D2 or D
    KVN = (2097152 if rho else 1970176) if ilv else 65536
    KVSTEP = 131072 if ilv else 4096
    a = Asm()
    k = NAME + "_kernel"
    SH, SS, SW, STAG = 20, 21, 22, 23
    SK, SV, SWQ, SX, SWO, SWS, SOUT = 24, 28, 32, 36, 40, 44, 48
    MODD, MHI, MAA = 58, 60, 62
    SXCC, SLOC = 64, 65
    SP = 66
    SSPIN, SRB, SCB = 74, 75, 76
    SOG = 77
    STS = 78
    SOSP, SQP = (56, 57)
    nst = [0]
    def stamp(kind="n"):
        if kind == "e" and tail:
            return
        if kind == "t" and not tail:
            return
        if stamps:
            a(f"s_memrealtime s[{STS + 2 * nst[0]}:{STS + 2 * nst[0] + 1}]")
            nst[0] += 1
    def flush_stamps(vtmp, base=0, cnt=12, wave=0):
        if not stamps:
            return
        if dbg >= 0:
            lb = a.label("dbg")
            a(f"""
            s_waitcnt lgkmcnt(0)
            s_cmp_lg_u32 s2, {dbg}
            s_cbranch_scc1 {lb}
            s_cmp_lg_u32 s{SW}, {wave}
            s_cbranch_scc1 {lb}
            s_mov_b32 s52, s16
            s_and_b32 s53, s17, 0xffff
            s_mov_b32 s54, 256
            s_mov_b32 s55, 0x20000
            s_mov_b64 exec, 1
            """)
            for i in range(cnt):
                a(f"s_sub_u32 s56, s{STS + 2 * (i + 1)}, s{STS}")
                a(f"v_mov_b32 v{vtmp}, s56")
                a(f"v_mov_b32 v{vtmp + 2}, {4 * (base + i)}")
                a(f"buffer_store_dword v{vtmp}, v{vtmp + 2}, s[52:55], 0 offen")
                a("s_nop 1")
            a(f"{lb}:")
            a("s_mov_b64 exec, -1")
            return
        a(f"""
        s_waitcnt lgkmcnt(0)
        s_mov_b32 s{SWS}, s18
        s_and_b32 s{SWS + 1}, s19, 0xffff
        s_mov_b32 s{SWS + 2}, {WS_BYTES}
        s_mov_b32 s{SWS + 3}, 0x20000
        s_lshl_b32 s52, s2, 3
        s_add_u32 s52, s52, s{SW}
        s_lshl_b32 s52, s52, 7
        s_add_u32 s52, s52, {W_TS}
        s_mov_b64 exec, 1
        """)
        for i in range(12):
            a(f"v_mov_b32 v{vtmp}, s{STS + 2 * i}")
            a(f"v_mov_b32 v{vtmp + 1}, s{STS + 2 * i + 1}")
            a(f"v_mov_b32 v{vtmp + 2}, {8 * i}")
            a(f"buffer_store_dwordx2 v[{vtmp}:{vtmp + 1}], v{vtmp + 2}, s[{SWS}:{SWS + 3}], s52 offen")
            a("s_nop 1")
        a("s_mov_b64 exec, -1")
    def lds_wait(addr_v, tmp, cmp, name, slp=None, off=0):
        slp = sleep if slp is None else slp
        lb = a.label(name)
        a(f"""
        {lb}:
        ds_read_b32 v{tmp}, v{addr_v} offset:{off}
        s_waitcnt lgkmcnt(0)
        {cmp}
        s_cmp_eq_u64 vcc, -1
        """)
        if slp:
            a(f"""
            s_cbranch_scc1 {lb}_ok
            s_sleep {slp}
            s_branch {lb}
            {lb}_ok:
            """)
        else:
            a(f"s_cbranch_scc0 {lb}")
    def srd(reg, lo, hi, size):
        a(f"""
        s_mov_b32 s{reg}, s{lo}
        s_and_b32 s{reg + 1}, s{hi}, 0xffff
        s_mov_b32 s{reg + 2}, {size}
        s_mov_b32 s{reg + 3}, 0x20000
        """)
    def srd_off(reg, lo, hi, off, size):
        a(f"""
        s_add_u32 s{reg}, s{lo}, s{off}
        s_addc_u32 s{reg + 1}, s{hi}, 0
        s_and_b32 s{reg + 1}, s{reg + 1}, 0xffff
        s_mov_b32 s{reg + 2}, {size}
        s_mov_b32 s{reg + 3}, 0x20000
        """)
    def swapb(op, reg, tmp, kinds):
        for kind in kinds:
            a(f"v_mov_b32 v{tmp}, v{reg}")
            a("s_nop 1")
            a(f"v_permlane{kind}_swap_b32 v{reg}, v{tmp}")
            a("s_nop 0")
            a(f"{op} v{reg}, v{reg}, v{tmp}")
    DPPM = "row_mask:0xf bank_mask:0xf"

    a(f"""
    .amdgcn_target "amdgcn-amd-amdhsa--gfx950"
    .text
    .globl {k}
    .p2align 8
    .type {k},@function
    {k}:
    s_cmp_ge_u32 s2, 256
    s_cbranch_scc1 L_end
    s_load_dwordx16 s[4:19], s[0:1], 0
    """)
    for _ in range(pad):
        a("s_nop 0")
    if stamps:
        for i in range(78, 102):
            a(f"s_mov_b32 s{i}, 0")
    stamp()
    a(f"""
    v_lshrrev_b32 v1, 6, v0
    {"s_lshr_b32" if remap else "s_and_b32"} s{SH}, s2, {5 if remap else 7}
    {"s_and_b32" if remap else "s_lshr_b32"} s{SS}, s2, {31 if remap else 3}
    v_readfirstlane_b32 s{SW}, v1
    v_and_b32 v0, 63, v0
    s_lshr_b32 s{SRB}, s{SS}, 2
    s_and_b32 s{SCB}, s{SS}, 3
    s_lshl_b32 s52, s{SH}, 25
    s_add_u32 s68, s52, 31457280
    s_cmp_ge_u32 s{SW}, 4
    s_cbranch_scc1 L_loader
    """)

    VN, VG = 2, 3
    VPRA, VFQA, VFSA, VOG = 4, 5, 6, 7
    XA = 8
    VZ = 180
    VOP, VQPO = 184, 185
    a(f"""
    s_setprio {cprio}
    s_getreg_b32 s{SXCC}, hwreg(HW_REG_XCC_ID, 0, 4)
    v_and_b32 v{VN}, 15, v0
    v_lshrrev_b32 v{VG}, 4, v0
    s_lshr_b32 s52, s{SS}, 3
    s_mul_i32 s52, s52, 224
    v_lshl_add_u32 v1, v{VG}, 4, s52
    v_lshl_add_u32 v22, v{VG}, 3, s52
    v_mov_b32 v{VZ}, 0
    v_lshrrev_b32 v23, 3, v0
    v_lshlrev_b32 v23, 12, v23
    v_and_b32 v26, 7, v0
    v_lshl_add_u32 v{VOP}, v26, 4, v23
    v_lshlrev_b32 v{VQPO}, 2, v0
    v_lshlrev_b32 v{VOG}, 4, v0
    s_lshl_b32 s53, s{SH}, 17
    s_lshl_b32 s54, s{SW}, 15
    s_add_u32 s53, s53, s54
    s_lshl_b32 s54, s{SS}, 7
    s_add_u32 s53, s53, s54
    s_add_u32 s{SOSP}, s53, {W_OS}
    s_lshl_b32 s53, s{SH}, 13
    s_lshr_b32 s54, s{SS}, 3
    s_lshl_b32 s54, s54, 11
    s_add_u32 s53, s53, s54
    s_and_b32 s54, s{SS}, 7
    s_lshl_b32 s54, s54, 8
    s_add_u32 s53, s53, s54
    s_lshl_b32 s54, s{SW}, 6
    s_add_u32 s{SQP}, s53, s54
    s_cmp_lg_u32 s{SW}, 0
    s_cbranch_scc1 L_noinit
    v_lshlrev_b32 v27, 2, v0
    v_add_u32 v27, {L_FL}, v27
    s_mov_b64 exec, 0xffffffff
    ds_write_b32 v27, v{VZ}
    s_mov_b64 exec, -1
    L_noinit:
    s_waitcnt lgkmcnt(0)
    """)
    srd(SX, 4, 5, 896)
    a(f"""
    s_load_dword s{STAG}, s[18:19], 0
    buffer_load_dwordx4 v[{XA}:{XA + 3}], v1, s[{SX}:{SX + 3}], 0 offen
    buffer_load_dwordx4 v[{XA + 4}:{XA + 7}], v1, s[{SX}:{SX + 3}], 0 offen offset:64
    buffer_load_dwordx4 v[{XA + 8}:{XA + 11}], v1, s[{SX}:{SX + 3}], 0 offen offset:128
    buffer_load_dwordx2 v[{XA + 12}:{XA + 13}], v22, s[{SX}:{SX + 3}], 0 offen offset:192
    s_barrier
    """)
    srd(SWS, 18, 19, WS_BYTES)
    srd(SOUT, 14, 15, 896)
    nlater = 0
    if qa and qwarm:
        a(f"""
        s_add_u32 s52, s{SQP}, {W_QA}
        s_mov_b64 exec, 0xf
        buffer_load_dwordx4 v[176:179], v{VOG}, s[{SWS}:{SWS + 3}], s52 offen
        s_mov_b64 exec, -1
        """)
        nlater += 1
    if warm == 2:
        a(f"buffer_store_dwordx4 v[{VZ}:{VZ + 3}], v{VOP}, s[{SWS}:{SWS + 3}], s{SOSP} offen")
        nlater += 1
    if pretouch:
        a(f"""
        s_add_u32 s52, s8, s68
        s_addc_u32 s53, s9, 0
        s_lshl_b32 s54, s{SH}, 9
        s_lshl_b32 s55, s{SRB}, 5
        s_add_u32 s54, s54, s55
        s_mul_i32 s54, s54, 896
        s_add_u32 s54, s12, s54
        s_addc_u32 s55, s13, 0
        s_cmp_eq_u32 s{SW}, 1
        s_cselect_b32 s{SV}, s52, s14
        s_cselect_b32 s{SV + 1}, s53, s15
        s_cmp_eq_u32 s{SW}, 2
        s_cselect_b32 s{SV}, s54, s{SV}
        s_cselect_b32 s{SV + 1}, s55, s{SV + 1}
        s_and_b32 s{SV + 1}, s{SV + 1}, 0xffff
        s_mov_b32 s{SV + 2}, 4
        s_mov_b32 s{SV + 3}, 0x20000
        s_mov_b64 exec, 1
        buffer_load_dword v176, v{VZ}, s[{SV}:{SV + 3}], 0 offen nt
        s_mov_b64 exec, -1
        """)
        nlater += 1
    a(f"""
    s_mov_b32 s{MODD}, 0xffff0000
    s_mov_b32 s{MODD + 1}, 0xffff0000
    s_mov_b32 s{MHI}, 0
    s_mov_b32 s{MHI + 1}, -1
    s_mov_b32 s{MAA}, 0xaaaaaaaa
    s_mov_b32 s{MAA + 1}, 0xaaaaaaaa
    v_and_b32 v1, 3, v0
    v_lshlrev_b32 v1, 2, v1
    v_add_u32 v{VPRA}, {F_PROG}, v1
    v_add_u32 v{VFQA}, {F_Q}, v1
    v_add_u32 v{VFSA}, {F_M}, v1
    """)
    VWA, VWA2 = 24, 25
    a(f"""
    v_lshrrev_b32 v1, 2, v{VN}
    v_and_b32 v27, 3, v{VN}
    v_lshl_add_u32 v22, v{VG}, 3, v1
    v_lshlrev_b32 v22, 7, v22
    v_lshl_add_u32 v22, v27, 3, v22
    v_lshrrev_b32 v23, 1, v1
    v_and_b32 v26, 1, v{VG}
    v_lshl_add_u32 v26, v26, 1, v23
    v_xor_b32 v26, s{SW}, v26
    v_lshl_add_u32 v22, v26, 5, v22
    v_add_u32 v{VWA}, {L_WQ}, v22
    v_lshl_add_u32 v22, v{VG}, 2, v1
    v_lshlrev_b32 v22, 7, v22
    v_lshl_add_u32 v22, v27, 3, v22
    v_lshrrev_b32 v26, 1, v{VG}
    v_lshl_add_u32 v26, v26, 1, v23
    v_xor_b32 v26, s{SW}, v26
    v_lshl_add_u32 v22, v26, 5, v22
    v_add_u32 v{VWA2}, {L_WQ + 96 * 128}, v22
    s_lshl_b32 s52, s{SH}, 13
    s_lshl_b32 s53, s{SW}, 9
    s_add_u32 s52, s52, s53
    s_add_u32 s68, s52, {W_QA if qa else W_QB}
    s_add_u32 s69, s68, 4096
    v_lshrrev_b32 v1, 5, v0
    v_and_b32 v22, 31, v0
    v_lshlrev_b32 v22, 4, v22
    v_lshl_add_u32 v186, v1, 11, v22
    v_and_b32 v22, 3, v0
    v_lshrrev_b32 v187, v22, s{SXCC}
    v_and_b32 v187, 1, v187
    v_lshlrev_b32 v187, 8, v187
    s_mov_b32 s24, 0x05030201
    s_mov_b32 s25, 0x06050302
    s_mov_b32 s26, 0x07060503
    s_mov_b32 s27, 0xfffffe00
    s_lshl_b32 s52, s{SH}, 17
    s_lshl_b32 s53, s{SRB}, 14
    s_add_u32 s52, s52, s53
    s_lshl_b32 s53, s{SW}, 12
    s_add_u32 s52, s52, s53
    s_add_u32 s{SOG}, s52, {W_OS}
    """)
    lds_wait(VPRA, 1, "v_cmp_le_u32 vcc, 4, v1", "wq")
    stamp('e')
    WB = 28
    for t in range(3):
        for u in range(2):
            r = WB + 4 * t + 2 * u
            a(f"ds_read_b64_tr_b16 v[{r}:{r + 1}], v{VWA} offset:{t * 4096 + u * 512}")
    a(f"ds_read_b64_tr_b16 v[{WB + 12}:{WB + 13}], v{VWA2}")
    QC, QC2 = 44, 48
    a(f"s_waitcnt vmcnt({nlater}) lgkmcnt(0)")
    a(f"v_mfma_f32_16x16x16_bf16 v[{QC2}:{QC2 + 3}], v[{XA + 12}:{XA + 13}], v[{WB + 12}:{WB + 13}], 0")
    for t in range(3):
        cin = "0" if t == 0 else f"v[{QC}:{QC + 3}]"
        a(f"v_mfma_f32_16x16x32_bf16 v[{QC}:{QC + 3}], v[{XA + 4 * t}:{XA + 4 * t + 3}], v[{WB + 4 * t}:{WB + 4 * t + 3}], {cin}")
    a(f"""
    s_add_u32 s{STAG}, s{STAG}, {TAG_INC:#x}
    s_or_b32 s{STAG}, s{STAG}, 1
    s_add_u32 s52, s{SQP}, {W_QA}
    s_add_u32 s53, s{SQP}, {W_QB}
    s_nop 4
    v_add_f32 v56, v{QC}, v{QC2}
    v_add_u32 v56, 0x100, v56
    v_and_or_b32 v56, v56, s27, v187
    v_mov_b32 v51, s{STAG}
    s_nop 0
    v_mov_b32_dpp v52, v56 quad_perm:[0,0,0,0] {DPPM}
    v_mov_b32_dpp v53, v56 quad_perm:[1,1,1,1] {DPPM}
    v_mov_b32_dpp v54, v56 quad_perm:[2,2,2,2] {DPPM}
    v_mov_b32_dpp v55, v56 quad_perm:[3,3,3,3] {DPPM}
    v_perm_b32 v48, v53, v52, s24
    v_perm_b32 v49, v54, v53, s25
    v_perm_b32 v50, v55, v54, s26
    s_mov_b64 exec, 0x1111
    """)
    if qa:
        a(f"buffer_store_dwordx4 v[48:51], v{VQPO}, s[{SWS}:{SWS + 3}], s52 offen")
    a(f"""
    buffer_store_dwordx4 v[48:51], v{VQPO}, s[{SWS}:{SWS + 3}], s53 offen sc1
    s_mov_b64 exec, -1
    """)
    if qack or not qa:
        a("s_waitcnt vmcnt(0)")
    if qprog:
        lds_wait(VPRA, 1, f"v_cmp_le_u32 vcc, {qprog}, v1", "qp")
    stamp('e')
    QG = 52
    VQA, VKA, VVA = 26, 28, 36
    VPW, VMW, VMR, VPA = 32, 33, 35, 27
    VQ, VKB, VC = 72, 104, 168
    VVB = 192
    VP, VONE, VO, VLA, VOUT = 52, 40, 144, 160, 124
    SBG, STHR = 73, 72
    M2 = 30
    def late_warm():
        pol = ["", " sc1", " nt", " sc1 nt"][wpol]
        a(f"""
        s_lshl_b32 s52, s{SCB}, 10
        s_add_u32 s52, s52, s{SOG}
        buffer_load_dwordx4 v[176:179], v{VOG}, s[{SWS}:{SWS + 3}], s52 offen{pol}
        """)
    def addr_setup():
        a(f"""
        v_and_b32 v1, 1, v{VN}
        v_lshlrev_b32 v22, 9, v1
        v_lshl_add_u32 v22, v{VG}, 4, v22
        v_add_u32 v{VQA}, {L_Q}, v22
        v_lshlrev_b32 v22, 8, v1
        v_lshl_add_u32 v22, v{VG}, 4, v22
        v_add_u32 v{VPA}, {L_P}, v22
        v_xor_b32 v1, v{VG}, v{VN}
        v_lshlrev_b32 v1, 4, v1
        v_lshl_add_u32 v1, v{VN}, 9, v1
        s_lshl_b32 s52, s{SW}, 14
        v_add_u32 v{VKA}, s52, v1
        """)
        for t in range(1, 4):
            a(f"v_xor_b32 v{VKA + t}, {t << 6}, v{VKA}")
        a(f"""
        v_lshrrev_b32 v1, 2, v{VN}
        v_and_b32 v22, 3, v{VN}
        v_lshl_add_u32 v23, v{VG}, 3, v1
        v_lshlrev_b32 v23, 9, v23
        v_lshl_add_u32 v23, v22, 3, v23
        v_and_b32 v22, 1, v{VG}
        v_lshl_add_u32 v1, v22, 2, v1
        s_lshl_b32 s52, s{SW}, 2
        v_xor_b32 v1, s52, v1
        v_lshl_add_u32 v23, v1, 5, v23
        v_add_u32 v{VVA}, {L_V}, v23
        """)
        for b in range(1, 4):
            a(f"v_xor_b32 v{VVA + b}, {b << 5}, v{VVA}")
        a(f"""
        v_lshrrev_b32 v1, 5, v0
        v_and_b32 v22, 31, v0
        v_lshlrev_b32 v23, 8, v1
        v_lshl_add_u32 v23, v22, 1, v23
        s_lshl_b32 s52, s{SW}, 6
        s_add_u32 s52, s52, {L_P}
        v_add_u32 v{VPW}, s52, v23
        s_lshl_b32 s52, s{SW}, 2
        s_add_u32 s52, s52, {L_MX}
        v_lshl_add_u32 v{VMW}, v1, 4, s52
        v_mov_b32 v{VMR}, {L_MX}
        s_lshl_b32 s52, s{SW}, 11
        s_add_u32 s52, s52, {L_WO}
        v_lshl_add_u32 v34, v0, 2, s52
        s_mov_b32 s{M2}, 0xcccccccc
        s_mov_b32 s{M2 + 1}, 0xcccccccc
        """)
        for r in range(4):
            a(f"v_mov_b32 v{VONE + r}, 0x3f803f80")
    def task(kk):
        if kk == 0:
            for blk in range(2):
                for t in range(8):
                    r = VKB + blk * 32 + 4 * t
                    a(f"ds_read_b128 v[{r}:{r + 3}], v{VKA + (t & 3)} offset:{blk * 8192 + (t >> 2) * 256}")
                if blk == 0:
                    a("s_waitcnt lgkmcnt(4)")
        else:
            j = kk - 1
            for b in range(4):
                for u in range(2):
                    r = VVB + 16 * j + 4 * b + 2 * u
                    a(f"ds_read_b64_tr_b16 v[{r}:{r + 1}], v{VVA + b} offset:{j * 16384 + u * 2048}")
        a(f"s_mov_b32 s{SBG}, {kk + 1}")
        a(f"s_mov_b32 s{STHR}, {24 + 4 * kk}")
    def bg(loop):
        lb = a.label("bg")
        a(f"""
        {lb}:
        s_cmp_ge_u32 s{SBG}, 5
        s_cbranch_scc1 {lb}_x
        ds_read_b32 v1, v{VPRA}
        s_waitcnt lgkmcnt(0)
        v_cmp_le_u32 vcc, s{STHR}, v1
        s_cmp_eq_u64 vcc, -1
        s_cbranch_scc0 {lb}_x
        """)
        for kk in range(5):
            if kk < 4:
                a(f"s_cmp_lg_u32 s{SBG}, {kk}\ns_cbranch_scc1 {lb}_t{kk}")
            task(kk)
            a(f"s_branch {lb if loop else lb + '_x'}")
            if kk < 4:
                a(f"{lb}_t{kk}:")
        a(f"{lb}_x:")
    def ensure(kk, slp=None):
        lb = a.label("ens")
        a(f"s_cmp_gt_u32 s{SBG}, {kk}\ns_cbranch_scc1 {lb}")
        lds_wait(VPRA, 1, f"v_cmp_le_u32 vcc, s{STHR}, v1", "e", slp=slp)
        task(kk)
        a(f"{lb}:")

    a(f"""
    s_mov_b32 s{SSPIN}, {SPIN}
    s_mov_b32 s24, 0
    s_mov_b32 s{SBG}, 0
    s_lshl_b32 s{STHR}, s{SW}, 2
    s_add_u32 s{STHR}, s{STHR}, 8
    """)
    def qloads():
        for qi, sr_ in enumerate((68, 69)):
            a(f"buffer_load_dwordx4 v[{QG + 4 * qi}:{QG + 4 * qi + 3}], v186, s[{SWS}:{SWS + 3}], s{sr_} offen sc1")
    qloads()
    addr_setup()
    a("s_branch L_pollq_issued")
    a("L_pollq:")
    qloads()
    a("L_pollq_issued:")
    if bgon:
        bg(True)
    a(f"""
    s_sub_u32 s{SSPIN}, s{SSPIN}, 1
    s_cbranch_scc1 L_pollq_done
    s_waitcnt vmcnt(0)
    v_cmp_eq_u32 s[54:55], s{STAG}, v{QG + 3}
    v_cmp_eq_u32 vcc, s{STAG}, v{QG + 7}
    s_and_b64 s[54:55], s[54:55], vcc
    """)
    a("s_cmp_eq_u64 s[54:55], -1")
    if qa:
        a(f"""
        s_cbranch_scc1 L_pollq_done
        s_add_u32 s24, s24, 1
        s_cmp_lg_u32 s24, {NA}
        s_cbranch_scc1 L_pollq
        s_add_u32 s68, s68, {W_QB - W_QA}
        s_add_u32 s69, s69, {W_QB - W_QA}
        s_branch L_pollq
        """)
    else:
        a("s_cbranch_scc0 L_pollq")
    a(f"""
    L_pollq_done:
    s_waitcnt vmcnt(0)
    """)
    if cnt:
        a(f"s_mov_b32 s36, s{SSPIN}")
    a(f"""
    s_mov_b32 s52, 0x0504030c
    s_mov_b32 s53, 0x0403020c
    v_lshlrev_b32 v60, 8, v{QG}
    v_perm_b32 v61, v{QG + 1}, v{QG}, s52
    v_perm_b32 v62, v{QG + 2}, v{QG + 1}, s53
    v_and_b32 v63, 0xffffff00, v{QG + 2}
    v_lshlrev_b32 v64, 8, v{QG + 4}
    v_perm_b32 v65, v{QG + 5}, v{QG + 4}, s52
    v_perm_b32 v66, v{QG + 6}, v{QG + 5}, s53
    v_and_b32 v67, 0xffffff00, v{QG + 6}
    v_add_f32 v60, v60, v64
    v_add_f32 v61, v61, v65
    v_add_f32 v62, v62, v66
    v_add_f32 v63, v63, v67
    v_lshrrev_b32 v1, 5, v0
    v_and_b32 v22, 31, v0
    v_permlane32_swap_b32 v60, v61
    v_permlane32_swap_b32 v62, v63
    v_lshlrev_b32 v22, 3, v22
    v_add_f32 v60, v60, v61
    v_add_f32 v62, v62, v63
    v_lshl_add_u32 v22, v1, 1, v22
    s_lshl_b32 s55, s{SW}, 8
    s_add_u32 s55, s55, {L_Q}
    v_cvt_pk_bf16_f32 v60, v60, v62
    v_add_u32 v22, s55, v22
    s_lshl_b32 s55, s{SW}, 2
    s_add_u32 s55, s55, {F_Q}
    v_mov_b32 v1, s55
    v_mov_b32 v23, 1
    ds_write_b16 v22, v60
    ds_write_b16_d16_hi v22, v60 offset:4
    s_mov_b64 exec, 1
    ds_write_b32 v1, v23
    s_mov_b64 exec, -1
    s_and_b32 s52, s{SXCC}, 1
    s_lshr_b32 s53, s{SXCC}, 1
    s_and_b32 s53, s53, 1
    s_lshl_b32 s53, s53, 24
    s_or_b32 s52, s52, s53
    s_lshr_b32 s53, s{SXCC}, 2
    s_and_b32 s53, s53, 1
    s_lshl_b32 s53, s53, 16
    s_lshr_b32 s54, s{SXCC}, 3
    s_and_b32 s54, s54, 1
    s_lshl_b32 s54, s54, 8
    v_xor_b32 v60, s52, v{QG}
    v_xor_b32 v61, s52, v{QG + 4}
    v_xor_b32 v62, s53, v{QG + 1}
    v_xor_b32 v63, s53, v{QG + 5}
    v_xor_b32 v64, s54, v{QG + 2}
    v_xor_b32 v65, s54, v{QG + 6}
    v_or_b32 v60, v60, v61
    v_or_b32 v62, v62, v63
    v_or_b32 v64, v64, v65
    v_and_b32 v60, 0x01000001, v60
    v_and_b32 v62, 0x00010000, v62
    v_and_b32 v64, 0x00000100, v64
    v_or3_b32 v60, v60, v62, v64
    v_cmp_eq_u32 vcc, 0, v60
    v_add_u32 v1, {F_L - F_Q}, v1
    s_cmp_eq_u64 vcc, -1
    s_cselect_b32 s54, 3, 1
    v_mov_b32 v23, s54
    s_mov_b64 exec, 1
    ds_write_b32 v1, v23
    s_mov_b64 exec, -1
    """)
    if warm == 1:
        for kk in range(4):
            a(f"buffer_load_dwordx4 v[{QG + 4 * kk}:{QG + 4 * kk + 3}], v{VOG}, s[{SWS}:{SWS + 3}], s{SOG} offen offset:{kk * 1024} sc1")
    a(f"""
    L_fqw:
    ds_read_b32 v22, v{VFQA}
    s_waitcnt lgkmcnt(0)
    v_cmp_ne_u32 vcc, 0, v22
    s_cmp_eq_u64 vcc, -1
    s_cbranch_scc1 L_fqw_ok
    """)
    if bgon:
        bg(False)
    a(f"""
    {f"s_sleep {fqsleep}" if fqsleep else ""}
    s_branch L_fqw
    L_fqw_ok:
    """)
    for t in range(8):
        a(f"ds_read_b128 v[{VQ + 4 * t}:{VQ + 4 * t + 3}], v{VQA} offset:{t * 64}")
    stamp('e')
    if warm == 3 and wpos == 3:
        late_warm()
    ensure(0)
    a("s_waitcnt lgkmcnt(0)")
    for t in range(8):
        for blk in range(2):
            c = VC + 4 * blk
            r = VKB + blk * 32 + 4 * t
            cin = "0" if t == 0 else f"v[{c}:{c + 3}]"
            a(f"v_mfma_f32_16x16x32_bf16 v[{c}:{c + 3}], v[{VQ + 4 * t}:{VQ + 4 * t + 3}], v[{r}:{r + 3}], {cin}")
    C = 1.4426950408889634 / 16.0
    a(f"""
    s_mov_b32 s52, {f2u(C):#x}
    s_mov_b32 s54, 1
    s_mov_b32 s55, 1
    s_lshl_b32 s53, s{SW}, 2
    s_add_u32 s53, s53, {F_M}
    v_mov_b32 v1, s53
    v_mov_b32 v72, 1
    s_nop 0
    v_cndmask_b32 v22, v{VC}, v{VC + 1}, s[{MHI}:{MHI + 1}]
    v_cndmask_b32 v23, v{VC + 4}, v{VC + 5}, s[{MHI}:{MHI + 1}]
    v_cndmask_b32 v22, v22, v23, s[{MODD}:{MODD + 1}]
    {"v_cvt_pk_bf16_f32 v22, v22, v22" if sround else ""}
    {"v_lshlrev_b32 v22, 16, v22" if sround else ""}
    s_nop 1
    v_max_f32_dpp v23, v22, v22 quad_perm:[1,0,3,2] {DPPM}
    s_nop 1
    v_max_f32_dpp v23, v23, v23 quad_perm:[2,3,0,1] {DPPM}
    s_nop 1
    v_max_f32_dpp v23, v23, v23 row_half_mirror {DPPM}
    s_nop 1
    v_max_f32_dpp v23, v23, v23 row_mirror {DPPM}
    v_mov_b32 v73, v23
    s_nop 1
    v_permlane16_swap_b32 v23, v73
    s_nop 0
    v_max_f32 v23, v23, v73
    s_mov_b64 exec, s[54:55]
    ds_write_b32 v{VMW}, v23
    s_mov_b64 exec, 1
    ds_write_b32 v1, v72
    s_mov_b64 exec, -1
    """)
    stamp('e')
    a(f"""
    L_mw:
    ds_read_b32 v73, v{VFSA}
    ds_read_b128 v[76:79], v{VMR}
    ds_read_b128 v[80:83], v{VMR} offset:16
    s_waitcnt lgkmcnt(0)
    v_cmp_ne_u32 vcc, 0, v73
    s_cmp_eq_u64 vcc, -1
    s_cbranch_scc0 L_mw
    v_max3_f32 v76, v76, v77, v78
    v_max3_f32 v80, v80, v81, v82
    v_max_f32 v76, v76, v79
    v_max_f32 v80, v80, v83
    v_mul_f32 v76, s52, v76
    v_mul_f32 v80, s52, v80
    v_cndmask_b32 v77, v76, v80, s[{MHI}:{MHI + 1}]
    v_fma_f32 v22, v22, s52, -v77
    v_exp_f32 v22, v22
    v_add_u32 v1, 16, v1
    v_cndmask_b32 v{VOUT + 2}, v76, v80, s[{M2}:{M2 + 1}]
    v_cvt_pk_bf16_f32 v22, v22, v22
    ds_write_b16 v{VPW}, v22
    s_mov_b64 exec, 1
    ds_write_b32 v1, v72
    s_mov_b64 exec, -1
    v_mov_b32 v{VOUT + 3}, s{STAG}
    """)
    stamp('e')
    a(f"""
    L_pw:
    ds_read_b32 v73, v{VFSA} offset:16
    ds_read_b32 v74, v{VFQA} offset:{F_L - F_Q}
    """)
    for j in range(4):
        a(f"ds_read_b128 v[{VP + 4 * j}:{VP + 4 * j + 3}], v{VPA} offset:{j * 64}")
    a(f"""
    s_waitcnt lgkmcnt(0)
    v_min_u32 v75, v73, v74
    v_cmp_ne_u32 vcc, 0, v75
    s_cmp_eq_u64 vcc, -1
    s_cbranch_scc0 L_pw
    v_cmp_eq_u32 vcc, 3, v74
    s_cmp_eq_u64 vcc, -1
    s_cselect_b32 s{SLOC}, 1, 0
    """)
    stamp()
    if force_remote:
        a(f"s_mov_b32 s{SLOC}, 0")
    if warm == 3 and wpos == 6:
        late_warm()
    for j in range(4):
        if j == 3 and vbar:
            lb = a.label("v3")
            a(f"v_mfma_f32_16x16x32_bf16 v[{VLA}:{VLA + 3}], v[{VP + 12}:{VP + 15}], v[{VONE}:{VONE + 3}], v[{VLA}:{VLA + 3}]")
            a("s_nop 7")
            a(f"v_cndmask_b32 v1, v{VLA}, v{VLA + 1}, s[{M2}:{M2 + 1}]")
            a(f"v_cndmask_b32 v{VOUT + 2}, v{VOUT + 2}, v1, s[{MAA}:{MAA + 1}]")
            a(f"s_barrier\ns_cmp_gt_u32 s{SBG}, 4\ns_cbranch_scc1 {lb}_ok")
            for b in range(4):
                for u in range(2):
                    r = VVB + 48 + 4 * b + 2 * u
                    a(f"ds_read_b64_tr_b16 v[{r}:{r + 1}], v{VVA + b} offset:{3 * 16384 + u * 2048}")
            a(f"{lb}_ok:")
        elif j == 3 and specv:
            lb = a.label("v3")
            a(f"""
            s_cmp_gt_u32 s{SBG}, 4
            s_cbranch_scc1 {lb}_ok
            {lb}:
            ds_read_b32 v1, v{VPRA}
            """)
            for b in range(4):
                for u in range(2):
                    r = VVB + 48 + 4 * b + 2 * u
                    a(f"ds_read_b64_tr_b16 v[{r}:{r + 1}], v{VVA + b} offset:{3 * 16384 + u * 2048}")
            a(f"""
            s_waitcnt lgkmcnt(0)
            v_cmp_le_u32 vcc, 36, v1
            s_cmp_eq_u64 vcc, -1
            s_cbranch_scc0 {lb}
            {lb}_ok:
            """)
        else:
            ensure(j + 1, slp=(0 if j == 3 else None))
        if not (j == 3 and vbar):
            a("s_waitcnt lgkmcnt(0)")
        if j == 3:
            stamp('t')
        cin = "0" if j == 0 else f"v[{VLA}:{VLA + 3}]"
        if not (j == 3 and vbar):
            a(f"v_mfma_f32_16x16x32_bf16 v[{VLA}:{VLA + 3}], v[{VP + 4 * j}:{VP + 4 * j + 3}], v[{VONE}:{VONE + 3}], {cin}")
        for b in range(4):
            c = VO + 4 * b
            r = VVB + 16 * j + 4 * b
            cin = "0" if j == 0 else f"v[{c}:{c + 3}]"
            if j == 3 and vbar:
                a(f"s_waitcnt lgkmcnt({6 - 2 * b})")
            a(f"v_mfma_f32_16x16x32_bf16 v[{c}:{c + 3}], v[{VP + 4 * j}:{VP + 4 * j + 3}], v[{r}:{r + 3}], {cin}")
    if vbar:
        a("s_nop 5")
    else:
        a(f"""
        s_nop 3
        v_cndmask_b32 v1, v{VLA}, v{VLA + 1}, s[{M2}:{M2 + 1}]
        v_cndmask_b32 v{VOUT + 2}, v{VOUT + 2}, v1, s[{MAA}:{MAA + 1}]
        """)
    for hd in range(2):
        a(f"v_cndmask_b32 v{22 + hd}, v{VO + hd}, v{VO + 4 + hd}, s[{MODD}:{MODD + 1}]")
    for hd in range(2):
        a(f"v_cndmask_b32 v{72 + hd}, v{VO + 8 + hd}, v{VO + 12 + hd}, s[{MODD}:{MODD + 1}]")
    for hd in range(2):
        a(f"v_cndmask_b32 v{VOUT + hd}, v{22 + hd}, v{72 + hd}, s[{MHI}:{MHI + 1}]")
    a(f"""
    s_cmp_eq_u32 s{SLOC}, 0
    s_cbranch_scc1 L_pub_remote
    buffer_store_dwordx4 v[{VOUT}:{VOUT + 3}], v{VOP}, s[{SWS}:{SWS + 3}], s{SOSP} offen
    s_branch L_pub_done
    L_pub_remote:
    buffer_store_dwordx4 v[{VOUT}:{VOUT + 3}], v{VOP}, s[{SWS}:{SWS + 3}], s{SOSP} offen sc1
    L_pub_done:
    """)
    stamp()
    VW = 72
    VRW, VRF, VFSP = 104, 105, 106
    a(f"""
    s_mov_b32 s54, 0x05040100
    s_mov_b32 s55, 0x07060302
    s_lshl_b32 s52, s{SW}, 9
    s_add_u32 s52, s52, {L_RED}
    v_lshl_add_u32 v{VRW}, v0, 3, s52
    v_and_b32 v1, 3, v0
    v_max_u32 v1, 1, v1
    v_lshlrev_b32 v1, 2, v1
    v_add_u32 v{VRF}, {F_R}, v1
    v_lshrrev_b32 v1, 3, v0
    v_lshlrev_b32 v1, 13, v1
    v_and_b32 v22, 7, v0
    v_lshl_add_u32 v{VFSP}, v22, 4, v1
    s_lshl_b32 s52, s{SCB}, 16
    s_lshl_b32 s53, s{SH}, 3
    s_add_u32 s53, s53, s{SRB}
    s_lshl_b32 s53, s53, 7
    s_add_u32 s52, s52, s53
    s_add_u32 s24, s52, {W_FS}
    s_cmp_eq_u32 s{SCB}, 3
    s_cselect_b32 s27, 0, -1
    s_mov_b32 s26, -1
    s_lshl_b32 s52, s{SH}, 3
    s_lshl_b64 s[28:29], 0xff, s52
    s_cmp_eq_u32 s{SLOC}, 0
    s_cselect_b64 s[28:29], 0, s[28:29]
    s_and_b64 s[28:29], s[28:29], s[26:27]
    v_mov_b32 v161, s{STAG}
    v_mov_b32 v163, s{STAG}
    s_lshl_b32 s52, s{SW}, 2
    s_add_u32 s52, s52, {F_R}
    v_mov_b32 v107, s52
    v_mov_b32 v108, 1
    """)
    G = 128
    MX, O0, O1, LA, T = 144, 145, 146, 147, 148
    E = 152
    def wo_prep():
        lds_wait(VPRA, 1, "v_cmp_le_u32 vcc, 40, v1", "wo", slp=0)
        for hd in range(2):
            for jj in range(4):
                r = VW + 8 * hd + 2 * jj
                a(f"ds_read2st64_b32 v[{r}:{r + 1}], v34 offset0:{hd * 32 + 2 * jj} offset1:{hd * 32 + 2 * jj + 1}")
        a("s_waitcnt lgkmcnt(0)")
        for hd in range(2):
            for i in range(4):
                lo, hi = VW + 8 * hd + 2 * i, VW + 8 * hd + 2 * i + 1
                a(f"v_perm_b32 v{88 + 8 * hd + 2 * i}, v{hi}, v{lo}, s54")
                a(f"v_perm_b32 v{89 + 8 * hd + 2 * i}, v{hi}, v{lo}, s55")
    def gloads():
        for kk in range(4):
            a(f"buffer_load_dwordx4 v[{G + 4 * kk}:{G + 4 * kk + 3}], v{VOG}, s[{SWS}:{SWS + 3}], s{SOG} offen offset:{kk * 1024} sc1")
    def wo_reads():
        for hd in range(2):
            for jj in range(4):
                r = VW + 8 * hd + 2 * jj
                a(f"ds_read2st64_b32 v[{r}:{r + 1}], v34 offset0:{hd * 32 + 2 * jj} offset1:{hd * 32 + 2 * jj + 1}")
    if not wobg:
        if wofirst:
            wo_prep()
    a("s_waitcnt vmcnt(0)")
    a(f"s_mov_b32 s{SSPIN}, {SPIN}")
    if wobg:
        a(f"""
        s_mov_b32 s36, 0
        L_poll1:
        """)
        gloads()
        a(f"""
        s_cmp_lg_u32 s36, 0
        s_cbranch_scc1 L_poll1_issued
        ds_read_b32 v1, v{VPRA}
        s_waitcnt lgkmcnt(0)
        v_cmp_le_u32 vcc, 40, v1
        s_cmp_eq_u64 vcc, -1
        s_cbranch_scc0 L_poll1_issued
        """)
        wo_reads()
        a("s_mov_b32 s36, 1")
        a("L_poll1_issued:")
    else:
        if not wofirst:
            gloads()
            wo_prep()
            a("s_branch L_poll1_issued")
        a("L_poll1:")
        gloads()
        a("L_poll1_issued:")
    a(f"""
    s_sub_u32 s{SSPIN}, s{SSPIN}, 1
    s_cselect_b32 s25, 1, 0
    s_waitcnt vmcnt(0)
    v_max3_f32 v{MX}, v{G + 2}, v{G + 6}, v{G + 10}
    v_max_f32 v{MX}, v{MX}, v{G + 14}
    v_cmp_eq_u32 s[52:53], s{STAG}, v{G + 3}
    v_cmp_eq_u32 vcc, s{STAG}, v{G + 7}
    v_max_f32_dpp v{MX}, v{MX}, v{MX} row_ror:8 {DPPM}
    s_and_b64 s[52:53], s[52:53], vcc
    v_mov_b32 v{T}, v{MX}
    v_cmp_eq_u32 vcc, s{STAG}, v{G + 11}
    s_and_b64 s[52:53], s[52:53], vcc
    v_permlane16_swap_b32 v{MX}, v{T}
    v_cmp_eq_u32 vcc, s{STAG}, v{G + 15}
    v_max_f32 v{MX}, v{MX}, v{T}
    s_and_b64 s[52:53], s[52:53], vcc
    v_mov_b32 v{T}, v{MX}
    s_cmp_eq_u64 s[52:53], -1
    s_cbranch_scc1 L_poll1_done
    s_cmp_eq_u32 s25, 0
    s_cbranch_scc1 L_poll1
    L_poll1_done:
    v_permlane32_swap_b32 v{MX}, v{T}
    """)
    if cnt:
        a(f"s_mov_b32 s37, s{SSPIN}")
    perm = []
    if wobg:
        a(f"s_cmp_lg_u32 s36, 0\ns_cbranch_scc1 L_wo_have")
        lds_wait(VPRA, 1, "v_cmp_le_u32 vcc, 40, v1", "wo", slp=0)
        wo_reads()
        a("L_wo_have:")
        for hd in range(2):
            for i in range(4):
                lo, hi = VW + 8 * hd + 2 * i, VW + 8 * hd + 2 * i + 1
                perm.append(f"v_perm_b32 v{88 + 8 * hd + 2 * i}, v{hi}, v{lo}, s54")
                perm.append(f"v_perm_b32 v{89 + 8 * hd + 2 * i}, v{hi}, v{lo}, s55")
    else:
        a("s_nop 0")
    def fill(n):
        for _ in range(n):
            a(perm.pop(0) if perm else "s_nop 0")
    stamp()
    a(f"v_max_f32 v{MX}, v{MX}, v{T}")
    for kk in range(4):
        a(f"v_sub_f32 v{E + kk}, v{G + 4 * kk + 2}, v{MX}")
    for kk in range(4):
        a(f"v_exp_f32 v{E + kk}, v{E + kk}")
    if wobg:
        a("s_waitcnt lgkmcnt(0)")
    else:
        a("s_nop 0")
    for kk in range(4):
        op = "v_mul_f32_dpp" if kk == 0 else "v_fmac_f32_dpp"
        a(f"{op} v{O0}, v{E + kk}, v{G + 4 * kk} quad_perm:[0,0,0,0] {DPPM}")
        a(f"{op} v{O1}, v{E + kk}, v{G + 4 * kk + 1} quad_perm:[2,2,2,2] {DPPM}")
        a(f"{op} v{LA}, v{E + kk}, v{G + 4 * kk + 2} quad_perm:[0,0,2,2] {DPPM}")
    a(f"v_mov_b32 v{T}, v{LA}")
    fill(1)
    a(f"v_permlane32_swap_b32 v{O0}, v{O1}")
    a(f"v_permlane32_swap_b32 v{LA}, v{T}")
    a(f"v_add_f32 v{O0}, v{O0}, v{O1}")
    a(f"v_add_f32 v{LA}, v{LA}, v{T}")
    fill(2)
    a(f"v_permlane16_swap_b32 v{O0}, v{LA}")
    fill(1)
    a(f"v_add_f32 v{O0}, v{O0}, v{LA}")
    fill(2)
    a(f"v_add_f32_dpp v{O0}, v{O0}, v{O0} row_ror:8 {DPPM}")
    fill(2)
    a(f"v_mov_b32_dpp v{T}, v{O0} quad_perm:[1,1,3,3] {DPPM}")
    a(f"v_rcp_f32 v{LA}, v{O0}")
    a(f"v_cvt_pk_bf16_f32 v{O1}, v{O0}, v{T}")
    fill(1)
    for i in range(4):
        a(f"v_readlane_b32 s{SP + i}, v{O1}, {2 * i}")
        a(f"v_readlane_b32 s{SP + 4 + i}, v{O1}, {32 + 2 * i}")
    a(f"v_readlane_b32 s52, v{LA}, 17")
    a(f"v_readlane_b32 s53, v{LA}, 19")
    fill(len(perm))
    for i in range(4):
        for hd in range(2):
            for hf in range(2):
                acc = 152 + 2 * hd + hf
                src2 = "0" if i == 0 else f"v{acc}"
                a(f"v_dot2_f32_bf16 v{acc}, s{SP + 4 * hd + i}, v{88 + 8 * hd + 2 * i + hf}, {src2}")
    stamp('t')
    a(f"""
    s_nop 0
    v_mul_f32 v156, s52, v152
    v_mul_f32 v157, s52, v153
    s_nop 0
    v_fmac_f32 v156, s53, v154
    v_fmac_f32 v157, s53, v155
    s_cmp_eq_u32 s{SW}, 0
    s_cbranch_scc1 L_red0
    ds_write_b64 v{VRW}, v[156:157]
    s_mov_b64 exec, 1
    ds_write_b32 v107, v108
    s_mov_b64 exec, -1
    s_cmp_ge_u32 s2, 28
    s_cbranch_scc1 L_fin
    s_branch L_final
    L_red0:
    v_lshlrev_b32 v1, 3, v0
    L_redw:
    ds_read_b32 v22, v{VRF}
    ds_read_b64 v[152:153], v1 offset:{L_RED + 512}
    ds_read_b64 v[154:155], v1 offset:{L_RED + 1024}
    ds_read_b64 v[158:159], v1 offset:{L_RED + 1536}
    s_waitcnt lgkmcnt(0)
    v_cmp_ne_u32 vcc, 0, v22
    s_cmp_eq_u64 vcc, -1
    s_cbranch_scc0 L_redw
    """)
    stamp('t')
    a(f"""
    v_add_f32 v156, v156, v152
    v_add_f32 v157, v157, v153
    v_add_f32 v154, v154, v158
    v_add_f32 v155, v155, v159
    v_add_f32 v160, v156, v154
    v_add_f32 v162, v157, v155
    """)
    if floc:
        a(f"""
        s_andn2_b64 exec, s[26:27], s[28:29]
        buffer_store_dwordx4 v[160:163], v{VFSP}, s[{SWS}:{SWS + 3}], s24 offen sc1
        s_mov_b64 exec, s[28:29]
        s_cbranch_execz L_noloc
        buffer_store_dwordx4 v[160:163], v{VFSP}, s[{SWS}:{SWS + 3}], s24 offen
        L_noloc:
        s_mov_b64 exec, -1
        """)
    else:
        a(f"""
        s_mov_b64 exec, s[26:27]
        buffer_store_dwordx4 v[160:163], v{VFSP}, s[{SWS}:{SWS + 3}], s24 offen sc1
        s_mov_b64 exec, -1
        """)
    stamp('t')
    a(f"""
    s_cmp_ge_u32 s2, 28
    s_cbranch_scc1 L_fin
    """)
    a(f"""
    L_final:
    s_lshl_b32 s52, s2, 13
    s_lshl_b32 s53, s{SW}, 11
    s_add_u32 s52, s52, s53
    s_add_u32 s52, s52, {W_FS}
    v_and_b32 v1, 7, v0
    v_lshlrev_b32 v1, 3, v1
    v_lshrrev_b32 v22, 5, v0
    v_lshl_add_u32 v23, v22, 2, v1
    s_lshl_b32 s53, s{SW}, 6
    s_add_u32 s53, s53, {L_RED + 4096}
    v_add_u32 v23, s53, v23
    v_add_u32 v107, {F_R2 - F_R}, v107
    v_add_u32 v{VRF}, {F_R2 - F_R}, v{VRF}
    s_mov_b32 s54, 0xff
    s_mov_b32 s55, 0xff
    s_mov_b32 s{SSPIN}, {SPIN}
    s_waitcnt vmcnt(0)
    s_barrier
    L_poll2:
    buffer_load_dwordx4 v[128:131], v{VOG}, s[{SWS}:{SWS + 3}], s52 offen sc1
    buffer_load_dwordx4 v[132:135], v{VOG}, s[{SWS}:{SWS + 3}], s52 offen offset:1024 sc1
    s_sub_u32 s{SSPIN}, s{SSPIN}, 1
    s_cselect_b32 s25, 1, 0
    s_waitcnt vmcnt(0)
    v_add_f32 v140, v128, v132
    v_add_f32 v141, v130, v134
    v_cmp_eq_u32 s[26:27], s{STAG}, v129
    v_cmp_eq_u32 vcc, s{STAG}, v131
    v_permlane32_swap_b32 v140, v141
    s_and_b64 s[26:27], s[26:27], vcc
    v_add_f32 v140, v140, v141
    v_cmp_eq_u32 vcc, s{STAG}, v133
    v_mov_b32 v141, v140
    s_and_b64 s[26:27], s[26:27], vcc
    v_cmp_eq_u32 vcc, s{STAG}, v135
    v_permlane16_swap_b32 v140, v141
    s_and_b64 s[26:27], s[26:27], vcc
    v_add_f32 v140, v140, v141
    s_cmp_eq_u64 s[26:27], -1
    s_cbranch_scc1 L_poll2_done
    s_cmp_eq_u32 s25, 0
    s_cbranch_scc1 L_poll2
    L_poll2_done:
    """)
    stamp()
    a(f"""
    v_add_f32_dpp v140, v140, v140 row_ror:8 {DPPM}
    s_mov_b64 exec, s[54:55]
    ds_write_b32 v23, v140
    s_cmp_eq_u32 s{SW}, 0
    s_cbranch_scc1 L_fin0
    s_mov_b64 exec, 1
    ds_write_b32 v107, v108
    s_branch L_fin
    L_fin0:
    s_mov_b64 exec, -1
    s_lshl_b32 s52, s2, 5
    v_lshlrev_b32 v22, 2, v0
    L_finw:
    ds_read_b32 v23, v{VRF}
    ds_read_b64 v[140:141], v1 offset:{L_RED + 4096}
    ds_read_b64 v[142:143], v1 offset:{L_RED + 4096 + 64}
    ds_read_b64 v[144:145], v1 offset:{L_RED + 4096 + 128}
    ds_read_b64 v[146:147], v1 offset:{L_RED + 4096 + 192}
    s_waitcnt lgkmcnt(0)
    v_cmp_ne_u32 vcc, 0, v23
    s_cmp_eq_u64 vcc, -1
    s_cbranch_scc0 L_finw
    """)
    stamp('t')
    a(f"""
    v_add_f32 v140, v140, v142
    v_add_f32 v141, v141, v143
    v_add_f32 v144, v144, v146
    v_add_f32 v145, v145, v147
    v_add_f32 v140, v140, v144
    v_add_f32 v141, v141, v145
    v_cvt_pk_bf16_f32 v140, v140, v141
    s_mov_b64 exec, 0xff
    buffer_store_dword v140, v22, s[{SOUT}:{SOUT + 3}], s52 offen
    s_cmp_lg_u32 s2, 0
    s_cbranch_scc1 L_fin
    s_mov_b64 exec, 1
    v_mov_b32 v2, 0
    v_mov_b32 v3, s{STAG}
    buffer_store_dword v3, v2, s[{SWS}:{SWS + 3}], 0 offen sc1
    L_fin:
    s_mov_b64 exec, -1
    """)
    stamp()
    if cnt and stamps:
        a(f"""
        s_waitcnt lgkmcnt(0)
        s_sub_u32 s52, {SPIN}, s36
        s_add_u32 s{STS + 8}, s{STS}, s52
        s_mov_b32 s{STS + 9}, s{STS + 1}
        s_sub_u32 s52, {SPIN}, s37
        s_add_u32 s{STS + 10}, s{STS}, s52
        s_mov_b32 s{STS + 11}, s{STS + 1}
        """)
    flush_stamps(200, 0, 11, 0)
    a("s_endpgm")

    nst[0] = 1
    SJ, SOF = 66, 67
    VK0, VK1, VV0, VV1, VWQ, VWO, VPA, VPV, VFQ = 4, 5, 6, 7, 8, 9, 10, 11, 12
    a(f"""
    L_loader:
    s_setprio {lprio}
    s_sub_u32 s{SJ}, s{SW}, 4
    v_lshrrev_b32 v1, 3, v0
    v_lshlrev_b32 v2, 13, v1
    v_and_b32 v3, 7, v0
    v_lshrrev_b32 v13, 4, v0
    v_and_b32 v13, 1, v13
    v_lshlrev_b32 v13, 1, v13
    v_xor_b32 v3, v3, v13
    s_and_b32 s52, s{SJ}, 1
    s_lshl_b32 s52, s52, 2
    v_xor_b32 v3, s52, v3
    v_lshl_add_u32 v{VWQ}, v3, 4, v2
    s_lshr_b32 s53, s{SS}, 3
    s_mul_i32 s53, s53, {112 * 8192}
    s_lshl_b32 s54, s{SH}, 10
    s_add_u32 s53, s53, s54
    s_and_b32 s54, s{SS}, 7
    s_lshl_b32 s54, s54, 7
    s_add_u32 s53, s53, s54
    s_lshl_b32 s54, s{SJ}, 16
    s_add_u32 s{SOF}, s53, s54
    s_lshl_b32 s56, s{SJ}, 10
    s_add_u32 s57, s56, {L_WQ}
    s_mov_b32 m0, s57
    v_lshrrev_b32 v1, 5, v0
    v_and_b32 v2, 31, v0
    v_xor_b32 v3, v2, v1
    s_lshl_b32 s52, s{SJ}, 1
    v_xor_b32 v3, s52, v3
    v_lshlrev_b32 v3, 4, v3
    v_lshl_add_u32 v{VK0}, v1, 9, v3
    v_xor_b32 v{VK1}, 128, v{VK0}
    s_waitcnt lgkmcnt(0)
    """)
    srd(SWQ, 10, 11, 3670016)
    n = [0]
    written = [0]
    NTOT = 40
    def depth():
        return D if n[0] < 20 + D else D2
    def prog(cnt):
        a(f"""
        v_mov_b32 v{VPV}, {cnt}
        s_mov_b64 exec, 1
        ds_write_b32 v{VPA}, v{VPV}
        s_mov_b64 exec, -1
        """)
        written[0] = cnt
    landed = [0]
    def lwarm_setup():
        srd(SWS, 18, 19, WS_BYTES)
        a(f"""
        s_lshl_b32 s52, s{SH}, 17
        s_lshl_b32 s53, s{SRB}, 14
        s_add_u32 s52, s52, s53
        s_lshl_b32 s53, s{SJ}, 12
        s_add_u32 s52, s52, s53
        s_lshl_b32 s53, s{SCB}, 10
        s_add_u32 s52, s52, s53
        s_add_u32 s72, s52, {W_OS}
        v_lshlrev_b32 v13, 4, v0
        s_lshl_b32 s53, s2, 13
        s_lshl_b32 s54, s{SH}, 10
        s_add_u32 s53, s53, s54
        s_add_u32 s73, s53, {W_FS}
        s_cmp_lt_u32 s2, 28
        s_cselect_b32 s73, s73, {OOB:#x}
        s_cmp_eq_u32 s{SJ}, 0
        s_cselect_b32 s73, s73, {OOB:#x}
        """)
    def lwarm():
        if not wearly:
            a(f"buffer_load_dwordx4 v[16:19], v13, s[{SWS}:{SWS + 3}], s72 offen")
        if floc:
            a(f"buffer_load_dwordx4 v[24:27], v13, s[{SWS}:{SWS + 3}], s73 offen")
    def throttle(d, younger=0):
        if n[0] - landed[0] >= d:
            a(f"s_waitcnt vmcnt({d - 1 + younger})")
            landed[0] = n[0] - d + 1
            c4 = landed[0] // 4 * 4
            if c4 > written[0]:
                prog(c4)
    for i in range(4):
        if i == 3:
            a(f"s_cmp_lt_u32 s{SJ}, 2\ns_cselect_b32 s{SOF}, s{SOF}, {OOB:#x}")
        throttle(D)
        a(f"buffer_load_dwordx4 v{VWQ}, s[{SWQ}:{SWQ + 3}], s{SOF} offen nt lds")
        n[0] += 1
        if i < 3:
            a(f"s_add_u32 m0, m0, 4096\ns_add_u32 s{SOF}, s{SOF}, 262144")
        if i == 0:
            srd_off(SK, 6, 7, 68, KVN)
    def setup_rest():
        srd_off(SV, 8, 9, 68, KVN)
        srd(SWO, 12, 13, 3670016)
        a(f"""
        v_lshrrev_b32 v1, 5, v0
        v_and_b32 v2, 31, v0
        v_lshlrev_b32 v3, 1, v1
        v_xor_b32 v3, v3, v2
        s_and_b32 s52, s{SJ}, 1
        s_lshl_b32 s52, s52, 2
        v_xor_b32 v3, s52, v3
        v_lshlrev_b32 v3, 4, v3
        v_lshl_add_u32 v{VV0}, v1, 9, v3
        v_xor_b32 v{VV1}, 128, v{VV0}
        v_lshrrev_b32 v1, 4, v0
        v_mul_u32_u24 v1, 896, v1
        v_and_b32 v2, 15, v0
        v_lshl_add_u32 v{VWO}, v2, 4, v1
        v_cmp_le_u32 vcc, 8, v2
        s_cmp_eq_u32 s{SCB}, 3
        s_cselect_b64 s[52:53], vcc, 0
        v_mov_b32 v1, {OOB:#x}
        v_cndmask_b32 v{VWO}, v{VWO}, v1, s[52:53]
        s_lshl_b32 s52, s{SJ}, 2
        s_add_u32 s52, s52, {F_PROG}
        v_mov_b32 v{VPA}, s52
        v_and_b32 v1, 3, v0
        v_lshlrev_b32 v1, 2, v1
        v_add_u32 v{VFQ}, {F_Q}, v1
        """)
        lwarm_setup()
    if bar4:
        a("s_barrier")
    def kv_first():
        if rho:
            a(f"s_mov_b32 s70, s{SS}")
            if phase:
                a(f"s_mul_i32 s71, s{SH}, {phase * 131072}\ns_and_b32 s71, s71, 0x1fffff\ns_add_u32 s71, s71, s56")
            else:
                a("s_mov_b32 s71, s56")
            a(f"s_lshl_b32 s{SOF}, s70, 12\ns_add_u32 s{SOF}, s{SOF}, s71")
        else:
            a(f"s_mov_b32 s{SOF}, s56")
    def kv_next():
        if rho:
            a(f"""
            s_add_u32 s70, s70, {rho}
            s_and_b32 s70, s70, 31
            s_add_u32 s71, s71, 131072
            {"s_and_b32 s71, s71, 0x1fffff" if phase else ""}
            s_lshl_b32 s{SOF}, s70, 12
            s_add_u32 s{SOF}, s{SOF}, s71
            """)
        else:
            a(f"s_add_u32 s{SOF}, s{SOF}, {KVSTEP}")
    a("s_mov_b32 m0, s56")
    kv_first()
    for i in range(16):
        throttle(D)
        a(f"buffer_load_dwordx4 v{VK0 + (i & 1)}, s[{SK}:{SK + 3}], s{SOF} offen nt lds")
        n[0] += 1
        a("s_add_u32 m0, m0, 4096")
        kv_next()
        if n[0] == D:
            setup_rest()
            if not bar4:
                a("s_barrier")
            stamp()
            if early4:
                a(f"s_waitcnt vmcnt({D - 4})")
                landed[0] = 4
                prog(4)
    a(f"s_add_u32 m0, s56, {L_V}")
    kv_first()
    for i in range(16):
        throttle(D2)
        a(f"buffer_load_dwordx4 v{VV0 + (i & 1)}, s[{SV}:{SV + 3}], s{SOF} offen nt lds")
        n[0] += 1
        a("s_add_u32 m0, m0, 4096")
        kv_next()
    stamp()
    a(f"""
    s_lshl_b32 s52, s{SH}, 9
    s_lshl_b32 s53, s{SRB}, 5
    s_add_u32 s52, s52, s53
    s_lshl_b32 s53, s{SJ}, 2
    s_add_u32 s52, s52, s53
    s_mul_i32 s52, s52, 896
    s_lshl_b32 s53, s{SCB}, 8
    s_add_u32 s{SOF}, s52, s53
    s_add_u32 m0, s56, {L_WO}
    """)
    if wearly:
        a(f"buffer_load_dwordx4 v[16:19], v13, s[{SWS}:{SWS + 3}], s72 offen")
    lds_wait(VFQ, 1, "v_cmp_ne_u32 vcc, 0, v1", "lfq")
    for i in range(4):
        throttle(D2, 1 if wearly else 0)
        a(f"buffer_load_dwordx4 v{VWO}, s[{SWO}:{SWO + 3}], s{SOF} offen nt lds")
        n[0] += 1
        if i < 3:
            step = 16 * 896 if i != 1 else 256 * 896 - 16 * 896
            a(f"s_add_u32 m0, m0, 4096\ns_add_u32 s{SOF}, s{SOF}, {step}")
    extra = 0
    if warm == 4:
        lwarm()
        extra = (1 if floc else 0) + (0 if wearly else 1)
    stamp()
    thr = written[0] + 4
    a("s_setprio 3\ns_mov_b64 exec, 1")
    while thr <= NTOT:
        rv = VPV if (thr // 4) & 1 else 14
        a(f"v_mov_b32 v{rv}, {thr}")
        a(f"s_waitcnt vmcnt({NTOT - thr + extra + (1 if (wearly and thr <= 36) else 0)})")
        a(f"ds_write_b32 v{VPA}, v{rv}")
        if thr == 36 and vbar:
            a("s_barrier")
        if thr == 36 and tail:
            stamp()
        thr += 4
    a("s_mov_b64 exec, -1")
    stamp()
    if dirty:
        srd(SWS, 18, 19, WS_BYTES)
        a(f"""
        s_lshl_b32 s52, s2, 2
        s_add_u32 s52, s52, s{SJ}
        s_mul_i32 s52, s52, {dirty * 1024}
        s_add_u32 s52, s52, {5 << 20}
        v_lshlrev_b32 v13, 4, v0
        """)
        for i in range(dirty):
            a(f"buffer_store_dwordx4 v[16:19], v13, s[{SWS}:{SWS + 3}], s52 offen")
            a("s_add_u32 s52, s52, 1024")
    flush_stamps(20, 11, 4, 4)
    a("s_endpgm")
    a("L_end:")
    a("s_endpgm")
    a('.section .rodata,"a"')
    a(".p2align 6")
    out = HEADER + f"; @launch grid=(256,1,1) block=(512,1,1) lds={LDS_BYTES}\n" + OVERVIEW + a.text() + kernel_desc(k, 256, 102)
    return out

if __name__ == "__main__":
    kw = {}
    for x in sys.argv[2:]:
        key, val = x.lstrip("-").split("=") if "=" in x else (x.lstrip("-"), "1")
        kw[key] = int(val)
    open(sys.argv[1], "w").write(gen(**kw))
```
